```python
import torch

def _softmax(x, axis=-1):
    return torch.softmax(x, dim=axis)
def _gelu(x):
    return torch.nn.functional.gelu(x, approximate="tanh")
def _silu(x):
    return torch.nn.functional.silu(x)
def _sigmoid(x):
    return torch.sigmoid(x)
def _layernorm(x, axis=-1, eps=1e-5):
    m = x.mean(dim=axis, keepdim=True)
    v = x.var(dim=axis, keepdim=True, unbiased=False)
    return (x - m) / torch.sqrt(v + eps)
def _scatter_add(tgt, idx, src, axis=0):
    return tgt.clone().index_add_(axis, idx, src)
def _segment_sum(src, seg, n):
    out = torch.zeros((n,) + src.shape[1:], dtype=src.dtype)
    return out.index_add_(0, seg, src)
def _pad(x, pw):
    flat = tuple(v for pair in reversed(pw) for v in pair)
    return torch.nn.functional.pad(x, flat)

kernel_name = 'gated_mix__mha_block__dense_activation_mish__prompt'

def setup_inputs():

    _w = (lambda a: (lambda t: t.to(torch.bfloat16) if t.is_floating_point() else t)(torch.as_tensor(a)))
    def _A_setup():
        B, S, D, H = 1, 2048, 512, 32
        return {
            "x": _w((lambda *s: torch.randn(*s, dtype=torch.bfloat16) * 0.05)(B, S, D)),
            "wqkv": _w((lambda *s: torch.randn(*s, dtype=torch.bfloat16) * 0.8)(D, 3 * D)),
            "wo": _w((lambda *s: torch.randn(*s, dtype=torch.bfloat16) * 0.05)(D, D)),
        }
    _A_in = _A_setup()

    def _B_setup():
        B, S, D, F = 1, 2048, 512, 1376
        return {
            "x": _w((lambda *s: torch.randn(*s, dtype=torch.bfloat16) * 0.05)(B, S, D)),
            "w1": _w((lambda *s: torch.randn(*s, dtype=torch.bfloat16) * 12.8)(D, F) * (D ** -0.5)),
            "b1": _w((lambda *s: torch.randn(*s, dtype=torch.bfloat16) * 0.2)(F)),
            "w2": _w((lambda *s: torch.randn(*s, dtype=torch.bfloat16) * 0.1)(F, D) * (F ** -0.5)),
        }
    _B_in = _B_setup()

    return {
        "A_x": _A_in["x"],
        "A_wqkv": _A_in["wqkv"],
        "A_wo": _A_in["wo"],
        "B_x": _B_in["x"],
        "B_w1": _B_in["w1"],
        "B_b1": _B_in["b1"],
        "B_w2": _B_in["w2"],
        "gate_w": _w((lambda *s: torch.randn(*s, dtype=torch.bfloat16) * 0.05)(512) * 16.0),
    }

def reference(A_x, A_wqkv, A_wo, B_x, B_w1, B_b1, B_w2, gate_w):
    def _A_ref(x, wqkv, wo):
        B, S, D = x.shape
        H = 32
        Dh = D // H
        qkv = (lambda x, *d: x.permute(*d))((x @ wqkv).reshape(B, S, 3, H, Dh), 2, 0, 3, 1, 4)
        q, k, v = qkv[0], qkv[1], qkv[2]
        scores = torch.einsum("bhqd,bhkd->bhqk", q, k) * (Dh ** -0.5)
        p = _softmax(scores, axis=-1)
        o = torch.einsum("bhqk,bhkd->bhqd", p, v)
        return (lambda x, *d: x.permute(*d))(o, 0, 2, 1, 3).reshape(B, S, D) @ wo

    def _B_ref(x, w1, b1, w2):
        h = torch.einsum("bsd,df->bsf", x, w1) + b1
        sp = torch.log1p(torch.exp(-torch.abs(h))) + torch.where(h > 0, h, torch.zeros_like(h))
        act = h * torch.tanh(sp)
        return torch.einsum("bsf,fd->bsd", act, w2)

    x = A_x
    g = _sigmoid((x * gate_w).sum(-1, keepdims=True))
    a = _A_ref(x, A_wqkv, A_wo)
    b = _B_ref(x, B_w1, B_b1, B_w2)
    return g * a + (1 - g) * b
```

```python
class Asm:
    def __init__(self):
        self.lines = []
        self.label_n = 0
    def __call__(self, s):
        for l in s.strip("\n").split("\n"):
            self.lines.append("    " + l.strip())
    def label(self, name):
        self.lines.append(name + ":")
    def newlabel(self, p="L"):
        self.label_n += 1
        return f"{p}_{self.label_n}"
    def comment(self, s):
        self.lines.append("    ; " + s)
    def text(self):
        return "\n".join(self.lines) + "\n"

def v(a, n=1):
    return f"v{a}" if n == 1 else f"v[{a}:{a+n-1}]"
def s(a, n=1):
    return f"s{a}" if n == 1 else f"s[{a}:{a+n-1}]"

class RegAlloc:
    def __init__(self, start=0, limit=256):
        self.next = start; self.limit = limit
    def alloc(self, n=1, align=1):
        a = (self.next + align - 1) // align * align
        self.next = a + n
        assert self.next <= self.limit, f"out of regs {self.next}"
        return a

def kernel_header(name):
    return f""".globl {name}
.p2align 8
.type {name},@function
{name}:
"""

def kernel_desc(name, nvgpr, nsgpr=102):
    nv = (nvgpr + 7) // 8 * 8
    return f""".amdhsa_kernel {name}
  .amdhsa_next_free_vgpr {nv}
  .amdhsa_next_free_sgpr {nsgpr}
  .amdhsa_accum_offset {nv}
  .amdhsa_group_segment_fixed_size 0
  .amdhsa_kernarg_size 88
  .amdhsa_user_sgpr_count 2
  .amdhsa_user_sgpr_kernarg_segment_ptr 1
  .amdhsa_system_sgpr_workgroup_id_x 1
.end_amdhsa_kernel
"""

def srd(a, base, base_s, nbytes):
    a(f"s_mov_b32 s{base}, s{base_s}")
    a(f"s_and_b32 s{base+1}, s{base_s+1}, 0xffff")
    a(f"s_mov_b32 s{base+2}, {nbytes}")
    a(f"s_mov_b32 s{base+3}, 0x00020000")
```

```python
from asmlib import *
from layout import *

XSTR = 144
WSTR = 448
XSZ = 128 * XSTR
STAGE = XSZ + 64 * WSTR
K1_LDS = 2 * STAGE
LOG2E = 0x3fb8aa3b
QSCALE = 0.25 * 1.4426950408889634

import struct
def f2u(f):
    return struct.unpack("<I", struct.pack("<f", f))[0]

def gen_k1():
    a = Asm()
    R = RegAlloc(4)
    vXg = R.alloc(4)
    vWq = R.alloc(); vWf = R.alloc()
    vXw = [R.alloc(), R.alloc()]
    vWw = [R.alloc(), R.alloc()]
    vXr = [R.alloc(), R.alloc()]
    vWr = [[R.alloc() for _ in range(3)] for _ in range(2)]
    vTok = R.alloc()
    vt = [R.alloc() for _ in range(6)]
    stg = [R.alloc(40, 4), R.alloc(40, 4)]
    frag = [R.alloc(20, 4), R.alloc(20, 4)]
    acc = R.alloc(96, 4)
    sideT = stg[0]
    sideX = stg[0] + 8
    sideW = stg[0] + 16
    vSideA = R.alloc(); vSideB = R.alloc()
    nvgpr = R.next

    a("s_cmp_ge_u32 s2, 256")
    a("s_cbranch_scc1 K1_END")
    a("s_load_dwordx16 s[36:51], s[0:1], 0")
    a("s_load_dwordx2 s[52:53], s[0:1], 80")
    a("s_and_b32 s3, s2, 15")
    a("s_lshr_b32 s4, s2, 4")
    a("v_lshrrev_b32 v1, 6, v0")
    a("s_nop 0")
    a("v_readfirstlane_b32 s5, v1")
    a("v_and_b32 v1, 63, v0")
    a("v_and_b32 v2, 31, v0")
    a("v_bfe_u32 v3, v0, 5, 1")
    a("s_and_b32 s6, s5, 1")
    a("s_lshr_b32 s7, s5, 1")
    a("s_waitcnt lgkmcnt(0)")
    srd(a, 8, 36, 2097152)
    srd(a, 12, 38, 1572864)
    srd(a, 16, 44, 1409024)
    srd(a, 20, 52, WS_SIZE)
    srd(a, 24, 46, 2752)
    srd(a, 32, 50, 1024)
    a("s_sub_u32 s54, s2, 172")
    a("s_mov_b32 s70, 524288")
    a("s_cmp_lt_u32 s2, 172")
    a("s_cselect_b32 s28, s48, s40")
    a("s_cselect_b32 s29, s49, s41")
    a("s_cselect_b32 s30, 1409024, s70")
    a("s_cselect_b32 s54, s2, s54")
    a("s_and_b32 s29, s29, 0xffff")
    a("s_mov_b32 s31, 0x00020000")
    a("s_lshr_b32 s55, s54, 2")
    a("s_and_b32 s56, s54, 3")
    t = vt
    a(f"v_lshrrev_b32 v{t[0]}, 4, v0")
    a(f"v_and_b32 v{t[1]}, 15, v0")
    a(f"v_lshlrev_b32 v{t[0]}, 10, v{t[0]}")
    a(f"v_lshl_add_u32 v{vSideA}, v{t[1]}, 4, v{t[0]}")
    a("s_lshl_b32 s57, s55, 15")
    a("s_lshl_b32 s58, s56, 8")
    a("s_add_u32 s57, s57, s58")
    a("s_add_u32 s58, s57, 16384")
    a(f"v_lshlrev_b32 v{vSideB}, 4, v1")
    a("s_lshl_b32 s59, s2, 3")
    a("s_lshl_b32 s60, s5, 1")
    a("s_add_u32 s59, s59, s60")
    a("s_lshl_b32 s68, s59, 10")
    a("s_add_u32 s69, s68, 1024")
    a(f"v_lshrrev_b32 v{t[0]}, 3, v0")
    a(f"v_and_b32 v{t[1]}, 7, v0")
    a("s_lshl_b32 s60, s3, 7")
    a(f"v_add_u32 v{t[2]}, s60, v{t[0]}")
    a(f"v_lshlrev_b32 v{t[2]}, 10, v{t[2]}")
    a(f"v_lshl_add_u32 v{vXg}, v{t[1]}, 4, v{t[2]}")
    for i in range(1, 4):
        a(f"v_add_u32 v{vXg+i}, {32768*i}, v{vXg}")
    a(f"v_mul_u32_u24 v{t[2]}, {XSTR}, v{t[0]}")
    a(f"v_lshl_add_u32 v{vXw[0]}, v{t[1]}, 4, v{t[2]}")
    a(f"v_add_u32 v{vXw[1]}, {STAGE}, v{vXw[0]}")
    a(f"v_lshrrev_b32 v{t[0]}, 2, v0")
    a(f"v_and_b32 v{t[1]}, 3, v0")
    a("s_mul_i32 s60, s4, 192")
    a(f"v_mul_u32_u24 v{t[2]}, 3072, v{t[0]}")
    a(f"v_lshl_add_u32 v{t[2]}, v{t[1]}, 4, v{t[2]}")
    a(f"v_add_u32 v{vWq}, s60, v{t[2]}")
    a(f"v_mul_u32_u24 v{t[2]}, 2752, v{t[0]}")
    a(f"v_lshl_add_u32 v{t[2]}, v{t[1]}, 4, v{t[2]}")
    a(f"v_add_u32 v{vWf}, s60, v{t[2]}")
    a(f"v_mul_u32_u24 v{t[2]}, {WSTR}, v{t[0]}")
    a(f"v_lshl_add_u32 v{t[2]}, v{t[1]}, 4, v{t[2]}")
    a(f"v_add_u32 v{vWw[0]}, {XSZ}, v{t[2]}")
    a(f"v_add_u32 v{vWw[1]}, {STAGE}, v{vWw[0]}")
    a("s_lshl_b32 s60, s6, 6")
    a(f"v_add_u32 v{t[0]}, s60, v2")
    a(f"v_mul_u32_u24 v{t[0]}, {XSTR}, v{t[0]}")
    a(f"v_lshl_add_u32 v{vXr[0]}, v3, 4, v{t[0]}")
    a(f"v_add_u32 v{vXr[1]}, {STAGE}, v{vXr[0]}")
    a(f"v_bfe_u32 v{t[0]}, v0, 2, 2")
    a(f"v_lshl_add_u32 v{t[0]}, v3, 3, v{t[0]}")
    a(f"v_mul_u32_u24 v{t[0]}, {WSTR}, v{t[0]}")
    a(f"v_and_b32 v{t[1]}, 3, v0")
    a(f"v_lshlrev_b32 v{t[1]}, 3, v{t[1]}")
    a(f"v_bfe_u32 v{t[2]}, v0, 4, 1")
    a(f"v_lshl_add_u32 v{t[1]}, v{t[2]}, 5, v{t[1]}")
    a(f"v_add_u32 v{t[0]}, v{t[0]}, v{t[1]}")
    a(f"v_add_u32 v{t[0]}, {XSZ}, v{t[0]}")
    a("s_mov_b32 s70, 320")
    a("s_cmp_eq_u32 s7, 0")
    a("s_cselect_b32 s60, 0, 128")
    a("s_cselect_b32 s61, 64, 256")
    a("s_cselect_b32 s62, 192, s70")
    for ft in range(3):
        a(f"v_add_u32 v{vWr[0][ft]}, s{60+ft}, v{t[0]}")
        a(f"v_add_u32 v{vWr[1][ft]}, {STAGE}, v{vWr[0][ft]}")

    def issue_loads(st):
        base = stg[st % 2]
        a(f"s_mov_b32 s60, {st*64*3072}")
        a(f"s_mov_b32 s61, {st*64*2752}")
        for i in range(4):
            a(f"buffer_load_dwordx4 {v(base+4*i,4)}, v{vXg+i}, s[8:11], 0 offen offset:{st*128}")
        for j in range(3):
            a(f"buffer_load_dwordx4 {v(base+16+4*j,4)}, v{vWq}, s[12:15], s60 offen offset:{j*64}")
        for j in range(3):
            a(f"buffer_load_dwordx4 {v(base+28+4*j,4)}, v{vWf}, s[16:19], s61 offen offset:{j*64}")
    def write_ops(st):
        base = stg[st % 2]; b = st % 2
        ops = []
        for i in range(4):
            ops.append(f"ds_write_b128 v{vXw[b]}, {v(base+4*i,4)} offset:{i*32*XSTR}")
        for j in range(3):
            ops.append(f"ds_write_b128 v{vWw[b]}, {v(base+16+4*j,4)} offset:{j*64}")
        for j in range(3):
            ops.append(f"ds_write_b128 v{vWw[b]}, {v(base+28+4*j,4)} offset:{192+j*64}")
        return ops
    def read_ops(j):
        st, ks = j // 4, j % 4
        b = st % 2; f = frag[j % 2]
        ops = []
        for ft in range(3):
            for half in range(2):
                ops.append(f"ds_read_b64_tr_b16 {v(f+4*ft+2*half,2)}, v{vWr[b][ft]} offset:{ks*16*WSTR + half*4*WSTR}")
        for tt in range(2):
            ops.append(f"ds_read_b128 {v(f+12+4*tt,4)}, v{vXr[b]} offset:{tt*32*XSTR + ks*32}")
        return ops
    def mfma_ops(j):
        f = frag[j % 2]
        ops = []
        for ft in range(3):
            for tt in range(2):
                d = acc + 16 * (ft * 2 + tt)
                c = "0" if j == 0 else v(d, 16)
                ops.append(f"v_mfma_f32_32x32x16_bf16 {v(d,16)}, {v(f+4*ft,4)}, {v(f+12+4*tt,4)}, {c}")
        return ops

    issue_loads(0)
    issue_loads(1)
    a("s_waitcnt vmcnt(10)")
    for o in write_ops(0): a(o)
    a("s_waitcnt lgkmcnt(0)")
    a("s_barrier")
    for o in read_ops(0): a(o)
    for j in range(32):
        st, ks = j // 4, j % 4
        a("s_waitcnt lgkmcnt(0)")
        other = []
        if ks == 3 and st < 7:
            a("s_barrier")
        if j < 31:
            other += read_ops(j + 1)
        if ks == 0 and st + 2 <= 7:
            issue_loads(st + 2)
        if j == 26:
            a(f"buffer_load_dwordx4 {v(sideT,4)}, v{vSideA}, s[28:31], s57 offen")
            a(f"buffer_load_dwordx4 {v(sideT+4,4)}, v{vSideA}, s[28:31], s58 offen")
            a(f"buffer_load_dwordx4 {v(sideX,4)}, v{vSideB}, s[8:11], s68 offen")
            a(f"buffer_load_dwordx4 {v(sideX+4,4)}, v{vSideB}, s[8:11], s69 offen")
            a(f"buffer_load_dwordx4 {v(sideW,4)}, v{vSideB}, s[32:35], 0 offen")
        if ks in (0, 1) and st + 1 <= 7:
            w = write_ops(st + 1)
            if ks == 0:
                a(f"s_waitcnt vmcnt({10 if st + 2 <= 7 else 0})")
                other += w[:5]
            else:
                other += w[5:]
        m = mfma_ops(j)
        per = (len(other) + 5) // 6
        oi = 0
        for k in range(6):
            a(m[k])
            for _ in range(per):
                if oi < len(other):
                    a(other[oi]); oi += 1
    a("s_nop 15")
    a("s_nop 7")
    a("s_lshl_b32 s60, s3, 7")
    a("s_lshl_b32 s61, s6, 6")
    a("s_add_u32 s60, s60, s61")
    a(f"v_add_u32 v{vTok}, s60, v2")
    tmp = frag[0]
    P = tmp
    vA = vt[0]; vB = vt[1]

    def qkv_tile(ft, jq):
        a(f"s_mul_i32 s60, s4, 3")
        a(f"s_add_u32 s60, s60, {jq}")
        a("s_lshr_b32 s61, s60, 4")
        a("s_and_b32 s62, s60, 15")
        a("s_lshl_b32 s63, s61, 21")
        a("s_lshl_b32 s62, s62, 17")
        a("s_add_u32 s63, s63, s62")
        a("s_add_u32 s64, s63, 65536")
        a("s_cmp_eq_u32 s61, 0")
        a(f"s_cselect_b32 s65, {f2u(QSCALE)}, 1.0")
        for tt in range(2):
            d = acc + 16 * (ft * 2 + tt)
            for i in range(16):
                a(f"v_mul_f32 v{d+i}, s65, v{d+i}")
            for i in range(8):
                a(f"v_cvt_pk_bf16_f32 v{P+i}, v{d+2*i}, v{d+2*i+1}")
            a(f"v_add_u32 v{vA}, {32*tt}, v{vTok}")
            a(f"v_lshlrev_b32 v{vA}, 5, v{vA}")
            a(f"v_lshl_add_u32 v{vA}, v3, 4, v{vA}")
            a("s_nop 1")
            a(f"v_permlane32_swap_b32 v{P+0}, v{P+2}")
            a(f"v_permlane32_swap_b32 v{P+1}, v{P+3}")
            a(f"v_permlane32_swap_b32 v{P+4}, v{P+6}")
            a(f"v_permlane32_swap_b32 v{P+5}, v{P+7}")
            a("s_nop 1")
            a(f"buffer_store_dwordx4 {v(P,4)}, v{vA}, s[20:23], s63 offen")
            a(f"buffer_store_dwordx4 {v(P+4,4)}, v{vA}, s[20:23], s64 offen")
            a("s_nop 1")

    def ffn_tile(ft, jf):
        lab = a.newlabel("K1_SKIPF")
        a(f"s_mul_i32 s60, s4, 3")
        a(f"s_add_u32 s60, s60, {jf}")
        a("s_cmp_ge_u32 s60, 43")
        a(f"s_cbranch_scc1 {lab}")
        a("s_lshl_b32 s61, s60, 6")
        bias = stg[1]
        a(f"v_lshlrev_b32 v{vA}, 3, v3")
        for q in range(4):
            a(f"buffer_load_dwordx2 {v(bias+2*q,2)}, v{vA}, s[24:27], s61 offen offset:{16*q}")
        a("s_waitcnt vmcnt(0)")
        bu = bias + 8
        for q in range(8):
            a(f"v_lshlrev_b32 v{bu+2*q}, 16, v{bias+q}")
            a(f"v_and_b32 v{bu+2*q+1}, 0xffff0000, v{bias+q}")
        a(f"s_add_u32 s61, s61, {WS_ACT}")
        for tt in range(2):
            d = acc + 16 * (ft * 2 + tt)
            T = tmp + 8
            for i in range(16):
                a(f"v_add_f32 v{d+i}, v{d+i}, v{bu+i}")
            for i in range(8):
                a(f"v_cvt_pk_bf16_f32 v{P+i}, v{d+2*i}, v{d+2*i+1}")
            for i in range(8):
                a(f"v_lshlrev_b32 v{d+2*i}, 16, v{P+i}")
                a(f"v_and_b32 v{d+2*i+1}, 0xffff0000, v{P+i}")
            for i in range(16):
                a(f"v_min_f32 v{T+i}, 0x41a00000, v{d+i}")
            for i in range(16):
                a(f"v_mul_f32 v{T+i}, 0x3fb8aa3b, v{T+i}")
            for i in range(16):
                a(f"v_exp_f32 v{T+i}, v{T+i}")
            U = T + 16
            for i in range(16):
                a(f"v_add_f32 v{U+i}, 2.0, v{T+i}")
            for i in range(16):
                a(f"v_mul_f32 v{T+i}, v{T+i}, v{U+i}")
            for i in range(16):
                a(f"v_add_f32 v{U+i}, 2.0, v{T+i}")
            for i in range(16):
                a(f"v_rcp_f32 v{U+i}, v{U+i}")
            for i in range(16):
                a(f"v_mul_f32 v{T+i}, v{T+i}, v{U+i}")
            for i in range(16):
                a(f"v_mul_f32 v{d+i}, v{d+i}, v{T+i}")
            for i in range(8):
                a(f"v_cvt_pk_bf16_f32 v{P+i}, v{d+2*i}, v{d+2*i+1}")
            a(f"v_add_u32 v{vA}, {32*tt}, v{vTok}")
            a(f"v_mul_u32_u24 v{vA}, 2752, v{vA}")
            a(f"v_lshl_add_u32 v{vA}, v3, 4, v{vA}")
            a("s_nop 1")
            a(f"v_permlane32_swap_b32 v{P+0}, v{P+2}")
            a(f"v_permlane32_swap_b32 v{P+1}, v{P+3}")
            a(f"v_permlane32_swap_b32 v{P+4}, v{P+6}")
            a(f"v_permlane32_swap_b32 v{P+5}, v{P+7}")
            a("s_nop 1")
            a(f"buffer_store_dwordx4 {v(P,4)}, v{vA}, s[20:23], s61 offen")
            a(f"buffer_store_dwordx4 {v(P+4,4)}, v{vA}, s[20:23], s61 offen offset:32")
            a("s_nop 1")
        a.label(lab)

    a("s_cmp_eq_u32 s7, 0")
    a("s_cbranch_scc0 K1_EPI1")
    qkv_tile(0, 0); qkv_tile(1, 1); ffn_tile(2, 0)
    a("s_branch K1_EPI_DONE")
    a.label("K1_EPI1")
    qkv_tile(0, 2); ffn_tile(1, 1); ffn_tile(2, 2)
    a.label("K1_EPI_DONE")

    T = frag[0]
    a("s_waitcnt vmcnt(0)")
    for i in range(4):
        a(f"v_lshlrev_b32 v{T+2*i}, 16, v{sideW+i}")
        a(f"v_and_b32 v{T+2*i+1}, 0xffff0000, v{sideW+i}")
    S = [vt[2], vt[3]]
    for tk in range(2):
        X = T + 8
        for i in range(4):
            a(f"v_lshlrev_b32 v{X+2*i}, 16, v{sideX+4*tk+i}")
            a(f"v_and_b32 v{X+2*i+1}, 0xffff0000, v{sideX+4*tk+i}")
        for i in range(8):
            a(f"v_mul_f32 v{X+i}, v{X+i}, v{T+i}")
        for i in range(4):
            a(f"v_cvt_pk_bf16_f32 v{X+8+i}, v{X+2*i}, v{X+2*i+1}")
        for i in range(4):
            a(f"v_lshlrev_b32 v{X+2*i}, 16, v{X+8+i}")
            a(f"v_and_b32 v{X+2*i+1}, 0xffff0000, v{X+8+i}")
        a(f"v_add_f32 v{X}, v{X}, v{X+1}")
        a(f"v_add_f32 v{X+2}, v{X+2}, v{X+3}")
        a(f"v_add_f32 v{X+4}, v{X+4}, v{X+5}")
        a(f"v_add_f32 v{X+6}, v{X+6}, v{X+7}")
        a(f"v_add_f32 v{X}, v{X}, v{X+2}")
        a(f"v_add_f32 v{X+4}, v{X+4}, v{X+6}")
        a(f"v_add_f32 v{S[tk]}, v{X}, v{X+4}")
    for m in (1, 2, 4, 8, 16, 32):
        a(f"v_xor_b32 v{vt[4]}, {m}, v1")
        a(f"v_lshlrev_b32 v{vt[4]}, 2, v{vt[4]}")
        a(f"ds_bpermute_b32 v{T+0}, v{vt[4]}, v{S[0]}")
        a(f"ds_bpermute_b32 v{T+1}, v{vt[4]}, v{S[1]}")
        a("s_waitcnt lgkmcnt(0)")
        a(f"v_add_f32 v{S[0]}, v{S[0]}, v{T+0}")
        a(f"v_add_f32 v{S[1]}, v{S[1]}, v{T+1}")
    a(f"v_cvt_pk_bf16_f32 v{T}, v{S[0]}, v{S[1]}")
    a(f"v_lshlrev_b32 v{T+1}, 16, v{T}")
    a(f"v_and_b32 v{T+2}, 0xffff0000, v{T}")
    for i in (1, 2):
        a(f"v_mul_f32 v{T+i}, 0xbfb8aa3b, v{T+i}")
    for i in (1, 2):
        a(f"v_exp_f32 v{T+i}, v{T+i}")
    a("s_nop 0")
    for i in (1, 2):
        a(f"v_add_f32 v{T+i}, 1.0, v{T+i}")
    for i in (1, 2):
        a(f"v_rcp_f32 v{T+i}, v{T+i}")
    a("s_nop 0")
    a(f"v_cvt_pk_bf16_f32 v{T}, v{T+1}, v{T+2}")
    a(f"v_lshlrev_b32 v{T+4}, 16, v{T}")
    a(f"v_and_b32 v{T+5}, 0xffff0000, v{T}")
    a(f"v_sub_f32 v{T+6}, 1.0, v{T+4}")
    a(f"v_sub_f32 v{T+7}, 1.0, v{T+5}")
    a(f"v_cvt_pk_bf16_f32 v{T}, v{T+6}, v{T+7}")
    a(f"v_lshlrev_b32 v{T+6}, 16, v{T}")
    a(f"v_and_b32 v{T+7}, 0xffff0000, v{T}")
    a("s_lshl_b32 s60, s59, 2")
    a(f"s_add_u32 s61, s60, {WS_OMG}")
    a(f"s_add_u32 s60, s60, {WS_G}")
    a(f"v_mov_b32 v{vt[4]}, 0")
    a("v_cmp_eq_u32 vcc, 0, v1")
    a("s_and_saveexec_b64 s[66:67], vcc")
    a(f"buffer_store_dwordx2 {v(T+4,2)}, v{vt[4]}, s[20:23], s60 offen")
    a(f"buffer_store_dwordx2 {v(T+6,2)}, v{vt[4]}, s[20:23], s61 offen")
    a("s_mov_b64 exec, s[66:67]")

    a("s_cmp_ge_u32 s2, 236")
    a("s_cbranch_scc1 K1_END")
    a("s_barrier")
    TS = 320
    a(f"v_lshrrev_b32 v{t[0]}, 4, v0")
    a(f"v_and_b32 v{t[1]}, 15, v0")
    a(f"v_mul_u32_u24 v{t[0]}, {TS}, v{t[0]}")
    a(f"v_lshl_add_u32 v{t[0]}, v{t[1]}, 4, v{t[0]}")
    a(f"ds_write_b128 v{t[0]}, {v(sideT,4)}")
    a(f"ds_write_b128 v{t[0]}, {v(sideT+4,4)} offset:{16*TS}")
    a("s_waitcnt lgkmcnt(0)")
    a("s_barrier")
    a(f"v_bfe_u32 v{t[0]}, v0, 2, 2")
    a(f"v_lshl_add_u32 v{t[0]}, v3, 3, v{t[0]}")
    a(f"v_mul_u32_u24 v{t[0]}, {TS}, v{t[0]}")
    a(f"v_and_b32 v{t[1]}, 3, v0")
    a(f"v_lshlrev_b32 v{t[1]}, 3, v{t[1]}")
    a(f"v_bfe_u32 v{t[2]}, v0, 4, 1")
    a(f"v_lshl_add_u32 v{t[1]}, v{t[2]}, 5, v{t[1]}")
    a(f"v_add_u32 v{t[0]}, v{t[0]}, v{t[1]}")
    a("s_lshl_b32 s60, s5, 6")
    a(f"v_add_u32 v{t[0]}, s60, v{t[0]}")
    for i in range(2):
        for half in range(2):
            a(f"ds_read_b64_tr_b16 {v(T+4*i+2*half,2)}, v{t[0]} offset:{i*16*TS + half*4*TS}")
    a("s_mov_b32 s70, 1024")
    a(f"s_mov_b32 s71, {WS_WOT}")
    a("s_cmp_lt_u32 s2, 172")
    a("s_cselect_b32 s61, 2752, s70")
    a(f"s_cselect_b32 s62, {WS_W2T}, s71")
    a("s_lshl_b32 s63, s56, 7")
    a("s_lshl_b32 s64, s5, 5")
    a("s_add_u32 s63, s63, s64")
    a(f"v_add_u32 v{t[1]}, s63, v2")
    a(f"v_mul_lo_u32 v{t[1]}, v{t[1]}, s61")
    a(f"v_lshl_add_u32 v{t[1]}, v3, 4, v{t[1]}")
    a("s_lshl_b32 s63, s55, 6")
    a("s_add_u32 s62, s62, s63")
    a("s_waitcnt lgkmcnt(0)")
    a(f"buffer_store_dwordx4 {v(T,4)}, v{t[1]}, s[20:23], s62 offen")
    a(f"buffer_store_dwordx4 {v(T+4,4)}, v{t[1]}, s[20:23], s62 offen offset:32")
    a.label("K1_END")
    a("s_endpgm")
    return a.text(), nvgpr
```

```python
from asmlib import *
from layout import *

K2_LDS = 131072 + 8192

def direct_gemm(a, name, vA, vB, nsteps, D, base, acc, srd_="s[8:11]"):
    def issue(j):
        sl = base + 8 * (j % D)
        a(f"buffer_load_dwordx4 {v(sl,4)}, v{vA}, {srd_}, 0 offen offset:{j*32}")
        a(f"buffer_load_dwordx4 {v(sl+4,4)}, v{vB}, {srd_}, 0 offen offset:{j*32}")
    for j in range(min(D, nsteps)):
        issue(j)
    for j in range(nsteps):
        out = min(D, nsteps - j) - 1
        a(f"s_waitcnt vmcnt({2*out})")
        sl = base + 8 * (j % D)
        c = "0" if j == 0 else v(acc, 16)
        a(f"v_mfma_f32_32x32x16_bf16 {v(acc,16)}, {v(sl,4)}, {v(sl+4,4)}, {c}")
        if j + D < nsteps:
            issue(j + D)

def gen_k2():
    a = Asm()
    R = RegAlloc(4)
    vQ = R.alloc(4, 4)
    vKa = R.alloc(); vVa = R.alloc(); vVinc = R.alloc()
    vt = [R.alloc() for _ in range(6)]
    mA = R.alloc(); mB = R.alloc()
    KF = [R.alloc(4, 4) for _ in range(4)]
    S = [R.alloc(16, 4) for _ in range(4)]
    C = R.alloc(16, 4)
    P = [R.alloc(8, 4) for _ in range(2)]
    VF = [R.alloc(8, 4) for _ in range(2)]
    O = R.alloc(16, 4)
    nv_att = R.next

    a("s_cmp_ge_u32 s2, 256")
    a("s_cbranch_scc1 K2_END")
    a("s_load_dwordx2 s[52:53], s[0:1], 80")
    a("v_lshrrev_b32 v1, 6, v0")
    a("s_nop 0")
    a("v_readfirstlane_b32 s5, v1")
    a("v_and_b32 v1, 63, v0")
    a("v_and_b32 v2, 31, v0")
    a("v_bfe_u32 v3, v0, 5, 1")
    a("s_waitcnt lgkmcnt(0)")
    srd(a, 8, 52, WS_SIZE)
    a("s_cmp_ge_u32 s5, 8")
    a("s_cbranch_scc1 K2_FFN")
    a("s_and_b32 s3, s2, 7")
    a("s_lshl_b32 s3, s3, 2")
    a("s_lshr_b32 s4, s2, 6")
    a("s_add_u32 s3, s3, s4")
    a("s_lshr_b32 s4, s2, 3")
    a("s_and_b32 s4, s4, 7")
    a("s_lshl_b32 s6, s3, 16")
    t = vt
    a(f"v_lshlrev_b32 v{t[0]}, 4, v0")
    stgK = S[0]; stgV = S[2]
    for i in range(8):
        a(f"s_add_u32 s7, s6, {WS_K + i*8192}")
        a(f"buffer_load_dwordx4 {v(stgK+4*i,4)}, v{t[0]}, s[8:11], s7 offen")
    for i in range(8):
        a(f"s_add_u32 s7, s6, {WS_V + i*8192}")
        a(f"buffer_load_dwordx4 {v(stgV+4*i,4)}, v{t[0]}, s[8:11], s7 offen")
    a("s_lshl_b32 s12, s4, 8")
    a("s_lshl_b32 s13, s5, 5")
    a("s_add_u32 s12, s12, s13")
    a(f"v_add_u32 v{t[1]}, s12, v2")
    a(f"v_lshlrev_b32 v{t[2]}, 5, v{t[1]}")
    a(f"v_lshl_add_u32 v{t[2]}, v3, 4, v{t[2]}")
    a(f"s_add_u32 s7, s6, {WS_Q}")
    a(f"buffer_load_dwordx4 {v(vQ,4)}, v{t[2]}, s[8:11], s7 offen")
    a(f"v_mov_b32 v{C}, 0x3f803f80")
    a(f"v_mov_b32 v{C+1}, 0x3f803f80")
    a(f"v_mov_b32 v{C+2}, 0x3f803f80")
    a(f"v_mov_b32 v{C+3}, 0x3f803f80")
    a(f"v_add_u32 v{t[3]}, 131072, v{t[0]}")
    a(f"ds_write_b128 v{t[3]}, {v(C,4)}")
    a(f"v_add_u32 v{t[3]}, 65536, v{t[0]}")
    a("s_waitcnt vmcnt(9)")
    for i in range(8):
        a(f"ds_write_b128 v{t[0]}, {v(stgK+4*i,4)} offset:{i*8192}")
    a("s_waitcnt vmcnt(1)")
    for i in range(8):
        a(f"ds_write_b128 v{t[3]}, {v(stgV+4*i,4)} offset:{i*8192}")
    a(f"v_lshlrev_b32 v{vKa}, 5, v2")
    a(f"v_lshl_add_u32 v{vKa}, v3, 4, v{vKa}")
    a(f"v_bfe_u32 v{t[1]}, v0, 2, 2")
    a(f"v_lshl_add_u32 v{t[1]}, v3, 2, v{t[1]}")
    a(f"v_lshlrev_b32 v{t[1]}, 5, v{t[1]}")
    a(f"v_and_b32 v{t[2]}, 3, v0")
    a(f"v_lshl_add_u32 v{t[1]}, v{t[2]}, 3, v{t[1]}")
    a(f"v_add_u32 v{t[1]}, 65536, v{t[1]}")
    a(f"v_and_b32 v{t[2]}, 15, v0")
    a(f"v_lshlrev_b32 v{t[2]}, 3, v{t[2]}")
    a(f"v_add_u32 v{t[2]}, 131072, v{t[2]}")
    a(f"v_bfe_u32 v{t[3]}, v0, 4, 1")
    a(f"v_cmp_eq_u32 vcc, 1, v{t[3]}")
    a(f"v_mov_b32 v{t[4]}, 4096")
    a(f"v_mov_b32 v{t[5]}, 0")
    a("s_nop 1")
    a(f"v_cndmask_b32 v{vVa}, v{t[1]}, v{t[2]}, vcc")
    a(f"v_cndmask_b32 v{vVinc}, v{t[4]}, v{t[5]}, vcc")
    a(f"v_mov_b32 v{mA}, 0xff800000")
    a(f"v_mov_b32 v{mB}, 0xff800000")
    a("s_waitcnt vmcnt(0) lgkmcnt(0)")
    a("s_barrier")
    def kread(slot, tile_off):
        return f"ds_read_b128 {v(KF[slot],4)}, v{vKa} offset:{tile_off*1024}"
    for T in range(3):
        a(kread(T, T))
    a("s_waitcnt lgkmcnt(1)")
    a(f"v_mfma_f32_32x32x16_bf16 {v(S[0],16)}, {v(KF[0],4)}, {v(vQ,4)}, 0")
    a(f"v_mfma_f32_32x32x16_bf16 {v(S[1],16)}, {v(KF[1],4)}, {v(vQ,4)}, 0")
    a("s_mov_b32 s16, 16")
    a.label("K2_P1")
    for u in range(4):
        a(kread((u + 3) % 4, u + 3))
        a("s_waitcnt lgkmcnt(1)")
        a(f"v_mfma_f32_32x32x16_bf16 {v(S[(u+2)%4],16)}, {v(KF[(u+2)%4],4)}, {v(vQ,4)}, 0")
        for i in range(8):
            m = mA if i % 2 == 0 else mB
            a(f"v_max3_f32 v{m}, v{S[u]+2*i}, v{S[u]+2*i+1}, v{m}")
    a(f"v_add_u32 v{vKa}, 4096, v{vKa}")
    a("s_sub_u32 s16, s16, 1")
    a("s_cmp_lg_u32 s16, 0")
    a("s_cbranch_scc1 K2_P1")
    a(f"v_subrev_u32 v{vKa}, 65536, v{vKa}")
    a(f"v_max_f32 v{mA}, v{mA}, v{mB}")
    a("s_nop 1")
    a(f"v_mov_b32 v{mB}, v{mA}")
    a("s_nop 1")
    a(f"v_permlane32_swap_b32 v{mA}, v{mB}")
    a("s_nop 1")
    a(f"v_max_f32 v{mA}, v{mA}, v{mB}")
    for i in range(16):
        a(f"v_sub_f32 v{C+i}, 0, v{mA}")
    a("s_waitcnt lgkmcnt(0)")
    a("s_nop 7")
    def vreads(slot, tile_off):
        return [f"ds_read_b64_tr_b16 {v(VF[slot]+2*q,2)}, v{vVa} offset:{tile_off*1024 + (q//2)*512 + (q%2)*256}" for q in range(4)]
    for T in range(3):
        a(kread(T, T))
    for o in vreads(0, 0): a(o)
    a("s_waitcnt lgkmcnt(5)")
    a(f"v_mfma_f32_32x32x16_bf16 {v(S[0],16)}, {v(KF[0],4)}, {v(vQ,4)}, {v(C,16)}")
    a(f"v_mfma_f32_32x32x16_bf16 {v(S[1],16)}, {v(KF[1],4)}, {v(vQ,4)}, {v(C,16)}")
    for i in range(16):
        a(f"v_mov_b32 v{O+i}, 0")
    a("s_mov_b32 s16, 16")
    a.label("K2_P2")
    for u in range(4):
        a(kread((u + 3) % 4, u + 3))
        for o in vreads((u + 1) % 2, u + 1): a(o)
        a("s_waitcnt lgkmcnt(5)")
        a(f"v_mfma_f32_32x32x16_bf16 {v(S[(u+2)%4],16)}, {v(KF[(u+2)%4],4)}, {v(vQ,4)}, {v(C,16)}")
        for i in range(16):
            a(f"v_exp_f32 v{S[u]+i}, v{S[u]+i}")
        for i in range(8):
            a(f"v_cvt_pk_bf16_f32 v{P[u%2]+i}, v{S[u]+2*i}, v{S[u]+2*i+1}")
        a("s_nop 1")
        a(f"v_mfma_f32_32x32x16_bf16 {v(O,16)}, {v(VF[u%2],4)}, {v(P[u%2],4)}, {v(O,16)}")
        a(f"v_mfma_f32_32x32x16_bf16 {v(O,16)}, {v(VF[u%2]+4,4)}, {v(P[u%2]+4,4)}, {v(O,16)}")
    a(f"v_add_u32 v{vKa}, 4096, v{vKa}")
    a(f"v_add_u32 v{vVa}, v{vVinc}, v{vVa}")
    a("s_sub_u32 s16, s16, 1")
    a("s_cmp_lg_u32 s16, 0")
    a("s_cbranch_scc1 K2_P2")
    a("s_nop 15")
    a("s_nop 7")
    a(f"v_rcp_f32 v{t[0]}, v{O+8}")
    a("s_nop 1")
    for i in range(8):
        a(f"v_mul_f32 v{O+i}, v{O+i}, v{t[0]}")
    Pp = P[0]
    for i in range(4):
        a(f"v_cvt_pk_bf16_f32 v{Pp+i}, v{O+2*i}, v{O+2*i+1}")
    a(f"v_add_u32 v{t[1]}, s12, v2")
    a(f"v_lshlrev_b32 v{t[1]}, 10, v{t[1]}")
    a(f"v_lshl_add_u32 v{t[1]}, v3, 4, v{t[1]}")
    a("s_lshl_b32 s7, s3, 5")
    a(f"s_add_u32 s7, s7, {WS_O}")
    a(f"v_permlane32_swap_b32 v{Pp+0}, v{Pp+2}")
    a(f"v_permlane32_swap_b32 v{Pp+1}, v{Pp+3}")
    a("s_waitcnt lgkmcnt(0)")
    a(f"buffer_store_dwordx4 {v(Pp,4)}, v{t[1]}, s[8:11], s7 offen")
    a("s_endpgm")

    a.label("K2_FFN")
    R2 = RegAlloc(4)
    vA = R2.alloc(); vB = R2.alloc(); vG = R2.alloc(); vS = R2.alloc()
    facc = R2.alloc(16, 4)
    Pf = R2.alloc(8, 4)
    D = 8
    slots = R2.alloc(8 * D, 4)
    a("s_barrier")
    a("s_sub_u32 s5, s5, 8")
    a("s_lshr_b32 s3, s2, 3")
    a("s_and_b32 s4, s2, 7")
    a("s_lshl_b32 s3, s3, 6")
    a("s_and_b32 s6, s5, 1")
    a("s_lshl_b32 s6, s6, 5")
    a("s_add_u32 s3, s3, s6")
    a("s_lshl_b32 s4, s4, 6")
    a("s_lshr_b32 s6, s5, 1")
    a("s_lshl_b32 s6, s6, 5")
    a("s_add_u32 s4, s4, s6")
    a(f"v_add_u32 v{vA}, s4, v2")
    a(f"v_mul_u32_u24 v{vA}, 2752, v{vA}")
    a(f"v_lshl_add_u32 v{vA}, v3, 4, v{vA}")
    a(f"v_add_u32 v{vA}, {WS_W2T}, v{vA}")
    a(f"v_add_u32 v{vS}, s3, v2")
    a(f"v_mul_u32_u24 v{vB}, 2752, v{vS}")
    a(f"v_lshl_add_u32 v{vB}, v3, 4, v{vB}")
    a(f"v_add_u32 v{vB}, {WS_ACT}, v{vB}")
    a(f"v_lshlrev_b32 v{vG}, 2, v{vS}")
    a(f"s_mov_b32 s7, {WS_OMG}")
    a(f"buffer_load_dword v{vG}, v{vG}, s[8:11], s7 offen")
    direct_gemm(a, "ffn2", vA, vB, 86, D, slots, facc)
    a("s_nop 15")
    a("s_nop 7")
    for i in range(8):
        a(f"v_cvt_pk_bf16_f32 v{Pf+i}, v{facc+2*i}, v{facc+2*i+1}")
    for i in range(8):
        a(f"v_lshlrev_b32 v{facc+2*i}, 16, v{Pf+i}")
        a(f"v_and_b32 v{facc+2*i+1}, 0xffff0000, v{Pf+i}")
    for i in range(16):
        a(f"v_mul_f32 v{facc+i}, v{facc+i}, v{vG}")
    for i in range(8):
        a(f"v_cvt_pk_bf16_f32 v{Pf+i}, v{facc+2*i}, v{facc+2*i+1}")
    a(f"v_lshlrev_b32 v{vS}, 10, v{vS}")
    a(f"v_lshl_add_u32 v{vS}, v3, 4, v{vS}")
    a("s_lshl_b32 s7, s4, 1")
    a(f"s_add_u32 s7, s7, {WS_BB}")
    a(f"v_permlane32_swap_b32 v{Pf+0}, v{Pf+2}")
    a(f"v_permlane32_swap_b32 v{Pf+1}, v{Pf+3}")
    a(f"v_permlane32_swap_b32 v{Pf+4}, v{Pf+6}")
    a(f"v_permlane32_swap_b32 v{Pf+5}, v{Pf+7}")
    a("s_nop 1")
    a(f"buffer_store_dwordx4 {v(Pf,4)}, v{vS}, s[8:11], s7 offen")
    a(f"buffer_store_dwordx4 {v(Pf+4,4)}, v{vS}, s[8:11], s7 offen offset:32")
    a.label("K2_END")
    a("s_endpgm")
    return a.text(), max(nv_att, R2.next)

def gen_k3():
    a = Asm()
    R2 = RegAlloc(4)
    vA = R2.alloc(); vB = R2.alloc(); vG = R2.alloc(); vS = R2.alloc()
    facc = R2.alloc(16, 4)
    Pf = R2.alloc(8, 4)
    BB = R2.alloc(8, 4)
    D = 16
    slots = R2.alloc(8 * D, 4)
    a("s_cmp_ge_u32 s2, 256")
    a("s_cbranch_scc1 K3_END")
    a("s_load_dwordx2 s[52:53], s[0:1], 80")
    a("s_load_dwordx2 s[54:55], s[0:1], 64")
    a("v_lshrrev_b32 v1, 6, v0")
    a("s_nop 0")
    a("v_readfirstlane_b32 s5, v1")
    a("v_and_b32 v1, 63, v0")
    a("v_and_b32 v2, 31, v0")
    a("v_bfe_u32 v3, v0, 5, 1")
    a("s_waitcnt lgkmcnt(0)")
    srd(a, 8, 52, WS_SIZE)
    srd(a, 12, 54, 2097152)
    a("s_lshr_b32 s3, s2, 3")
    a("s_and_b32 s4, s2, 7")
    a("s_lshl_b32 s3, s3, 6")
    a("s_and_b32 s6, s5, 1")
    a("s_lshl_b32 s6, s6, 5")
    a("s_add_u32 s3, s3, s6")
    a("s_lshl_b32 s4, s4, 6")
    a("s_lshr_b32 s6, s5, 1")
    a("s_lshl_b32 s6, s6, 5")
    a("s_add_u32 s4, s4, s6")
    a(f"v_add_u32 v{vA}, s4, v2")
    a(f"v_lshlrev_b32 v{vA}, 10, v{vA}")
    a(f"v_lshl_add_u32 v{vA}, v3, 4, v{vA}")
    a(f"v_add_u32 v{vA}, {WS_WOT}, v{vA}")
    a(f"v_add_u32 v{vS}, s3, v2")
    a(f"v_lshlrev_b32 v{vB}, 10, v{vS}")
    a(f"v_lshl_add_u32 v{vB}, v3, 4, v{vB}")
    a(f"v_add_u32 v{vB}, {WS_O}, v{vB}")
    a(f"v_lshlrev_b32 v{vG}, 2, v{vS}")
    a(f"s_mov_b32 s7, {WS_G}")
    a(f"buffer_load_dword v{vG}, v{vG}, s[8:11], s7 offen")
    a(f"v_lshlrev_b32 v{vS}, 10, v{vS}")
    a(f"v_lshl_add_u32 v{vS}, v3, 4, v{vS}")
    a("s_lshl_b32 s16, s4, 1")
    a(f"s_add_u32 s17, s16, {WS_BB}")
    a(f"buffer_load_dwordx4 {v(BB,4)}, v{vS}, s[8:11], s17 offen")
    a(f"buffer_load_dwordx4 {v(BB+4,4)}, v{vS}, s[8:11], s17 offen offset:32")
    direct_gemm(a, "wo", vA, vB, 32, D, slots, facc)
    a("s_nop 15")
    a("s_nop 7")
    for i in range(8):
        a(f"v_cvt_pk_bf16_f32 v{Pf+i}, v{facc+2*i}, v{facc+2*i+1}")
    for i in range(8):
        a(f"v_lshlrev_b32 v{facc+2*i}, 16, v{Pf+i}")
        a(f"v_and_b32 v{facc+2*i+1}, 0xffff0000, v{Pf+i}")
    for i in range(16):
        a(f"v_mul_f32 v{facc+i}, v{facc+i}, v{vG}")
    for i in range(8):
        a(f"v_cvt_pk_bf16_f32 v{Pf+i}, v{facc+2*i}, v{facc+2*i+1}")
    a("s_nop 1")
    a(f"v_permlane32_swap_b32 v{Pf+0}, v{Pf+2}")
    a(f"v_permlane32_swap_b32 v{Pf+1}, v{Pf+3}")
    a(f"v_permlane32_swap_b32 v{Pf+4}, v{Pf+6}")
    a(f"v_permlane32_swap_b32 v{Pf+5}, v{Pf+7}")
    a("s_nop 1")
    T = slots
    for i in range(8):
        a(f"v_lshlrev_b32 v{facc+2*i}, 16, v{Pf+i}")
        a(f"v_and_b32 v{facc+2*i+1}, 0xffff0000, v{Pf+i}")
        a(f"v_lshlrev_b32 v{T+2*i}, 16, v{BB+i}")
        a(f"v_and_b32 v{T+2*i+1}, 0xffff0000, v{BB+i}")
    for i in range(16):
        a(f"v_add_f32 v{facc+i}, v{facc+i}, v{T+i}")
    for i in range(8):
        a(f"v_cvt_pk_bf16_f32 v{Pf+i}, v{facc+2*i}, v{facc+2*i+1}")
    a(f"buffer_store_dwordx4 {v(Pf,4)}, v{vS}, s[12:15], s16 offen")
    a(f"buffer_store_dwordx4 {v(Pf+4,4)}, v{vS}, s[12:15], s16 offen offset:32")
    a.label("K3_END")
    a("s_endpgm")
    return a.text(), R2.next
```

```python
import sys
sys.path.insert(0, "gen")
from asmlib import *
from k1 import gen_k1, K1_LDS
from k2 import gen_k2, gen_k3, K2_LDS

t1, n1 = gen_k1()
t2, n2 = gen_k2()
t3, n3 = gen_k3()
hdr = open("gated_mix__mha_block__dense_activation_mish__prompt.s.ref").read().split("; Override")[0]
out = hdr
out += f"; @launch kernel=gm_k1_kernel grid=(256,1,1) block=(256,1,1) lds={K1_LDS}\n"
out += f"; @launch kernel=gm_k2_kernel grid=(256,1,1) block=(768,1,1) lds={K2_LDS}\n"
out += f"; @launch kernel=gm_k3_kernel grid=(256,1,1) block=(256,1,1) lds=0\n"
out += '.amdgcn_target "amdgcn-amd-amdhsa--gfx950"\n.text\n'
out += kernel_header("gm_k1_kernel") + t1
out += kernel_header("gm_k2_kernel") + t2
out += kernel_header("gm_k3_kernel") + t3
out += '.section .rodata,"a"\n.p2align 6\n'
out += kernel_desc("gm_k1_kernel", n1)
out += ".p2align 6\n" + kernel_desc("gm_k2_kernel", n2)
out += ".p2align 6\n" + kernel_desc("gm_k3_kernel", n3)
dst = sys.argv[1] if len(sys.argv) > 1 else "gated_mix__mha_block__dense_activation_mish__prompt.s"
open(dst, "w").write(out)
print("vgprs", n1, n2, n3, "bytes", len(out))
```

```python
class Asm:
    def __init__(self):
        self.lines = []
        self.label_n = 0
    def __call__(self, s):
        for l in s.strip("\n").split("\n"):
            self.lines.append("    " + l.strip())
    def label(self, name):
        self.lines.append(name + ":")
    def newlabel(self, p="L"):
        self.label_n += 1
        return f"{p}_{self.label_n}"
    def comment(self, s):
        self.lines.append("    ; " + s)
    def text(self):
        return "\n".join(self.lines) + "\n"

def v(a, n=1):
    return f"v{a}" if n == 1 else f"v[{a}:{a+n-1}]"
def s(a, n=1):
    return f"s{a}" if n == 1 else f"s[{a}:{a+n-1}]"

class RegAlloc:
    def __init__(self, start=0, limit=256):
        self.next = start; self.limit = limit
    def alloc(self, n=1, align=1):
        a = (self.next + align - 1) // align * align
        self.next = a + n
        assert self.next <= self.limit, f"out of regs {self.next}"
        return a

def kernel_header(name):
    return f""".globl {name}
.p2align 8
.type {name},@function
{name}:
"""

def kernel_desc(name, nvgpr, nsgpr=102):
    nacc = 0
    if isinstance(nvgpr, tuple):
        nvgpr, nacc = nvgpr
    off = (nvgpr + 7) // 8 * 8
    nv = off + nacc
    return f""".amdhsa_kernel {name}
  .amdhsa_next_free_vgpr {nv}
  .amdhsa_next_free_sgpr {nsgpr}
  .amdhsa_accum_offset {off}
  .amdhsa_group_segment_fixed_size 0
  .amdhsa_kernarg_size 88
  .amdhsa_user_sgpr_count 2
  .amdhsa_user_sgpr_kernarg_segment_ptr 1
  .amdhsa_system_sgpr_workgroup_id_x 1
.end_amdhsa_kernel
"""

def srd(a, base, base_s, nbytes):
    a(f"s_mov_b32 s{base}, s{base_s}")
    a(f"s_and_b32 s{base+1}, s{base_s+1}, 0xffff")
    a(f"s_mov_b32 s{base+2}, {nbytes}")
    a(f"s_mov_b32 s{base+3}, 0x00020000")
```

```python
from asmlib import *
from layout import *
import struct, os
STAMP = os.environ.get('STAMP') == '1'

XB = 16384
WB = 12288
WQ0 = 3 * XB
WF0 = WQ0 + 3 * WB
K1_LDS = WF0 + 3 * WB
WSTR = 192
QSCALE = 0.25 * 1.4426950408889634

def f2u(f):
    return struct.unpack("<I", struct.pack("<f", f))[0]

def acc_(i, n=1):
    return f"a{i}" if n == 1 else f"a[{i}:{i+n-1}]"

def gen_k1():
    a = Asm()
    R = RegAlloc(4)
    vXg = R.alloc(4)
    vWq = R.alloc(3); vWf = R.alloc(3)
    vXr = R.alloc(4)
    vWrQ = R.alloc(); vWrF = R.alloc()
    vTok = R.alloc()
    vSideA = R.alloc(); vSideB = R.alloc(); vBias = R.alloc()
    vt = [R.alloc() for _ in range(6)]
    stg = [R.alloc(20, 4), R.alloc(24, 4)]
    frag = [R.alloc(28, 4), R.alloc(28, 4)]
    ACC = R.alloc(96, 4)
    nvgpr = R.next
    sideT = stg[0]; sideX = stg[0] + 8; sideW = stg[0] + 16
    biasR = stg[1]
    NACC = 0

    a("s_cmp_ge_u32 s2, 256")
    a("s_cbranch_scc1 K1_END2")
    if STAMP:
        a("s_memtime s[72:73]")
        a("s_load_dwordx2 s[84:85], s[0:1], 72")
    a("s_load_dwordx16 s[36:51], s[0:1], 0")
    a("s_load_dwordx2 s[52:53], s[0:1], 80")
    a("s_and_b32 s3, s2, 15")
    a("s_lshr_b32 s4, s2, 4")
    a("v_lshrrev_b32 v1, 6, v0")
    a("s_nop 0")
    a("v_readfirstlane_b32 s5, v1")
    a("v_and_b32 v1, 63, v0")
    a("v_and_b32 v2, 31, v0")
    a("v_bfe_u32 v3, v0, 5, 1")
    t = vt
    a(f"v_lshrrev_b32 v{t[0]}, 3, v1")
    a(f"v_and_b32 v{t[1]}, 7, v1")
    a(f"v_lshrrev_b32 v{t[2]}, 1, v{t[0]}")
    a("s_lshl_b32 s60, s3, 7")
    a("s_lshl_b32 s61, s5, 5")
    a("s_add_u32 s60, s60, s61")
    a(f"v_add_u32 v{t[3]}, s60, v{t[0]}")
    a(f"v_lshlrev_b32 v{t[3]}, 10, v{t[3]}")
    for i in range(4):
        a(f"v_xor_b32 v{t[4]}, {4*(i&1)}, v{t[2]}")
        a(f"v_xor_b32 v{t[4]}, v{t[4]}, v{t[1]}")
        a(f"v_lshl_add_u32 v{t[4]}, v{t[4]}, 4, v{t[3]}")
        a(f"v_add_u32 v{vXg+i}, {8192*i}, v{t[4]}")
    a("s_mul_i32 s60, s5, 192")
    a("s_mul_i32 s61, s4, 192")
    for i in range(3):
        a(f"v_add_u32 v{t[0]}, s60, v1")
        a(f"v_add_u32 v{t[0]}, {64*i}, v{t[0]}")
        a(f"v_mul_u32_u24 v{t[1]}, 43691, v{t[0]}")
        a(f"v_lshrrev_b32 v{t[1]}, 19, v{t[1]}")
        a(f"v_mul_u32_u24 v{t[2]}, 12, v{t[1]}")
        a(f"v_sub_u32 v{t[2]}, v{t[0]}, v{t[2]}")
        a(f"v_lshlrev_b32 v{t[2]}, 4, v{t[2]}")
        a(f"v_add_u32 v{t[2]}, s61, v{t[2]}")
        a(f"v_mul_u32_u24 v{t[3]}, 3072, v{t[1]}")
        a(f"v_add_u32 v{vWq+i}, v{t[3]}, v{t[2]}")
        a(f"v_mul_u32_u24 v{t[3]}, 2752, v{t[1]}")
        a(f"v_add_u32 v{vWf+i}, v{t[3]}, v{t[2]}")
    a("s_lshl_b32 s67, s5, 12")
    a("s_mul_i32 s65, s5, 3072")
    a("s_waitcnt lgkmcnt(0)")
    srd(a, 8, 36, 2097152)
    srd(a, 12, 38, 1572864)
    srd(a, 16, 44, 1409024)

    def issue_loads(st):
        b = st % 3
        a(f"s_mov_b32 s60, {st*64*3072}")
        a(f"s_mov_b32 s61, {st*64*2752}")
        a(f"s_mov_b32 s62, {st*128}")
        for i in range(4):
            a(f"s_add_u32 m0, s67, {b*XB + i*1024}")
            a("s_nop 0")
            a(f"buffer_load_dwordx4 v{vXg+i}, s[8:11], s62 offen lds")
        for i in range(3):
            a(f"s_add_u32 m0, s65, {WQ0 + b*WB + i*1024}")
            a("s_nop 0")
            a(f"buffer_load_dwordx4 v{vWq+i}, s[12:15], s60 offen lds")
        for i in range(3):
            a(f"s_add_u32 m0, s65, {WF0 + b*WB + i*1024}")
            a("s_nop 0")
            a(f"buffer_load_dwordx4 v{vWf+i}, s[16:19], s61 offen lds")
    issue_loads(0)
    issue_loads(1)

    srd(a, 20, 52, WS_SIZE)
    srd(a, 24, 46, 2752)
    srd(a, 32, 50, 1024)
    a("s_sub_u32 s54, s2, 172")
    a("s_mov_b32 s70, 524288")
    a("s_cmp_lt_u32 s2, 172")
    a("s_cselect_b32 s28, s48, s40")
    a("s_cselect_b32 s29, s49, s41")
    a("s_cselect_b32 s30, 1409024, s70")
    a("s_cselect_b32 s54, s2, s54")
    a("s_and_b32 s29, s29, 0xffff")
    a("s_mov_b32 s31, 0x00020000")
    a("s_lshr_b32 s55, s54, 2")
    a("s_and_b32 s56, s54, 3")
    a(f"v_lshrrev_b32 v{t[0]}, 4, v0")
    a(f"v_and_b32 v{t[1]}, 15, v0")
    a(f"v_lshlrev_b32 v{t[0]}, 10, v{t[0]}")
    a(f"v_lshl_add_u32 v{vSideA}, v{t[1]}, 4, v{t[0]}")
    a("s_lshl_b32 s57, s55, 15")
    a("s_lshl_b32 s58, s56, 8")
    a("s_add_u32 s57, s57, s58")
    a("s_add_u32 s58, s57, 16384")
    a(f"v_lshlrev_b32 v{vSideB}, 4, v1")
    a("s_lshl_b32 s59, s2, 3")
    a("s_lshl_b32 s60, s5, 1")
    a("s_add_u32 s59, s59, s60")
    a("s_lshl_b32 s68, s59, 10")
    a("s_add_u32 s69, s68, 1024")
    a(f"v_lshlrev_b32 v{vBias}, 3, v3")
    a("s_mul_i32 s71, s4, 192")
    a("s_lshl_b32 s60, s5, 5")
    a(f"v_add_u32 v{t[0]}, s60, v2")
    a(f"v_lshlrev_b32 v{t[0]}, 7, v{t[0]}")
    a(f"v_bfe_u32 v{t[1]}, v2, 1, 3")
    for ks in range(4):
        a(f"v_add_u32 v{t[2]}, {2*ks}, v3")
        a(f"v_xor_b32 v{t[2]}, v{t[2]}, v{t[1]}")
        a(f"v_lshl_add_u32 v{vXr+ks}, v{t[2]}, 4, v{t[0]}")
    a(f"v_bfe_u32 v{t[0]}, v0, 2, 2")
    a(f"v_lshl_add_u32 v{t[0]}, v3, 3, v{t[0]}")
    a(f"v_mul_u32_u24 v{t[0]}, {WSTR}, v{t[0]}")
    a(f"v_and_b32 v{t[1]}, 3, v0")
    a(f"v_lshlrev_b32 v{t[1]}, 3, v{t[1]}")
    a(f"v_bfe_u32 v{t[2]}, v0, 4, 1")
    a(f"v_lshl_add_u32 v{t[1]}, v{t[2]}, 5, v{t[1]}")
    a(f"v_add_u32 v{t[0]}, v{t[0]}, v{t[1]}")
    a(f"v_add_u32 v{vWrQ}, {WQ0}, v{t[0]}")
    a(f"v_add_u32 v{vWrF}, {WF0}, v{t[0]}")
    a("s_lshl_b32 s60, s3, 7")
    a("s_lshl_b32 s61, s5, 5")
    a("s_add_u32 s66, s60, s61")
    a(f"v_add_u32 v{vTok}, s66, v2")
    a("s_mov_b32 s80, 2.0")
    a("s_mov_b32 s81, 2.0")
    a("s_mov_b32 s82, 0x3fb8aa3b")
    a("s_mov_b32 s83, 0x3fb8aa3b")

    def read_ops(j):
        st, ks = j // 4, j % 4
        b = st % 3; f = frag[j % 2]
        ops = [f"ds_read_b128 {v(f+24,4)}, v{vXr+ks} offset:{b*XB}"]
        for ft in range(6):
            base = vWrQ if ft < 3 else vWrF
            for half in range(2):
                ops.append(f"ds_read_b64_tr_b16 {v(f+4*ft+2*half,2)}, v{base} offset:{b*WB + ks*16*WSTR + half*4*WSTR + (ft%3)*64}")
        return ops
    def mfma_ops(j):
        f = frag[j % 2]
        ops = []
        for ft in range(6):
            d = ACC + 16 * ft
            c = "0" if j == 0 else v(d, 16)
            ops.append(f"v_mfma_f32_32x32x16_bf16 {v(d,16)}, {v(f+4*ft,4)}, {v(f+24,4)}, {c}")
        return ops

    a("s_waitcnt vmcnt(10)")
    a("s_barrier")
    if STAMP: a("s_memtime s[74:75]")
    for o in read_ops(0): a(o)
    for j in range(32):
        st, ks = j // 4, j % 4
        a("s_waitcnt lgkmcnt(0)")
        other = []
        if ks == 3 and st < 7:
            a(f"s_waitcnt vmcnt({10 if st + 2 <= 7 else 0})")
            a("s_barrier")
        if j < 31:
            other += read_ops(j + 1)
        if ks == 0 and st + 2 <= 7:
            issue_loads(st + 2)
        if j == 28:
            a(f"buffer_load_dwordx4 {v(sideT,4)}, v{vSideA}, s[28:31], s57 offen")
            a(f"buffer_load_dwordx4 {v(sideT+4,4)}, v{vSideA}, s[28:31], s58 offen")
            a(f"buffer_load_dwordx4 {v(sideX,4)}, v{vSideB}, s[8:11], s68 offen")
            a(f"buffer_load_dwordx4 {v(sideX+4,4)}, v{vSideB}, s[8:11], s69 offen")
            a(f"buffer_load_dwordx4 {v(sideW,4)}, v{vSideB}, s[32:35], 0 offen")
            for jf in range(3):
                for q in range(4):
                    a(f"buffer_load_dwordx2 {v(biasR+8*jf+2*q,2)}, v{vBias}, s[24:27], s71 offen offset:{64*jf+16*q}")
        m = mfma_ops(j)
        per = (len(other) + 5) // 6
        oi = 0
        for k in range(6):
            a(m[k])
            for _ in range(per):
                if oi < len(other):
                    a(other[oi]); oi += 1
    if STAMP: a("s_memtime s[76:77]")
    TS = 320
    a("s_barrier")
    a(f"v_lshrrev_b32 v{t[0]}, 4, v0")
    a(f"v_and_b32 v{t[1]}, 15, v0")
    a(f"v_mul_u32_u24 v{t[0]}, {TS}, v{t[0]}")
    a(f"v_lshl_add_u32 v{t[0]}, v{t[1]}, 4, v{t[0]}")
    a("s_waitcnt vmcnt(15)")
    a(f"ds_write_b128 v{t[0]}, {v(sideT,4)}")
    a(f"ds_write_b128 v{t[0]}, {v(sideT+4,4)} offset:{16*TS}")
    a("s_nop 15")
    tmp = frag[0]
    P = tmp; T = tmp + 8; U = tmp + 24; BU = tmp + 40
    vA = vt[0]

    def qkv_tile(ft):
        a(f"s_mul_i32 s60, s4, 3")
        a(f"s_add_u32 s60, s60, {ft}")
        a("s_lshr_b32 s61, s60, 4")
        a("s_and_b32 s62, s60, 15")
        a("s_lshl_b32 s63, s61, 21")
        a("s_lshl_b32 s62, s62, 17")
        a("s_add_u32 s63, s63, s62")
        a("s_add_u32 s64, s63, 65536")
        a("s_cmp_eq_u32 s61, 0")
        a(f"s_cselect_b32 s86, {f2u(QSCALE)}, 1.0")
        a(f"s_cselect_b32 s87, {f2u(QSCALE)}, 1.0")
        D = ACC + 16 * ft
        for i in range(8):
            a(f"v_pk_mul_f32 {v(D+2*i,2)}, {v(D+2*i,2)}, s[86:87]")
        for i in range(8):
            a(f"v_cvt_pk_bf16_f32 v{P+i}, v{D+2*i}, v{D+2*i+1}")
        a(f"v_lshlrev_b32 v{vA}, 5, v{vTok}")
        a(f"v_lshl_add_u32 v{vA}, v3, 4, v{vA}")
        a(f"v_permlane32_swap_b32 v{P+0}, v{P+2}")
        a(f"v_permlane32_swap_b32 v{P+1}, v{P+3}")
        a(f"v_permlane32_swap_b32 v{P+4}, v{P+6}")
        a("s_nop 0")
        a(f"v_permlane32_swap_b32 v{P+5}, v{P+7}")
        a("s_nop 1")
        a(f"buffer_store_dwordx4 {v(P,4)}, v{vA}, s[20:23], s63 offen")
        a(f"buffer_store_dwordx4 {v(P+4,4)}, v{vA}, s[20:23], s64 offen")
        a("s_nop 1")

    def ffn_tile(jf):
        ft = 3 + jf
        lab = a.newlabel("K1_SKIPF")
        a(f"s_mul_i32 s60, s4, 3")
        a(f"s_add_u32 s60, s60, {jf}")
        a("s_cmp_ge_u32 s60, 43")
        a(f"s_cbranch_scc1 {lab}")
        a("s_lshl_b32 s62, s60, 11")
        a(f"s_add_u32 s61, s62, {WS_ACT}")
        for q in range(8):
            a(f"v_lshlrev_b32 v{BU+2*q}, 16, v{biasR+8*jf+q}")
            a(f"v_and_b32 v{BU+2*q+1}, 0xffff0000, v{biasR+8*jf+q}")
        D = ACC + 16 * ft
        for i in range(8):
            a(f"v_pk_add_f32 {v(D+2*i,2)}, {v(D+2*i,2)}, {v(BU+2*i,2)}")
        for i in range(16):
            a(f"v_min_f32 v{T+i}, 0x41a00000, v{D+i}")
        for i in range(8):
            a(f"v_pk_mul_f32 {v(T+2*i,2)}, {v(T+2*i,2)}, s[82:83]")
        for i in range(16):
            a(f"v_exp_f32 v{T+i}, v{T+i}")
        for i in range(8):
            a(f"v_pk_add_f32 {v(U+2*i,2)}, {v(T+2*i,2)}, s[80:81]")
        for i in range(8):
            a(f"v_pk_mul_f32 {v(T+2*i,2)}, {v(T+2*i,2)}, {v(U+2*i,2)}")
        for i in range(8):
            a(f"v_pk_add_f32 {v(U+2*i,2)}, {v(T+2*i,2)}, s[80:81]")
        for i in range(16):
            a(f"v_rcp_f32 v{U+i}, v{U+i}")
        for i in range(8):
            a(f"v_pk_mul_f32 {v(T+2*i,2)}, {v(T+2*i,2)}, {v(U+2*i,2)}")
        for i in range(8):
            a(f"v_pk_mul_f32 {v(D+2*i,2)}, {v(D+2*i,2)}, {v(T+2*i,2)}")
        for i in range(8):
            a(f"v_cvt_pk_bf16_f32 v{P+i}, v{D+2*i}, v{D+2*i+1}")
        a(f"s_lshr_b32 s62, s66, 5")
        a(f"s_mul_i32 s62, s62, {86*1024}")
        a("s_add_u32 s61, s61, s62")
        a(f"v_permlane32_swap_b32 v{P+0}, v{P+2}")
        a(f"v_permlane32_swap_b32 v{P+1}, v{P+3}")
        a(f"v_permlane32_swap_b32 v{P+4}, v{P+6}")
        a(f"v_permlane32_swap_b32 v{P+5}, v{P+7}")
        a("s_nop 1")
        a(f"buffer_store_dwordx4 {v(P,4)}, v{vSideB}, s[20:23], s61 offen")
        a(f"buffer_store_dwordx4 {v(P+4,4)}, v{vSideB}, s[20:23], s61 offen offset:1024")
        a("s_nop 1")
        a.label(lab)

    for ft in range(3):
        qkv_tile(ft)
    a("s_waitcnt vmcnt(6)")
    for jf in range(3):
        ffn_tile(jf)
    if STAMP: a("s_memtime s[78:79]")

    G = tmp
    for i in range(4):
        a(f"v_lshlrev_b32 v{G+2*i}, 16, v{sideW+i}")
        a(f"v_and_b32 v{G+2*i+1}, 0xffff0000, v{sideW+i}")
    S = [vt[2], vt[3]]
    for tk in range(2):
        X = G + 8
        for i in range(4):
            a(f"v_lshlrev_b32 v{X+2*i}, 16, v{sideX+4*tk+i}")
            a(f"v_and_b32 v{X+2*i+1}, 0xffff0000, v{sideX+4*tk+i}")
        for i in range(8):
            a(f"v_mul_f32 v{X+i}, v{X+i}, v{G+i}")
        for i in range(4):
            a(f"v_cvt_pk_bf16_f32 v{X+8+i}, v{X+2*i}, v{X+2*i+1}")
        for i in range(4):
            a(f"v_lshlrev_b32 v{X+2*i}, 16, v{X+8+i}")
            a(f"v_and_b32 v{X+2*i+1}, 0xffff0000, v{X+8+i}")
        a(f"v_add_f32 v{X}, v{X}, v{X+1}")
        a(f"v_add_f32 v{X+2}, v{X+2}, v{X+3}")
        a(f"v_add_f32 v{X+4}, v{X+4}, v{X+5}")
        a(f"v_add_f32 v{X+6}, v{X+6}, v{X+7}")
        a(f"v_add_f32 v{X}, v{X}, v{X+2}")
        a(f"v_add_f32 v{X+4}, v{X+4}, v{X+6}")
        a(f"v_add_f32 v{S[tk]}, v{X}, v{X+4}")
    for ctl in ("row_shr:1 row_mask:0xf bank_mask:0xf bound_ctrl:0", "row_shr:2 row_mask:0xf bank_mask:0xf bound_ctrl:0",
                "row_shr:4 row_mask:0xf bank_mask:0xf bound_ctrl:0", "row_shr:8 row_mask:0xf bank_mask:0xf bound_ctrl:0",
                "row_bcast:15 row_mask:0xa bank_mask:0xf", "row_bcast:31 row_mask:0xc bank_mask:0xf"):
        a("s_nop 1")
        a(f"v_add_f32_dpp v{S[0]}, v{S[0]}, v{S[0]} {ctl}")
        a(f"v_add_f32_dpp v{S[1]}, v{S[1]}, v{S[1]} {ctl}")
    a(f"v_cvt_pk_bf16_f32 v{G}, v{S[0]}, v{S[1]}")
    a(f"v_lshlrev_b32 v{G+1}, 16, v{G}")
    a(f"v_and_b32 v{G+2}, 0xffff0000, v{G}")
    for i in (1, 2):
        a(f"v_mul_f32 v{G+i}, 0xbfb8aa3b, v{G+i}")
    for i in (1, 2):
        a(f"v_exp_f32 v{G+i}, v{G+i}")
    a("s_nop 0")
    for i in (1, 2):
        a(f"v_add_f32 v{G+i}, 1.0, v{G+i}")
    for i in (1, 2):
        a(f"v_rcp_f32 v{G+i}, v{G+i}")
    a("s_nop 0")
    a(f"v_cvt_pk_bf16_f32 v{G}, v{G+1}, v{G+2}")
    a(f"v_lshlrev_b32 v{G+4}, 16, v{G}")
    a(f"v_and_b32 v{G+5}, 0xffff0000, v{G}")
    a(f"v_sub_f32 v{G+6}, 1.0, v{G+4}")
    a(f"v_sub_f32 v{G+7}, 1.0, v{G+5}")
    a(f"v_cvt_pk_bf16_f32 v{G}, v{G+6}, v{G+7}")
    a(f"v_lshlrev_b32 v{G+6}, 16, v{G}")
    a(f"v_and_b32 v{G+7}, 0xffff0000, v{G}")
    a("s_lshl_b32 s60, s59, 2")
    a(f"s_add_u32 s61, s60, {WS_OMG}")
    a(f"s_add_u32 s60, s60, {WS_G}")
    a(f"v_mov_b32 v{vt[4]}, 0")
    a("v_cmp_eq_u32 vcc, 63, v1")
    a("s_and_saveexec_b64 s[88:89], vcc")
    a(f"buffer_store_dwordx2 {v(G+4,2)}, v{vt[4]}, s[20:23], s60 offen")
    a(f"buffer_store_dwordx2 {v(G+6,2)}, v{vt[4]}, s[20:23], s61 offen")
    a("s_lshl_b32 s60, s2, 2")
    a(f"s_add_u32 s60, s60, {WS_FLAG}")
    a(f"buffer_store_dword v{vt[4]}, v{vt[4]}, s[20:23], s60 offen")
    a("s_mov_b64 exec, s[88:89]")

    a("s_waitcnt lgkmcnt(0)")
    a("s_barrier")
    a("s_cmp_ge_u32 s2, 236")
    a("s_cbranch_scc1 K1_END")
    TT = tmp + 16
    a(f"v_bfe_u32 v{t[0]}, v0, 2, 2")
    a(f"v_lshl_add_u32 v{t[0]}, v3, 3, v{t[0]}")
    a(f"v_mul_u32_u24 v{t[0]}, {TS}, v{t[0]}")
    a(f"v_and_b32 v{t[1]}, 3, v0")
    a(f"v_lshlrev_b32 v{t[1]}, 3, v{t[1]}")
    a(f"v_bfe_u32 v{t[2]}, v0, 4, 1")
    a(f"v_lshl_add_u32 v{t[1]}, v{t[2]}, 5, v{t[1]}")
    a(f"v_add_u32 v{t[0]}, v{t[0]}, v{t[1]}")
    a("s_lshl_b32 s60, s5, 6")
    a(f"v_add_u32 v{t[0]}, s60, v{t[0]}")
    for i in range(2):
        for half in range(2):
            a(f"ds_read_b64_tr_b16 {v(TT+4*i+2*half,2)}, v{t[0]} offset:{i*16*TS + half*4*TS}")
    a(f"s_mov_b32 s71, {WS_WOT}")
    a("s_cmp_lt_u32 s2, 172")
    a("s_cselect_b32 s61, 86, 32")
    a(f"s_cselect_b32 s62, {WS_W2T}, s71")
    a("s_lshl_b32 s63, s56, 2")
    a("s_add_u32 s63, s63, s5")
    a("s_mul_i32 s63, s63, s61")
    a("s_lshl_b32 s64, s55, 1")
    a("s_add_u32 s63, s63, s64")
    a("s_lshl_b32 s63, s63, 10")
    a("s_add_u32 s62, s62, s63")
    a("s_waitcnt lgkmcnt(0)")
    a(f"buffer_store_dwordx4 {v(TT,4)}, v{vSideB}, s[20:23], s62 offen")
    a(f"buffer_store_dwordx4 {v(TT+4,4)}, v{vSideB}, s[20:23], s62 offen offset:1024")
    a.label("K1_END")
    if STAMP:
        a("s_waitcnt vmcnt(0)")
        a("s_memtime s[90:91]")
        a("s_waitcnt lgkmcnt(0)")
        a("s_and_b32 s86, s2, 0x7f")
        a("s_cmp_lg_u32 s86, 5")
        a("s_cbranch_scc1 K1_END2")
        a("s_sub_u32 s74, s74, s72")
        a("s_sub_u32 s76, s76, s72")
        a("s_sub_u32 s78, s78, s72")
        a("s_sub_u32 s90, s90, s72")
        a("v_mov_b32 v4, s74")
        a("v_mov_b32 v5, s76")
        a("v_mov_b32 v6, s78")
        a("v_mov_b32 v7, s90")
        a("s_lshr_b32 s86, s2, 7")
        a("s_lshl_b32 s86, s86, 6")
        a("s_lshl_b32 s87, s5, 4")
        a("s_add_u32 s86, s86, s87")
        a("v_mov_b32 v8, s86")
        a("global_store_dwordx4 v8, v[4:7], s[84:85]")
    a.label("K1_END2")
    a("s_endpgm")
    return a.text(), (nvgpr, NACC)
```

```python
from asmlib import *
from layout import *
import os
STAMP = os.environ.get('STAMP') == '1'
PRIO_SWITCH = int(os.environ.get('PRIO_SWITCH', '5'))
KMAX_ADDR = 131072 + 8192
K2_LDS = KMAX_ADDR + 256

def direct_gemm(a, vA, vB, nsteps, D, base, acc, srd_="s[8:11]", nv_slots=None):
    def reg(sl, off):
        if nv_slots is not None and sl >= nv_slots:
            b = 8 * (sl - nv_slots) + off
            return f"a[{b}:{b+3}]"
        return v(base + 8 * sl + off, 4)
    def issue(j):
        sl = j % D
        if j % 4 == 0:
            a(f"s_mov_b32 s40, {(j//4)*4096}")
        a(f"buffer_load_dwordx4 {reg(sl,0)}, v{vA}, {srd_}, s40 offen offset:{(j%4)*1024}")
        a(f"buffer_load_dwordx4 {reg(sl,4)}, v{vB}, {srd_}, s40 offen offset:{(j%4)*1024}")
    for j in range(min(D, nsteps)):
        issue(j)
    for j in range(nsteps):
        out = min(D, nsteps - j) - 1
        a(f"s_waitcnt vmcnt({min(63, 2*out)})")
        sl = j % D
        c = "0" if j == 0 else v(acc, 16)
        a(f"v_mfma_f32_32x32x16_bf16 {v(acc,16)}, {reg(sl,0)}, {reg(sl,4)}, {c}")
        if j + D < nsteps:
            issue(j + D)

def stamp_end(a):
    if not STAMP: return
    a("s_waitcnt vmcnt(0)")
    a("s_memtime s[78:79]")
    a("s_memrealtime s[92:93]")
    a("s_waitcnt lgkmcnt(0)")
    a("v_mov_b32 v4, s90")
    a("v_mov_b32 v5, s92")
    a("s_lshl_b32 s87, s2, 4")
    a("s_add_u32 s87, s87, s88")
    a("s_lshl_b32 s87, s87, 3")
    a("s_add_u32 s87, s87, 0x1400000")
    a("v_mov_b32 v8, 0")
    a("buffer_store_dwordx2 v[4:5], v8, s[8:11], s87 offen")
    a("s_cmp_lg_u32 s2, 5")
    a("s_cbranch_scc1 K2_END")
    a("s_sub_u32 s74, s74, s72")
    a("s_sub_u32 s76, s76, s72")
    a("s_sub_u32 s78, s78, s72")
    a("v_mov_b32 v4, s74")
    a("v_mov_b32 v5, s76")
    a("v_mov_b32 v6, s78")
    a("v_mov_b32 v7, 0")
    a("s_lshl_b32 s87, s88, 4")
    a("v_mov_b32 v8, s87")
    a("global_store_dwordx4 v8, v[4:7], s[84:85]")

def gen_k2():
    a = Asm()
    R = RegAlloc(4)
    vQ = R.alloc(4, 4)
    vKa = R.alloc(); vVa = R.alloc(); vVinc = R.alloc()
    vKa0 = R.alloc(); vVa0 = R.alloc()
    vt = [R.alloc() for _ in range(6)]
    mA = R.alloc(); mB = R.alloc()
    KF = [R.alloc(4, 4) for _ in range(4)]
    S = [R.alloc(16, 4) for _ in range(4)]
    C = R.alloc(16, 4)
    P = [R.alloc(8, 4) for _ in range(2)]
    VF = [R.alloc(8, 4) for _ in range(2)]
    O = R.alloc(16, 4)
    nv_att = R.next

    a("s_cmp_ge_u32 s2, 256")
    a("s_cbranch_scc1 K2_END")
    if STAMP:
        a("s_memtime s[72:73]")
        a("s_memrealtime s[90:91]")
        a("s_load_dwordx2 s[84:85], s[0:1], 72")
    a("s_load_dwordx2 s[52:53], s[0:1], 80")
    a("v_lshrrev_b32 v1, 6, v0")
    a("s_nop 0")
    a("v_readfirstlane_b32 s5, v1")
    a("v_and_b32 v1, 63, v0")
    a("v_and_b32 v2, 31, v0")
    a("v_bfe_u32 v3, v0, 5, 1")
    a("s_waitcnt lgkmcnt(0)")
    srd(a, 8, 52, WS_SIZE)
    if STAMP: a("s_mov_b32 s88, s5")
    a("s_cmp_ge_u32 s5, 8")
    a("s_cbranch_scc1 K2_FFN")
    a("s_and_b32 s3, s2, 7")
    a("s_lshl_b32 s3, s3, 2")
    a("s_lshr_b32 s4, s2, 6")
    a("s_add_u32 s3, s3, s4")
    a("s_lshr_b32 s4, s2, 3")
    a("s_and_b32 s4, s4, 7")
    a("s_lshl_b32 s6, s3, 16")
    t = vt
    a(f"v_lshlrev_b32 v{t[0]}, 4, v0")
    stgK = S[0]; stgV = S[2]
    for i in range(8):
        a(f"s_add_u32 s7, s6, {WS_K + i*8192}")
        a(f"buffer_load_dwordx4 {v(stgK+4*i,4)}, v{t[0]}, s[8:11], s7 offen")
    a("s_lshl_b32 s12, s4, 8")
    a("s_lshl_b32 s13, s5, 5")
    a("s_add_u32 s12, s12, s13")
    a(f"v_add_u32 v{t[1]}, s12, v2")
    a(f"v_lshlrev_b32 v{t[2]}, 5, v{t[1]}")
    a(f"v_lshl_add_u32 v{t[2]}, v3, 4, v{t[2]}")
    a(f"s_add_u32 s7, s6, {WS_Q}")
    a(f"buffer_load_dwordx4 {v(vQ,4)}, v{t[2]}, s[8:11], s7 offen")
    for i in range(8):
        a(f"s_add_u32 s7, s6, {WS_V + i*8192}")
        a(f"buffer_load_dwordx4 {v(stgV+4*i,4)}, v{t[0]}, s[8:11], s7 offen")
    for i in range(4):
        a(f"v_mov_b32 v{C+i}, 0x3f803f80")
    a(f"v_add_u32 v{t[3]}, 131072, v{t[0]}")
    a(f"ds_write_b128 v{t[3]}, {v(C,4)}")
    a(f"v_mov_b32 v{t[4]}, {KMAX_ADDR}")
    a(f"v_mov_b32 v{t[5]}, 0")
    a(f"ds_write_b32 v{t[4]}, v{t[5]}")
    a("s_waitcnt lgkmcnt(0)")
    a("s_barrier")
    a(f"v_add_u32 v{t[3]}, 65536, v{t[0]}")
    a("s_waitcnt vmcnt(9)")
    for i in range(8):
        a(f"ds_write_b128 v{t[0]}, {v(stgK+4*i,4)} offset:{i*8192}")
    N = P[0]
    N2 = P[1]
    for i in range(8):
        a(f"v_dot2_f32_bf16 v{N+i}, v{stgK+4*i}, v{stgK+4*i}, 0")
    for r in range(1, 4):
        for i in range(8):
            a(f"v_dot2_f32_bf16 v{N+i}, v{stgK+4*i+r}, v{stgK+4*i+r}, v{N+i}")
    a("s_nop 3")
    for i in range(8):
        a(f"v_add_f32_dpp v{N2+i}, v{N+i}, v{N+i} quad_perm:[1,0,3,2] row_mask:0xf bank_mask:0xf")
    a(f"v_max3_f32 v{N}, v{N2}, v{N2+1}, v{N2+2}")
    a(f"v_max3_f32 v{N+1}, v{N2+3}, v{N2+4}, v{N2+5}")
    a(f"v_max3_f32 v{N}, v{N}, v{N2+6}, v{N2+7}")
    a(f"v_max_f32 v{N}, v{N}, v{N+1}")
    for ctl in ("row_shr:1 row_mask:0xf", "row_shr:2 row_mask:0xf", "row_shr:4 row_mask:0xf", "row_shr:8 row_mask:0xf",
                "row_bcast:15 row_mask:0xa", "row_bcast:31 row_mask:0xc"):
        a("s_nop 1")
        a(f"v_max_f32_dpp v{N}, v{N}, v{N} {ctl} bank_mask:0xf")
    a("v_cmp_eq_u32 vcc, 63, v1")
    a("s_and_saveexec_b64 s[14:15], vcc")
    a(f"ds_max_u32 v{t[4]}, v{N}")
    a("s_mov_b64 exec, s[14:15]")
    a("s_waitcnt vmcnt(0)")
    for i in range(8):
        a(f"ds_write_b128 v{t[3]}, {v(stgV+4*i,4)} offset:{i*8192}")
    a(f"v_lshlrev_b32 v{vKa0}, 5, v2")
    a(f"v_lshl_add_u32 v{vKa0}, v3, 4, v{vKa0}")
    a(f"v_bfe_u32 v{t[1]}, v0, 2, 2")
    a(f"v_lshl_add_u32 v{t[1]}, v3, 2, v{t[1]}")
    a(f"v_lshlrev_b32 v{t[1]}, 5, v{t[1]}")
    a(f"v_and_b32 v{t[2]}, 3, v0")
    a(f"v_lshl_add_u32 v{t[1]}, v{t[2]}, 3, v{t[1]}")
    a(f"v_add_u32 v{t[1]}, 65536, v{t[1]}")
    a(f"v_and_b32 v{t[2]}, 15, v0")
    a(f"v_lshlrev_b32 v{t[2]}, 3, v{t[2]}")
    a(f"v_add_u32 v{t[2]}, 131072, v{t[2]}")
    a(f"v_bfe_u32 v{t[3]}, v0, 4, 1")
    a(f"v_cmp_eq_u32 vcc, 1, v{t[3]}")
    a(f"v_mov_b32 v{mA}, 4096")
    a(f"v_mov_b32 v{mB}, 0")
    a("s_nop 1")
    a(f"v_cndmask_b32 v{vVa0}, v{t[1]}, v{t[2]}, vcc")
    a(f"v_cndmask_b32 v{vVinc}, v{mA}, v{mB}, vcc")
    a(f"v_dot2_f32_bf16 v{mA}, v{vQ}, v{vQ}, 0")
    for r in range(1, 4):
        a(f"v_dot2_f32_bf16 v{mA}, v{vQ+r}, v{vQ+r}, v{mA}")
    a("s_nop 3")
    a(f"v_mov_b32 v{mB}, v{mA}")
    a("s_nop 1")
    a(f"v_permlane32_swap_b32 v{mA}, v{mB}")
    a("s_nop 1")
    a(f"v_add_f32 v{mA}, v{mA}, v{mB}")
    a("s_waitcnt lgkmcnt(0)")
    a("s_barrier")
    if STAMP: a("s_memtime s[74:75]")
    a(f"ds_read_b32 v{mB}, v{t[4]}")
    a("s_cmp_lt_u32 s5, 4")
    a("s_cbranch_scc1 K2_NOPRIO")
    a("s_setprio 1")
    a.label("K2_NOPRIO")
    a("s_waitcnt lgkmcnt(0)")
    a(f"v_mul_f32 v{mA}, v{mA}, v{mB}")
    a(f"v_sqrt_f32 v{mA}, v{mA}")
    a("s_nop 0")
    a(f"v_mul_f32 v{mA}, 0xbf802000, v{mA}")
    for i in range(16):
        a(f"v_mov_b32 v{C+i}, v{mA}")
    a("s_mov_b32 s17, 0")
    if STAMP: a("s_memtime s[76:77]")
    def kread(slot, tile_off):
        return f"ds_read_b128 {v(KF[slot],4)}, v{vKa} offset:{tile_off*1024}"
    def vreads(slot, tile_off):
        return [f"ds_read_b64_tr_b16 {v(VF[slot]+2*q,2)}, v{vVa} offset:{tile_off*1024 + (q//2)*512 + (q%2)*256}" for q in range(4)]
    a.label("K2_P2_ENTRY")
    a(f"v_mov_b32 v{vKa}, v{vKa0}")
    a(f"v_mov_b32 v{vVa}, v{vVa0}")
    for T in range(3):
        a(kread(T, T))
    for o in vreads(0, 0): a(o)
    a("s_waitcnt lgkmcnt(5)")
    a(f"v_mfma_f32_32x32x16_bf16 {v(S[0],16)}, {v(KF[0],4)}, {v(vQ,4)}, {v(C,16)}")
    a(f"v_mfma_f32_32x32x16_bf16 {v(S[1],16)}, {v(KF[1],4)}, {v(vQ,4)}, {v(C,16)}")
    for i in range(16):
        a(f"v_mov_b32 v{O+i}, 0")
    a("s_mov_b32 s16, 16")
    a.label("K2_P2")
    for u in range(4):
        a(kread((u + 3) % 4, u + 3))
        for o in vreads((u + 1) % 2, u + 1): a(o)
        a("s_waitcnt lgkmcnt(5)")
        a(f"v_mfma_f32_32x32x16_bf16 {v(S[(u+2)%4],16)}, {v(KF[(u+2)%4],4)}, {v(vQ,4)}, {v(C,16)}")
        for i in range(16):
            a(f"v_exp_f32 v{S[u]+i}, v{S[u]+i}")
        for i in range(8):
            a(f"v_cvt_pk_bf16_f32 v{P[u%2]+i}, v{S[u]+2*i}, v{S[u]+2*i+1}")
        a("s_nop 1")
        a(f"v_mfma_f32_32x32x16_bf16 {v(O,16)}, {v(VF[u%2],4)}, {v(P[u%2],4)}, {v(O,16)}")
        a(f"v_mfma_f32_32x32x16_bf16 {v(O,16)}, {v(VF[u%2]+4,4)}, {v(P[u%2]+4,4)}, {v(O,16)}")
    a(f"v_add_u32 v{vKa}, 4096, v{vKa}")
    a(f"v_add_u32 v{vVa}, v{vVinc}, v{vVa}")
    a("s_sub_u32 s16, s16, 1")
    a(f"s_cmp_lg_u32 s16, {PRIO_SWITCH}")
    a("s_cbranch_scc1 K2_P2B")
    a("s_setprio 0")
    a.label("K2_P2B")
    a("s_cmp_lg_u32 s16, 0")
    a("s_cbranch_scc1 K2_P2")
    a("s_waitcnt lgkmcnt(0)")
    a("s_nop 15")
    a("s_nop 7")
    a("s_cmp_lg_u32 s17, 0")
    a("s_cbranch_scc1 K2_FIN")
    a(f"v_mov_b32 v{t[0]}, 0x12800000")
    a(f"v_cmp_nge_f32 vcc, v{O+8}, v{t[0]}")
    a("s_nop 4")
    a("s_cmp_eq_u64 vcc, 0")
    a("s_cbranch_scc1 K2_FIN")
    a("s_mov_b32 s17, 1")
    a(f"v_mov_b32 v{vKa}, v{vKa0}")
    a(f"v_mov_b32 v{mA}, 0xff800000")
    a(f"v_mov_b32 v{mB}, 0xff800000")
    for T in range(3):
        a(kread(T, T))
    a("s_waitcnt lgkmcnt(1)")
    a(f"v_mfma_f32_32x32x16_bf16 {v(S[0],16)}, {v(KF[0],4)}, {v(vQ,4)}, 0")
    a(f"v_mfma_f32_32x32x16_bf16 {v(S[1],16)}, {v(KF[1],4)}, {v(vQ,4)}, 0")
    a("s_mov_b32 s16, 16")
    a.label("K2_P1")
    for u in range(4):
        a(kread((u + 3) % 4, u + 3))
        a("s_waitcnt lgkmcnt(1)")
        a(f"v_mfma_f32_32x32x16_bf16 {v(S[(u+2)%4],16)}, {v(KF[(u+2)%4],4)}, {v(vQ,4)}, 0")
        for i in range(8):
            m = mA if i % 2 == 0 else mB
            a(f"v_max3_f32 v{m}, v{S[u]+2*i}, v{S[u]+2*i+1}, v{m}")
    a(f"v_add_u32 v{vKa}, 4096, v{vKa}")
    a("s_sub_u32 s16, s16, 1")
    a("s_cmp_lg_u32 s16, 0")
    a("s_cbranch_scc1 K2_P1")
    a(f"v_max_f32 v{mA}, v{mA}, v{mB}")
    a("s_nop 1")
    a(f"v_mov_b32 v{mB}, v{mA}")
    a("s_nop 1")
    a(f"v_permlane32_swap_b32 v{mA}, v{mB}")
    a("s_nop 1")
    a(f"v_max_f32 v{mA}, v{mA}, v{mB}")
    a("s_waitcnt lgkmcnt(0)")
    a("s_nop 15")
    for i in range(16):
        a(f"v_sub_f32 v{C+i}, 0, v{mA}")
    a("s_nop 7")
    a("s_branch K2_P2_ENTRY")
    a.label("K2_FIN")
    a(f"v_rcp_f32 v{t[0]}, v{O+8}")
    a("s_nop 1")
    for i in range(8):
        a(f"v_mul_f32 v{O+i}, v{O+i}, v{t[0]}")
    Pp = P[0]
    for i in range(4):
        a(f"v_cvt_pk_bf16_f32 v{Pp+i}, v{O+2*i}, v{O+2*i+1}")
    a(f"v_lshlrev_b32 v{t[1]}, 4, v1")
    a("s_lshr_b32 s7, s12, 5")
    a("s_lshl_b32 s7, s7, 5")
    a("s_add_u32 s7, s7, s3")
    a("s_lshl_b32 s7, s7, 10")
    a(f"s_add_u32 s7, s7, {WS_O}")
    a(f"v_permlane32_swap_b32 v{Pp+0}, v{Pp+2}")
    a(f"v_permlane32_swap_b32 v{Pp+1}, v{Pp+3}")
    a("s_nop 1")
    a(f"buffer_store_dwordx4 {v(Pp,4)}, v{t[1]}, s[8:11], s7 offen")
    stamp_end(a)
    a("s_endpgm")

    a.label("K2_FFN")
    R2 = RegAlloc(4)
    vA = R2.alloc(); vB = R2.alloc(); vG = R2.alloc(); vS = R2.alloc()
    facc = R2.alloc(16, 4)
    Pf = R2.alloc(8, 4)
    D = 8
    slots = R2.alloc(8 * D, 4)
    a("s_barrier")
    a("s_barrier")
    if STAMP:
        a("s_memtime s[74:75]")
        a("s_memtime s[76:77]")
    a("s_sub_u32 s5, s5, 8")
    a("s_lshr_b32 s3, s2, 3")
    a("s_and_b32 s4, s2, 7")
    a("s_lshl_b32 s3, s3, 6")
    a("s_and_b32 s6, s5, 1")
    a("s_lshl_b32 s6, s6, 5")
    a("s_add_u32 s3, s3, s6")
    a("s_lshl_b32 s4, s4, 6")
    a("s_lshr_b32 s6, s5, 1")
    a("s_lshl_b32 s6, s6, 5")
    a("s_add_u32 s4, s4, s6")
    a("s_lshr_b32 s6, s4, 5")
    a(f"s_mul_i32 s6, s6, {86*1024}")
    a(f"s_add_u32 s6, s6, {WS_W2T}")
    a(f"v_lshlrev_b32 v{vA}, 4, v1")
    a(f"v_add_u32 v{vA}, s6, v{vA}")
    a(f"v_add_u32 v{vS}, s3, v2")
    a("s_lshr_b32 s6, s3, 5")
    a(f"s_mul_i32 s6, s6, {86*1024}")
    a(f"s_add_u32 s6, s6, {WS_ACT}")
    a(f"v_lshlrev_b32 v{vB}, 4, v1")
    a(f"v_add_u32 v{vB}, s6, v{vB}")
    a(f"v_lshlrev_b32 v{vG}, 2, v{vS}")
    a(f"s_mov_b32 s7, {WS_OMG}")
    a(f"buffer_load_dword v{vG}, v{vG}, s[8:11], s7 offen")
    direct_gemm(a, vA, vB, 86, D, slots, facc)
    a("s_nop 15")
    a("s_nop 7")
    for i in range(8):
        a(f"v_cvt_pk_bf16_f32 v{Pf+i}, v{facc+2*i}, v{facc+2*i+1}")
    for i in range(8):
        a(f"v_lshlrev_b32 v{facc+2*i}, 16, v{Pf+i}")
        a(f"v_and_b32 v{facc+2*i+1}, 0xffff0000, v{Pf+i}")
    for i in range(16):
        a(f"v_mul_f32 v{facc+i}, v{facc+i}, v{vG}")
    for i in range(8):
        a(f"v_cvt_pk_bf16_f32 v{Pf+i}, v{facc+2*i}, v{facc+2*i+1}")
    a(f"v_lshlrev_b32 v{vS}, 10, v{vS}")
    a(f"v_lshl_add_u32 v{vS}, v3, 4, v{vS}")
    a("s_lshl_b32 s7, s4, 1")
    a(f"s_add_u32 s7, s7, {WS_BB}")
    a(f"v_permlane32_swap_b32 v{Pf+0}, v{Pf+2}")
    a(f"v_permlane32_swap_b32 v{Pf+1}, v{Pf+3}")
    a(f"v_permlane32_swap_b32 v{Pf+4}, v{Pf+6}")
    a(f"v_permlane32_swap_b32 v{Pf+5}, v{Pf+7}")
    a("s_nop 1")
    a(f"buffer_store_dwordx4 {v(Pf,4)}, v{vS}, s[8:11], s7 offen")
    a(f"buffer_store_dwordx4 {v(Pf+4,4)}, v{vS}, s[8:11], s7 offen offset:32")
    stamp_end(a)
    a.label("K2_END")
    a("s_endpgm")
    return a.text(), max(nv_att, R2.next)

def gen_k3():
    a = Asm()
    R2 = RegAlloc(4)
    vA = R2.alloc(); vB = R2.alloc(); vG = R2.alloc(); vS = R2.alloc()
    facc = R2.alloc(16, 4)
    Pf = R2.alloc(8, 4)
    BB = R2.alloc(8, 4)
    D = 32
    slots = R2.alloc(8 * 16, 4)
    a("s_cmp_ge_u32 s2, 256")
    a("s_cbranch_scc1 K3_END")
    a("s_load_dwordx2 s[52:53], s[0:1], 80")
    a("s_load_dwordx2 s[54:55], s[0:1], 64")
    a("v_lshrrev_b32 v1, 6, v0")
    a("s_nop 0")
    a("v_readfirstlane_b32 s5, v1")
    a("v_and_b32 v1, 63, v0")
    a("v_and_b32 v2, 31, v0")
    a("v_bfe_u32 v3, v0, 5, 1")
    a("s_waitcnt lgkmcnt(0)")
    srd(a, 8, 52, WS_SIZE)
    srd(a, 12, 54, 2097152)
    a("s_lshr_b32 s3, s2, 3")
    a("s_and_b32 s4, s2, 7")
    a("s_lshl_b32 s3, s3, 6")
    a("s_and_b32 s6, s5, 1")
    a("s_lshl_b32 s6, s6, 5")
    a("s_add_u32 s3, s3, s6")
    a("s_lshl_b32 s4, s4, 6")
    a("s_lshr_b32 s6, s5, 1")
    a("s_lshl_b32 s6, s6, 5")
    a("s_add_u32 s4, s4, s6")
    a("s_lshr_b32 s6, s4, 5")
    a(f"s_lshl_b32 s6, s6, 15")
    a(f"s_add_u32 s6, s6, {WS_WOT}")
    a(f"v_lshlrev_b32 v{vA}, 4, v1")
    a(f"v_add_u32 v{vA}, s6, v{vA}")
    a(f"v_add_u32 v{vS}, s3, v2")
    a("s_lshr_b32 s6, s3, 5")
    a(f"s_lshl_b32 s6, s6, 15")
    a(f"s_add_u32 s6, s6, {WS_O}")
    a(f"v_lshlrev_b32 v{vB}, 4, v1")
    a(f"v_add_u32 v{vB}, s6, v{vB}")
    a(f"v_lshlrev_b32 v{vG}, 2, v{vS}")
    a(f"s_mov_b32 s7, {WS_G}")
    a(f"buffer_load_dword v{vG}, v{vG}, s[8:11], s7 offen")
    a(f"v_lshlrev_b32 v{vS}, 10, v{vS}")
    a(f"v_lshl_add_u32 v{vS}, v3, 4, v{vS}")
    a("s_lshl_b32 s16, s4, 1")
    a(f"s_add_u32 s17, s16, {WS_BB}")
    a(f"buffer_load_dwordx4 {v(BB,4)}, v{vS}, s[8:11], s17 offen")
    a(f"buffer_load_dwordx4 {v(BB+4,4)}, v{vS}, s[8:11], s17 offen offset:32")
    direct_gemm(a, vA, vB, 32, D, slots, facc, nv_slots=16)
    a("s_nop 15")
    a("s_nop 7")
    for i in range(8):
        a(f"v_cvt_pk_bf16_f32 v{Pf+i}, v{facc+2*i}, v{facc+2*i+1}")
    for i in range(8):
        a(f"v_lshlrev_b32 v{facc+2*i}, 16, v{Pf+i}")
        a(f"v_and_b32 v{facc+2*i+1}, 0xffff0000, v{Pf+i}")
    for i in range(16):
        a(f"v_mul_f32 v{facc+i}, v{facc+i}, v{vG}")
    for i in range(8):
        a(f"v_cvt_pk_bf16_f32 v{Pf+i}, v{facc+2*i}, v{facc+2*i+1}")
    a("s_nop 1")
    a(f"v_permlane32_swap_b32 v{Pf+0}, v{Pf+2}")
    a(f"v_permlane32_swap_b32 v{Pf+1}, v{Pf+3}")
    a(f"v_permlane32_swap_b32 v{Pf+4}, v{Pf+6}")
    a(f"v_permlane32_swap_b32 v{Pf+5}, v{Pf+7}")
    a("s_nop 1")
    T = slots
    for i in range(8):
        a(f"v_lshlrev_b32 v{facc+2*i}, 16, v{Pf+i}")
        a(f"v_and_b32 v{facc+2*i+1}, 0xffff0000, v{Pf+i}")
        a(f"v_lshlrev_b32 v{T+2*i}, 16, v{BB+i}")
        a(f"v_and_b32 v{T+2*i+1}, 0xffff0000, v{BB+i}")
    for i in range(16):
        a(f"v_add_f32 v{facc+i}, v{facc+i}, v{T+i}")
    for i in range(8):
        a(f"v_cvt_pk_bf16_f32 v{Pf+i}, v{facc+2*i}, v{facc+2*i+1}")
    a(f"buffer_store_dwordx4 {v(Pf,4)}, v{vS}, s[12:15], s16 offen")
    a(f"buffer_store_dwordx4 {v(Pf+4,4)}, v{vS}, s[12:15], s16 offen offset:32")
    a.label("K3_END")
    a("s_endpgm")
    return a.text(), (R2.next, 128)
```

```python
from asmlib import *
from layout import *
import os
STAMP = os.environ.get('STAMP') == '1'
PRIO_SWITCH = int(os.environ.get('PRIO_SWITCH', '5'))
VARIANT = int(os.environ.get('VARIANT', '0'))
KMAX_ADDR = 131072 + 8192
K2_LDS = KMAX_ADDR + 256

def direct_gemm(a, vA, vB, nsteps, D, base, acc, srd_="s[8:11]", nv_slots=None, flagB=""):
    def reg(sl, off):
        if nv_slots is not None and sl >= nv_slots:
            b = 8 * (sl - nv_slots) + off
            return f"a[{b}:{b+3}]"
        return v(base + 8 * sl + off, 4)
    def issue(j):
        sl = j % D
        if j % 4 == 0:
            a(f"s_mov_b32 s40, {(j//4)*4096}")
        a(f"buffer_load_dwordx4 {reg(sl,0)}, v{vA}, {srd_}, s40 offen offset:{(j%4)*1024}")
        a(f"buffer_load_dwordx4 {reg(sl,4)}, v{vB}, {srd_}, s40 offen offset:{(j%4)*1024}{flagB}")
    for j in range(min(D, nsteps)):
        issue(j)
    for j in range(nsteps):
        out = min(D, nsteps - j) - 1
        a(f"s_waitcnt vmcnt({min(63, 2*out)})")
        sl = j % D
        c = "0" if j == 0 else v(acc, 16)
        a(f"v_mfma_f32_32x32x16_bf16 {v(acc,16)}, {reg(sl,0)}, {reg(sl,4)}, {c}")
        if j + D < nsteps:
            issue(j + D)

def stamp_end(a):
    if not STAMP: return
    a("s_waitcnt vmcnt(0)")
    a("s_memtime s[78:79]")
    a("s_memrealtime s[92:93]")
    a("s_waitcnt lgkmcnt(0)")
    a("v_mov_b32 v4, s90")
    a("v_mov_b32 v5, s92")
    a("s_lshl_b32 s87, s2, 4")
    a("s_add_u32 s87, s87, s88")
    a("s_lshl_b32 s87, s87, 3")
    a("s_add_u32 s87, s87, 0x1400000")
    a("v_mov_b32 v8, 0")
    a("buffer_store_dwordx2 v[4:5], v8, s[8:11], s87 offen")
    a("s_sub_u32 s74, s74, s72")
    a("s_sub_u32 s76, s76, s72")
    a("s_sub_u32 s78, s78, s72")
    a("v_mov_b32 v4, s74")
    a("v_mov_b32 v5, s76")
    a("v_mov_b32 v6, s78")
    a("v_mov_b32 v7, 0")
    a("s_lshl_b32 s87, s2, 4")
    a("s_add_u32 s87, s87, s88")
    a("s_lshl_b32 s87, s87, 4")
    a("s_add_u32 s87, s87, 0x1600000")
    a("buffer_store_dwordx4 v[4:7], v8, s[8:11], s87 offen")

def gen_k2():
    a = Asm()
    R = RegAlloc(4)
    vQ = R.alloc(4, 4)
    vKa = R.alloc(); vVa = R.alloc(); vVinc = R.alloc()
    vKa0 = R.alloc(); vVa0 = R.alloc()
    vt = [R.alloc() for _ in range(6)]
    mA = R.alloc(); mB = R.alloc()
    KF = [R.alloc(4, 4) for _ in range(4)]
    S = [R.alloc(16, 4) for _ in range(4)]
    C = R.alloc(16, 4)
    P = [R.alloc(8, 4) for _ in range(2)]
    VF = [R.alloc(8, 4) for _ in range(2)]
    O = R.alloc(16, 4)
    nv_att = R.next

    a("s_cmp_ge_u32 s2, 256")
    a("s_cbranch_scc1 K2_END")
    if STAMP:
        a("s_memtime s[72:73]")
        a("s_memrealtime s[90:91]")
        a("s_load_dwordx2 s[84:85], s[0:1], 72")
    a("s_load_dwordx2 s[52:53], s[0:1], 80")
    a("s_load_dwordx4 s[56:59], s[0:1], 64")
    a("v_lshrrev_b32 v1, 6, v0")
    a("s_nop 0")
    a("v_readfirstlane_b32 s5, v1")
    a("v_and_b32 v1, 63, v0")
    a("v_and_b32 v2, 31, v0")
    a("v_bfe_u32 v3, v0, 5, 1")
    a("s_waitcnt lgkmcnt(0)")
    srd(a, 8, 52, WS_SIZE)
    srd(a, 44, 56, 2097152)
    if STAMP: a("s_mov_b32 s88, s5")
    a("s_cmp_ge_u32 s5, 8")
    a("s_cbranch_scc1 K2_FFN")
    a("s_and_b32 s3, s2, 7")
    a("s_lshl_b32 s3, s3, 2")
    a("s_lshr_b32 s4, s2, 6")
    a("s_add_u32 s3, s3, s4")
    a("s_lshr_b32 s4, s2, 3")
    a("s_and_b32 s4, s4, 7")
    a("s_lshl_b32 s6, s3, 16")
    t = vt
    a(f"v_lshlrev_b32 v{t[0]}, 4, v0")
    stgK = S[0]; stgV = S[2]
    for i in range(8):
        a(f"s_add_u32 s7, s6, {WS_K + i*8192}")
        a(f"buffer_load_dwordx4 {v(stgK+4*i,4)}, v{t[0]}, s[8:11], s7 offen")
    a("s_lshl_b32 s12, s4, 8")
    a("s_lshl_b32 s13, s5, 5")
    a("s_add_u32 s12, s12, s13")
    a(f"v_add_u32 v{t[1]}, s12, v2")
    a(f"v_lshlrev_b32 v{t[2]}, 5, v{t[1]}")
    a(f"v_lshl_add_u32 v{t[2]}, v3, 4, v{t[2]}")
    a(f"s_add_u32 s7, s6, {WS_Q}")
    a(f"buffer_load_dwordx4 {v(vQ,4)}, v{t[2]}, s[8:11], s7 offen")
    for i in range(8):
        a(f"s_add_u32 s7, s6, {WS_V + i*8192}")
        a(f"buffer_load_dwordx4 {v(stgV+4*i,4)}, v{t[0]}, s[8:11], s7 offen")
    for i in range(4):
        a(f"v_mov_b32 v{C+i}, 0x3f803f80")
    a(f"v_add_u32 v{t[3]}, 131072, v{t[0]}")
    a(f"ds_write_b128 v{t[3]}, {v(C,4)}")
    a(f"v_mov_b32 v{t[4]}, {KMAX_ADDR}")
    a(f"v_mov_b32 v{t[5]}, 0")
    a(f"ds_write_b32 v{t[4]}, v{t[5]}")
    a(f"ds_write_b32 v{t[4]}, v{t[5]} offset:64")
    a("s_waitcnt lgkmcnt(0)")
    a("s_barrier")
    a(f"v_add_u32 v{t[3]}, 65536, v{t[0]}")
    a("s_waitcnt vmcnt(9)")
    for i in range(8):
        a(f"ds_write_b128 v{t[0]}, {v(stgK+4*i,4)} offset:{i*8192}")
    N = P[0]
    N2 = P[1]
    for i in range(8):
        a(f"v_dot2_f32_bf16 v{N+i}, v{stgK+4*i}, v{stgK+4*i}, 0")
    for r in range(1, 4):
        for i in range(8):
            a(f"v_dot2_f32_bf16 v{N+i}, v{stgK+4*i+r}, v{stgK+4*i+r}, v{N+i}")
    a("s_nop 3")
    for i in range(8):
        a(f"v_add_f32_dpp v{N2+i}, v{N+i}, v{N+i} quad_perm:[1,0,3,2] row_mask:0xf bank_mask:0xf")
    a(f"v_max3_f32 v{N}, v{N2}, v{N2+1}, v{N2+2}")
    a(f"v_max3_f32 v{N+1}, v{N2+3}, v{N2+4}, v{N2+5}")
    a(f"v_max3_f32 v{N}, v{N}, v{N2+6}, v{N2+7}")
    a(f"v_max_f32 v{N}, v{N}, v{N+1}")
    for ctl in ("row_shr:1 row_mask:0xf", "row_shr:2 row_mask:0xf", "row_shr:4 row_mask:0xf", "row_shr:8 row_mask:0xf",
                "row_bcast:15 row_mask:0xa", "row_bcast:31 row_mask:0xc"):
        a("s_nop 1")
        a(f"v_max_f32_dpp v{N}, v{N}, v{N} {ctl} bank_mask:0xf")
    a("v_cmp_eq_u32 vcc, 63, v1")
    a("s_and_saveexec_b64 s[14:15], vcc")
    a(f"ds_max_u32 v{t[4]}, v{N}")
    a("s_mov_b64 exec, s[14:15]")
    a("s_waitcnt vmcnt(0)")
    for i in range(8):
        a(f"ds_write_b128 v{t[3]}, {v(stgV+4*i,4)} offset:{i*8192}")
    a(f"v_lshlrev_b32 v{vKa0}, 5, v2")
    a(f"v_lshl_add_u32 v{vKa0}, v3, 4, v{vKa0}")
    a(f"v_bfe_u32 v{t[1]}, v0, 2, 2")
    a(f"v_lshl_add_u32 v{t[1]}, v3, 2, v{t[1]}")
    a(f"v_lshlrev_b32 v{t[1]}, 5, v{t[1]}")
    a(f"v_and_b32 v{t[2]}, 3, v0")
    a(f"v_lshl_add_u32 v{t[1]}, v{t[2]}, 3, v{t[1]}")
    a(f"v_add_u32 v{t[1]}, 65536, v{t[1]}")
    a(f"v_and_b32 v{t[2]}, 15, v0")
    a(f"v_lshlrev_b32 v{t[2]}, 3, v{t[2]}")
    a(f"v_add_u32 v{t[2]}, 131072, v{t[2]}")
    a(f"v_bfe_u32 v{t[3]}, v0, 4, 1")
    a(f"v_cmp_eq_u32 vcc, 1, v{t[3]}")
    a(f"v_mov_b32 v{mA}, 4096")
    a(f"v_mov_b32 v{mB}, 0")
    a("s_nop 1")
    a(f"v_cndmask_b32 v{vVa0}, v{t[1]}, v{t[2]}, vcc")
    a(f"v_cndmask_b32 v{vVinc}, v{mA}, v{mB}, vcc")
    a(f"v_dot2_f32_bf16 v{mA}, v{vQ}, v{vQ}, 0")
    for r in range(1, 4):
        a(f"v_dot2_f32_bf16 v{mA}, v{vQ+r}, v{vQ+r}, v{mA}")
    a("s_nop 3")
    a(f"v_mov_b32 v{mB}, v{mA}")
    a("s_nop 1")
    a(f"v_permlane32_swap_b32 v{mA}, v{mB}")
    a("s_nop 1")
    a(f"v_add_f32 v{mA}, v{mA}, v{mB}")
    a("s_waitcnt lgkmcnt(0)")
    a("s_barrier")
    if STAMP: a("s_memtime s[74:75]")
    a(f"ds_read_b32 v{mB}, v{t[4]}")
    a("s_cmp_lt_u32 s5, 4")
    a("s_cbranch_scc1 K2_NOPRIO")
    a("s_setprio 1")
    a.label("K2_NOPRIO")
    a("s_waitcnt lgkmcnt(0)")
    a(f"v_mul_f32 v{mA}, v{mA}, v{mB}")
    a(f"v_sqrt_f32 v{mA}, v{mA}")
    a("s_nop 0")
    a(f"v_mul_f32 v{mA}, 0xbf802000, v{mA}")
    for i in range(16):
        a(f"v_mov_b32 v{C+i}, v{mA}")
    a("s_mov_b32 s17, 0")
    if STAMP: a("s_memtime s[76:77]")
    def kread(slot, tile_off):
        return f"ds_read_b128 {v(KF[slot],4)}, v{vKa} offset:{tile_off*1024}"
    def vreads(slot, tile_off):
        return [f"ds_read_b64_tr_b16 {v(VF[slot]+2*q,2)}, v{vVa} offset:{tile_off*1024 + (q//2)*512 + (q%2)*256}" for q in range(4)]
    a.label("K2_P2_ENTRY")
    a(f"v_mov_b32 v{vKa}, v{vKa0}")
    a(f"v_mov_b32 v{vVa}, v{vVa0}")
    for T in range(3):
        a(kread(T, T))
    for o in vreads(0, 0): a(o)
    a("s_waitcnt lgkmcnt(5)")
    a(f"v_mfma_f32_32x32x16_bf16 {v(S[0],16)}, {v(KF[0],4)}, {v(vQ,4)}, {v(C,16)}")
    a(f"v_mfma_f32_32x32x16_bf16 {v(S[1],16)}, {v(KF[1],4)}, {v(vQ,4)}, {v(C,16)}")
    for i in range(16):
        a(f"v_mov_b32 v{O+i}, 0")
    a("s_mov_b32 s16, 16")
    a.label("K2_P2")
    for u in range(4):
        if VARIANT == 0:
            a(kread((u + 3) % 4, u + 3))
            for o in vreads((u + 1) % 2, u + 1): a(o)
            a("s_waitcnt lgkmcnt(5)")
            a(f"v_mfma_f32_32x32x16_bf16 {v(S[(u+2)%4],16)}, {v(KF[(u+2)%4],4)}, {v(vQ,4)}, {v(C,16)}")
            for i in range(16):
                a(f"v_exp_f32 v{S[u]+i}, v{S[u]+i}")
            for i in range(8):
                a(f"v_cvt_pk_bf16_f32 v{P[u%2]+i}, v{S[u]+2*i}, v{S[u]+2*i+1}")
            a("s_nop 1")
            a(f"v_mfma_f32_32x32x16_bf16 {v(O,16)}, {v(VF[u%2],4)}, {v(P[u%2],4)}, {v(O,16)}")
            a(f"v_mfma_f32_32x32x16_bf16 {v(O,16)}, {v(VF[u%2]+4,4)}, {v(P[u%2]+4,4)}, {v(O,16)}")
        elif VARIANT == 1:
            for i in range(16):
                a(f"v_exp_f32 v{S[u]+i}, v{S[u]+i}")
            for i in range(8):
                a(f"v_cvt_pk_bf16_f32 v{P[u%2]+i}, v{S[u]+2*i}, v{S[u]+2*i+1}")
            a(kread((u + 3) % 4, u + 3))
            for o in vreads((u + 1) % 2, u + 1): a(o)
            a("s_waitcnt lgkmcnt(5)")
            a(f"v_mfma_f32_32x32x16_bf16 {v(S[(u+2)%4],16)}, {v(KF[(u+2)%4],4)}, {v(vQ,4)}, {v(C,16)}")
            a(f"v_mfma_f32_32x32x16_bf16 {v(O,16)}, {v(VF[u%2],4)}, {v(P[u%2],4)}, {v(O,16)}")
            a(f"v_mfma_f32_32x32x16_bf16 {v(O,16)}, {v(VF[u%2]+4,4)}, {v(P[u%2]+4,4)}, {v(O,16)}")
        elif VARIANT == 2:
            a(kread((u + 3) % 4, u + 3))
            for o in vreads((u + 1) % 2, u + 1): a(o)
            a("s_waitcnt lgkmcnt(5)")
            a(f"v_mfma_f32_32x32x16_bf16 {v(S[(u+2)%4],16)}, {v(KF[(u+2)%4],4)}, {v(vQ,4)}, {v(C,16)}")
            for i in range(8):
                a(f"v_exp_f32 v{S[u]+i}, v{S[u]+i}")
            for i in range(4):
                a(f"v_cvt_pk_bf16_f32 v{P[u%2]+i}, v{S[u]+2*i}, v{S[u]+2*i+1}")
            for i in range(8, 10):
                a(f"v_exp_f32 v{S[u]+i}, v{S[u]+i}")
            a(f"v_mfma_f32_32x32x16_bf16 {v(O,16)}, {v(VF[u%2],4)}, {v(P[u%2],4)}, {v(O,16)}")
            for i in range(10, 16):
                a(f"v_exp_f32 v{S[u]+i}, v{S[u]+i}")
            for i in range(4, 8):
                a(f"v_cvt_pk_bf16_f32 v{P[u%2]+i}, v{S[u]+2*i}, v{S[u]+2*i+1}")
            a("s_nop 1")
            a(f"v_mfma_f32_32x32x16_bf16 {v(O,16)}, {v(VF[u%2]+4,4)}, {v(P[u%2]+4,4)}, {v(O,16)}")
    a(f"v_add_u32 v{vKa}, 4096, v{vKa}")
    a(f"v_add_u32 v{vVa}, v{vVinc}, v{vVa}")
    a("s_sub_u32 s16, s16, 1")
    a(f"s_cmp_lg_u32 s16, {PRIO_SWITCH}")
    a("s_cbranch_scc1 K2_P2B")
    a("s_setprio 0")
    a.label("K2_P2B")
    a("s_cmp_lg_u32 s16, 0")
    a("s_cbranch_scc1 K2_P2")
    a("s_waitcnt lgkmcnt(0)")
    a("s_nop 15")
    a("s_nop 7")
    a("s_cmp_lg_u32 s17, 0")
    a("s_cbranch_scc1 K2_FIN")
    a(f"v_mov_b32 v{t[0]}, 0x12800000")
    a(f"v_cmp_nge_f32 vcc, v{O+8}, v{t[0]}")
    a("s_nop 4")
    a("s_cmp_eq_u64 vcc, 0")
    a("s_cbranch_scc1 K2_FIN")
    a("s_mov_b32 s17, 1")
    a(f"v_mov_b32 v{vKa}, v{vKa0}")
    a(f"v_mov_b32 v{mA}, 0xff800000")
    a(f"v_mov_b32 v{mB}, 0xff800000")
    for T in range(3):
        a(kread(T, T))
    a("s_waitcnt lgkmcnt(1)")
    a(f"v_mfma_f32_32x32x16_bf16 {v(S[0],16)}, {v(KF[0],4)}, {v(vQ,4)}, 0")
    a(f"v_mfma_f32_32x32x16_bf16 {v(S[1],16)}, {v(KF[1],4)}, {v(vQ,4)}, 0")
    a("s_mov_b32 s16, 16")
    a.label("K2_P1")
    for u in range(4):
        a(kread((u + 3) % 4, u + 3))
        a("s_waitcnt lgkmcnt(1)")
        a(f"v_mfma_f32_32x32x16_bf16 {v(S[(u+2)%4],16)}, {v(KF[(u+2)%4],4)}, {v(vQ,4)}, 0")
        for i in range(8):
            m = mA if i % 2 == 0 else mB
            a(f"v_max3_f32 v{m}, v{S[u]+2*i}, v{S[u]+2*i+1}, v{m}")
    a(f"v_add_u32 v{vKa}, 4096, v{vKa}")
    a("s_sub_u32 s16, s16, 1")
    a("s_cmp_lg_u32 s16, 0")
    a("s_cbranch_scc1 K2_P1")
    a(f"v_max_f32 v{mA}, v{mA}, v{mB}")
    a("s_nop 1")
    a(f"v_mov_b32 v{mB}, v{mA}")
    a("s_nop 1")
    a(f"v_permlane32_swap_b32 v{mA}, v{mB}")
    a("s_nop 1")
    a(f"v_max_f32 v{mA}, v{mA}, v{mB}")
    a("s_waitcnt lgkmcnt(0)")
    a("s_nop 15")
    for i in range(16):
        a(f"v_sub_f32 v{C+i}, 0, v{mA}")
    a("s_nop 7")
    a("s_branch K2_P2_ENTRY")
    a.label("K2_FIN")
    a(f"v_rcp_f32 v{t[0]}, v{O+8}")
    a("s_nop 1")
    for i in range(8):
        a(f"v_mul_f32 v{O+i}, v{O+i}, v{t[0]}")
    Pp = P[0]
    for i in range(4):
        a(f"v_cvt_pk_bf16_f32 v{Pp+i}, v{O+2*i}, v{O+2*i+1}")
    a(f"v_lshlrev_b32 v{t[1]}, 4, v1")
    a("s_lshr_b32 s7, s12, 5")
    a("s_lshl_b32 s7, s7, 5")
    a("s_add_u32 s7, s7, s3")
    a("s_lshl_b32 s7, s7, 10")
    a(f"s_add_u32 s7, s7, {WS_O}")
    a(f"v_permlane32_swap_b32 v{Pp+0}, v{Pp+2}")
    a(f"v_permlane32_swap_b32 v{Pp+1}, v{Pp+3}")
    a("s_nop 1")
    a(f"buffer_store_dwordx4 {v(Pp,4)}, v{t[1]}, s[8:11], s7 offen sc1")
    a(f"v_mov_b32 v{t[2]}, {KMAX_ADDR}")
    a(f"v_mov_b32 v{t[3]}, 1")
    a("s_waitcnt vmcnt(0)")
    a("v_cmp_eq_u32 vcc, 0, v1")
    a("s_and_saveexec_b64 s[14:15], vcc")
    a(f"ds_add_rtn_u32 v{t[4]}, v{t[2]}, v{t[3]} offset:64")
    a("s_waitcnt lgkmcnt(0)")
    a(f"v_readfirstlane_b32 s7, v{t[4]}")
    a("s_cmp_lg_u32 s7, 7")
    a("s_cbranch_scc1 K2_NOFLAG")
    a("s_lshl_b32 s7, s4, 7")
    a("s_lshl_b32 s13, s3, 2")
    a("s_add_u32 s7, s7, s13")
    a(f"s_add_u32 s7, s7, {WS_FLAG}")
    a(f"v_mov_b32 v{t[2]}, 0")
    a(f"buffer_store_dword v{t[3]}, v{t[2]}, s[8:11], s7 offen sc1")
    a.label("K2_NOFLAG")
    a("s_mov_b64 exec, s[14:15]")
    stamp_end(a)
    a("s_endpgm")

    a.label("K2_FFN")
    R2 = RegAlloc(4)
    vA = R2.alloc(); vB = R2.alloc(); vG = R2.alloc(); vS = R2.alloc(); vG2 = R2.alloc()
    facc = R2.alloc(16, 4)
    Pf = R2.alloc(8, 4)
    BBr = R2.alloc(16, 4)
    D = 8; D2 = 12
    slots = R2.alloc(8 * D2, 4)
    a("s_barrier")
    a("s_barrier")
    if STAMP:
        a("s_memtime s[74:75]")
        a("s_memtime s[76:77]")
    a("s_sub_u32 s5, s5, 8")
    a("s_and_b32 s3, s2, 7")
    a("s_lshl_b32 s3, s3, 2")
    a("s_lshr_b32 s4, s2, 6")
    a("s_add_u32 s3, s3, s4")
    a("s_lshr_b32 s4, s2, 3")
    a("s_and_b32 s4, s4, 7")
    a("s_lshl_b32 s3, s3, 6")
    a("s_and_b32 s6, s5, 1")
    a("s_lshl_b32 s6, s6, 5")
    a("s_add_u32 s3, s3, s6")
    a("s_lshl_b32 s4, s4, 6")
    a("s_lshr_b32 s6, s5, 1")
    a("s_lshl_b32 s6, s6, 5")
    a("s_add_u32 s4, s4, s6")
    a("s_lshr_b32 s6, s4, 5")
    a(f"s_mul_i32 s6, s6, {86*1024}")
    a(f"s_add_u32 s6, s6, {WS_W2T}")
    a(f"v_lshlrev_b32 v{vA}, 4, v1")
    a(f"v_add_u32 v{vA}, s6, v{vA}")
    a(f"v_add_u32 v{vS}, s3, v2")
    a("s_lshr_b32 s6, s3, 5")
    a(f"s_mul_i32 s6, s6, {86*1024}")
    a(f"s_add_u32 s6, s6, {WS_ACT}")
    a(f"v_lshlrev_b32 v{vB}, 4, v1")
    a(f"v_add_u32 v{vB}, s6, v{vB}")
    a(f"v_lshlrev_b32 v{vG}, 2, v{vS}")
    a(f"s_mov_b32 s7, {WS_G}")
    a(f"buffer_load_dword v{vG2}, v{vG}, s[8:11], s7 offen")
    a(f"s_mov_b32 s7, {WS_OMG}")
    a(f"buffer_load_dword v{vG}, v{vG}, s[8:11], s7 offen")
    direct_gemm(a, vA, vB, 86, D, slots, facc)
    a("s_nop 15")
    a("s_nop 7")
    for i in range(8):
        a(f"v_cvt_pk_bf16_f32 v{Pf+i}, v{facc+2*i}, v{facc+2*i+1}")
    for i in range(8):
        a(f"v_lshlrev_b32 v{facc+2*i}, 16, v{Pf+i}")
        a(f"v_and_b32 v{facc+2*i+1}, 0xffff0000, v{Pf+i}")
    for i in range(16):
        a(f"v_mul_f32 v{facc+i}, v{facc+i}, v{vG}")
    for i in range(8):
        a(f"v_cvt_pk_bf16_f32 v{Pf+i}, v{facc+2*i}, v{facc+2*i+1}")
    for i in range(8):
        a(f"v_lshlrev_b32 v{BBr+2*i}, 16, v{Pf+i}")
        a(f"v_and_b32 v{BBr+2*i+1}, 0xffff0000, v{Pf+i}")
    a("s_lshr_b32 s6, s3, 8")
    a("s_lshl_b32 s6, s6, 7")
    a(f"s_add_u32 s6, s6, {WS_FLAG}")
    a(f"v_lshlrev_b32 v{vA}, 2, v2")
    a("s_barrier")
    a.label("K2_POLL")
    a(f"buffer_load_dword v{vB}, v{vA}, s[8:11], s6 offen sc1")
    a("s_waitcnt vmcnt(0)")
    a(f"v_cmp_ne_u32 vcc, 1, v{vB}")
    a("s_nop 4")
    a("s_cmp_eq_u64 vcc, 0")
    a("s_cbranch_scc1 K2_POLLDONE")
    a("s_sleep 2")
    a("s_branch K2_POLL")
    a.label("K2_POLLDONE")
    if STAMP: a("s_memtime s[74:75]")
    if STAMP: a("s_memtime s[76:77]")
    a("s_lshr_b32 s6, s4, 5")
    a(f"s_lshl_b32 s6, s6, 15")
    a(f"s_add_u32 s6, s6, {WS_WOT}")
    a(f"v_lshlrev_b32 v{vA}, 4, v1")
    a(f"v_add_u32 v{vA}, s6, v{vA}")
    a("s_lshr_b32 s6, s3, 5")
    a(f"s_lshl_b32 s6, s6, 15")
    a(f"s_add_u32 s6, s6, {WS_O}")
    a(f"v_lshlrev_b32 v{vB}, 4, v1")
    a(f"v_add_u32 v{vB}, s6, v{vB}")
    direct_gemm(a, vA, vB, 32, D2, slots, facc)
    a("s_nop 15")
    a("s_nop 7")
    for i in range(8):
        a(f"v_cvt_pk_bf16_f32 v{Pf+i}, v{facc+2*i}, v{facc+2*i+1}")
    for i in range(8):
        a(f"v_lshlrev_b32 v{facc+2*i}, 16, v{Pf+i}")
        a(f"v_and_b32 v{facc+2*i+1}, 0xffff0000, v{Pf+i}")
    for i in range(16):
        a(f"v_mul_f32 v{facc+i}, v{facc+i}, v{vG2}")
    for i in range(8):
        a(f"v_cvt_pk_bf16_f32 v{Pf+i}, v{facc+2*i}, v{facc+2*i+1}")
    for i in range(8):
        a(f"v_lshlrev_b32 v{facc+2*i}, 16, v{Pf+i}")
        a(f"v_and_b32 v{facc+2*i+1}, 0xffff0000, v{Pf+i}")
    for i in range(16):
        a(f"v_add_f32 v{facc+i}, v{facc+i}, v{BBr+i}")
    for i in range(8):
        a(f"v_cvt_pk_bf16_f32 v{Pf+i}, v{facc+2*i}, v{facc+2*i+1}")
    a(f"v_lshlrev_b32 v{vS}, 10, v{vS}")
    a(f"v_lshl_add_u32 v{vS}, v3, 4, v{vS}")
    a("s_lshl_b32 s7, s4, 1")
    a(f"v_permlane32_swap_b32 v{Pf+0}, v{Pf+2}")
    a(f"v_permlane32_swap_b32 v{Pf+1}, v{Pf+3}")
    a(f"v_permlane32_swap_b32 v{Pf+4}, v{Pf+6}")
    a(f"v_permlane32_swap_b32 v{Pf+5}, v{Pf+7}")
    a("s_nop 1")
    a(f"buffer_store_dwordx4 {v(Pf,4)}, v{vS}, s[44:47], s7 offen")
    a(f"buffer_store_dwordx4 {v(Pf+4,4)}, v{vS}, s[44:47], s7 offen offset:32")
    stamp_end(a)
    a.label("K2_END")
    a("s_endpgm")
    return a.text(), max(nv_att, R2.next)

K3_LDS = 131072
def gen_k3():
    a = Asm()
    R2 = RegAlloc(4)
    vL = R2.alloc(); vRA = R2.alloc(); vRB = R2.alloc(); vG = R2.alloc(); vS = R2.alloc()
    facc = R2.alloc(16, 4)
    Pf = R2.alloc(8, 4)
    BB = R2.alloc(8, 4)
    T = R2.alloc(16, 4)
    FR = [R2.alloc(8, 4) for _ in range(4)]
    a("s_cmp_ge_u32 s2, 256")
    a("s_cbranch_scc1 K3_END")
    if STAMP:
        a("s_memtime s[72:73]")
        a("s_memrealtime s[90:91]")
    a("s_load_dwordx2 s[52:53], s[0:1], 80")
    a("s_load_dwordx2 s[54:55], s[0:1], 64")
    a("v_lshrrev_b32 v1, 6, v0")
    a("s_nop 0")
    a("v_readfirstlane_b32 s5, v1")
    a("v_and_b32 v1, 63, v0")
    a("v_and_b32 v2, 31, v0")
    a("v_bfe_u32 v3, v0, 5, 1")
    a(f"v_lshlrev_b32 v{vL}, 4, v1")
    a("s_and_b32 s3, s2, 7")
    a("s_lshl_b32 s3, s3, 2")
    a("s_lshr_b32 s4, s2, 6")
    a("s_add_u32 s3, s3, s4")
    a("s_lshr_b32 s4, s2, 3")
    a("s_and_b32 s4, s4, 7")
    a("s_lshl_b32 s6, s4, 1")
    a("s_add_u32 s6, s6, s5")
    a("s_lshl_b32 s6, s6, 15")
    a(f"s_add_u32 s6, s6, {WS_WOT}")
    a("s_lshl_b32 s7, s3, 1")
    a("s_add_u32 s7, s7, s5")
    a("s_sub_u32 s7, s7, 2")
    a("s_lshl_b32 s7, s7, 15")
    a(f"s_add_u32 s7, s7, {WS_O}")
    a("s_cmp_lt_u32 s5, 2")
    a("s_cselect_b32 s18, s6, s7")
    a("s_lshl_b32 s19, s5, 15")
    a("s_waitcnt lgkmcnt(0)")
    srd(a, 8, 52, WS_SIZE)
    srd(a, 12, 54, 2097152)
    for ks in range(32):
        a(f"s_add_u32 m0, s19, {ks*1024}")
        a(f"s_add_u32 s20, s18, {ks*1024}")
        a(f"buffer_load_dwordx4 v{vL}, s[8:11], s20 offen lds")
    a("s_lshl_b32 s3, s3, 6")
    a("s_and_b32 s6, s5, 1")
    a("s_lshl_b32 s6, s6, 5")
    a("s_add_u32 s3, s3, s6")
    a("s_lshl_b32 s4, s4, 6")
    a("s_lshr_b32 s6, s5, 1")
    a("s_lshl_b32 s6, s6, 5")
    a("s_add_u32 s4, s4, s6")
    a(f"v_add_u32 v{vS}, s3, v2")
    a(f"v_lshlrev_b32 v{vG}, 2, v{vS}")
    a(f"s_mov_b32 s7, {WS_G}")
    a(f"buffer_load_dword v{vG}, v{vG}, s[8:11], s7 offen")
    a(f"v_lshlrev_b32 v{vS}, 10, v{vS}")
    a(f"v_lshl_add_u32 v{vS}, v3, 4, v{vS}")
    a("s_lshl_b32 s16, s4, 1")
    a(f"s_add_u32 s17, s16, {WS_BB}")
    a(f"buffer_load_dwordx4 {v(BB,4)}, v{vS}, s[8:11], s17 offen")
    a(f"buffer_load_dwordx4 {v(BB+4,4)}, v{vS}, s[8:11], s17 offen offset:32")
    a("s_lshr_b32 s6, s5, 1")
    a("s_lshl_b32 s6, s6, 15")
    a(f"v_add_u32 v{vRA}, s6, v{vL}")
    a("s_and_b32 s6, s5, 1")
    a("s_add_u32 s6, s6, 2")
    a("s_lshl_b32 s6, s6, 15")
    a(f"v_add_u32 v{vRB}, s6, v{vL}")
    if STAMP: a("s_memtime s[74:75]")
    def rd(ks):
        f = FR[ks % 4]
        a(f"ds_read_b128 {v(f,4)}, v{vRA} offset:{ks*1024}")
        a(f"ds_read_b128 {v(f+4,4)}, v{vRB} offset:{ks*1024}")
    for c in range(4):
        a(f"s_waitcnt vmcnt({3 + 32 - 8*(c+1)})")
        a("s_barrier")
        rd(8*c); rd(8*c+1); rd(8*c+2)
        for k in range(8):
            ks = 8*c + k
            if k + 3 < 8:
                rd(ks + 3)
                a("s_waitcnt lgkmcnt(6)")
            else:
                a(f"s_waitcnt lgkmcnt({2*(7-k)})")
            f = FR[ks % 4]
            cc = "0" if ks == 0 else v(facc, 16)
            a(f"v_mfma_f32_32x32x16_bf16 {v(facc,16)}, {v(f,4)}, {v(f+4,4)}, {cc}")
    if STAMP: a("s_memtime s[76:77]")
    a("s_waitcnt vmcnt(0)")
    a("s_nop 15")
    a("s_nop 7")
    for i in range(8):
        a(f"v_cvt_pk_bf16_f32 v{Pf+i}, v{facc+2*i}, v{facc+2*i+1}")
    for i in range(8):
        a(f"v_lshlrev_b32 v{facc+2*i}, 16, v{Pf+i}")
        a(f"v_and_b32 v{facc+2*i+1}, 0xffff0000, v{Pf+i}")
    for i in range(16):
        a(f"v_mul_f32 v{facc+i}, v{facc+i}, v{vG}")
    for i in range(8):
        a(f"v_cvt_pk_bf16_f32 v{Pf+i}, v{facc+2*i}, v{facc+2*i+1}")
    a("s_nop 1")
    a(f"v_permlane32_swap_b32 v{Pf+0}, v{Pf+2}")
    a(f"v_permlane32_swap_b32 v{Pf+1}, v{Pf+3}")
    a(f"v_permlane32_swap_b32 v{Pf+4}, v{Pf+6}")
    a(f"v_permlane32_swap_b32 v{Pf+5}, v{Pf+7}")
    a("s_nop 1")
    for i in range(8):
        a(f"v_lshlrev_b32 v{facc+2*i}, 16, v{Pf+i}")
        a(f"v_and_b32 v{facc+2*i+1}, 0xffff0000, v{Pf+i}")
        a(f"v_lshlrev_b32 v{T+2*i}, 16, v{BB+i}")
        a(f"v_and_b32 v{T+2*i+1}, 0xffff0000, v{BB+i}")
    for i in range(16):
        a(f"v_add_f32 v{facc+i}, v{facc+i}, v{T+i}")
    for i in range(8):
        a(f"v_cvt_pk_bf16_f32 v{Pf+i}, v{facc+2*i}, v{facc+2*i+1}")
    a(f"buffer_store_dwordx4 {v(Pf,4)}, v{vS}, s[12:15], s16 offen")
    a(f"buffer_store_dwordx4 {v(Pf+4,4)}, v{vS}, s[12:15], s16 offen offset:32")
    if STAMP:
        a("s_waitcnt vmcnt(0)")
        a("s_memtime s[78:79]")
        a("s_memrealtime s[92:93]")
        a("s_waitcnt lgkmcnt(0)")
        a("s_sub_u32 s74, s74, s72")
        a("s_sub_u32 s76, s76, s72")
        a("s_sub_u32 s78, s78, s72")
        a("v_mov_b32 v4, s90")
        a("v_mov_b32 v5, s92")
        a("v_mov_b32 v6, s74")
        a("v_mov_b32 v7, s76")
        a("v_mov_b32 v8, s78")
        a("s_lshl_b32 s87, s2, 2")
        a("s_add_u32 s87, s87, s5")
        a("s_lshl_b32 s87, s87, 5")
        a("s_add_u32 s87, s87, 0x1500000")
        a("v_mov_b32 v9, 0")
        a("buffer_store_dwordx4 v[4:7], v9, s[8:11], s87 offen")
        a("buffer_store_dword v8, v9, s[8:11], s87 offen offset:16")
    a.label("K3_END")
    a("s_endpgm")
    return a.text(), R2.next
```

```python
WS_Q = 0x000000
WS_K = 0x200000
WS_V = 0x400000
WS_ACT = 0x600000
WS_W2T = 0xC00000
WS_WOT = 0xE00000
WS_G = 0xF00000
WS_OMG = 0xF02000
WS_O = 0x1000000
WS_BB = 0x1200000
WS_SIZE = 0x10000000
WS_FLAG = 0xF08000
```

```python
import sys
sys.path.insert(0, "gen")
from asmlib import *
from k1 import gen_k1, K1_LDS
from k2 import gen_k2, gen_k3, K2_LDS, K3_LDS

t1, n1 = gen_k1()
t2, n2 = gen_k2()
t3, n3 = gen_k3()
hdr = open("gated_mix__mha_block__dense_activation_mish__prompt.s.ref").read().split("; Override")[0]
out = hdr
out += f"; @launch kernel=gm_k1_kernel grid=(256,1,1) block=(256,1,1) lds={K1_LDS}\n"
out += f"; @launch kernel=gm_k2_kernel grid=(256,1,1) block=(768,1,1) lds={K2_LDS}\n"
out += '.amdgcn_target "amdgcn-amd-amdhsa--gfx950"\n.text\n'
out += kernel_header("gm_k1_kernel") + t1
out += kernel_header("gm_k2_kernel") + t2
out += '.section .rodata,"a"\n.p2align 6\n'
out += kernel_desc("gm_k1_kernel", n1)
out += ".p2align 6\n" + kernel_desc("gm_k2_kernel", n2)
dst = sys.argv[1] if len(sys.argv) > 1 else "gated_mix__mha_block__dense_activation_mish__prompt.s"
open(dst, "w").write(out)
print("vgprs", n1, n2, n3, "bytes", len(out))
```

```python
from asmlib import *
from layout import *
import os
STAMP = os.environ.get('STAMP') == '1'
PRIO_SWITCH = int(os.environ.get('PRIO_SWITCH', '5'))
VARIANT = int(os.environ.get('VARIANT', '0'))
MERGE = int(os.environ.get('MERGE', '1'))
KMAX_ADDR = 131072 + 8192
K2_LDS = KMAX_ADDR + 256

def direct_gemm(a, vA, vB, nsteps, D, base, acc, srd_="s[8:11]", nv_slots=None, flagB=""):
    def reg(sl, off):
        if nv_slots is not None and sl >= nv_slots:
            b = 8 * (sl - nv_slots) + off
            return f"a[{b}:{b+3}]"
        return v(base + 8 * sl + off, 4)
    def issue(j):
        sl = j % D
        if j % 4 == 0:
            a(f"s_mov_b32 s40, {(j//4)*4096}")
        a(f"buffer_load_dwordx4 {reg(sl,0)}, v{vA}, {srd_}, s40 offen offset:{(j%4)*1024}")
        a(f"buffer_load_dwordx4 {reg(sl,4)}, v{vB}, {srd_}, s40 offen offset:{(j%4)*1024}{flagB}")
    for j in range(min(D, nsteps)):
        issue(j)
    for j in range(nsteps):
        out = min(D, nsteps - j) - 1
        a(f"s_waitcnt vmcnt({min(63, 2*out)})")
        sl = j % D
        c = "0" if j == 0 else v(acc, 16)
        a(f"v_mfma_f32_32x32x16_bf16 {v(acc,16)}, {reg(sl,0)}, {reg(sl,4)}, {c}")
        if j + D < nsteps:
            issue(j + D)

def stamp_end(a):
    if not STAMP: return
    a("s_waitcnt vmcnt(0)")
    a("s_memtime s[78:79]")
    a("s_memrealtime s[92:93]")
    a("s_waitcnt lgkmcnt(0)")
    a("v_mov_b32 v4, s90")
    a("v_mov_b32 v5, s92")
    a("s_lshl_b32 s87, s2, 4")
    a("s_add_u32 s87, s87, s88")
    a("s_lshl_b32 s87, s87, 3")
    a("s_add_u32 s87, s87, 0x1400000")
    a("v_mov_b32 v8, 0")
    a("buffer_store_dwordx2 v[4:5], v8, s[8:11], s87 offen")
    a("s_sub_u32 s74, s74, s72")
    a("s_sub_u32 s76, s76, s72")
    a("s_sub_u32 s78, s78, s72")
    a("v_mov_b32 v4, s74")
    a("v_mov_b32 v5, s76")
    a("v_mov_b32 v6, s78")
    a("v_mov_b32 v7, 0")
    a("s_lshl_b32 s87, s2, 4")
    a("s_add_u32 s87, s87, s88")
    a("s_lshl_b32 s87, s87, 4")
    a("s_add_u32 s87, s87, 0x1600000")
    a("buffer_store_dwordx4 v[4:7], v8, s[8:11], s87 offen")

def gen_k2():
    a = Asm()
    R = RegAlloc(4)
    vQ = R.alloc(4, 4)
    vKa = R.alloc(); vVa = R.alloc(); vVinc = R.alloc()
    vKa0 = R.alloc(); vVa0 = R.alloc()
    vt = [R.alloc() for _ in range(6)]
    mA = R.alloc(); mB = R.alloc()
    KF = [R.alloc(4, 4) for _ in range(4)]
    S = [R.alloc(16, 4) for _ in range(4)]
    C = R.alloc(16, 4)
    P = [R.alloc(8, 4) for _ in range(2)]
    VF = [R.alloc(8, 4) for _ in range(2)]
    O = R.alloc(16, 4)
    nv_att = R.next

    a("s_cmp_ge_u32 s2, 256")
    a("s_cbranch_scc1 K2_END")
    if STAMP:
        a("s_memtime s[72:73]")
        a("s_memrealtime s[90:91]")
        a("s_load_dwordx2 s[84:85], s[0:1], 72")
    a("s_load_dwordx2 s[52:53], s[0:1], 80")
    a("s_load_dwordx4 s[56:59], s[0:1], 64")
    a("v_lshrrev_b32 v1, 6, v0")
    a("s_nop 0")
    a("v_readfirstlane_b32 s5, v1")
    a("v_and_b32 v1, 63, v0")
    a("v_and_b32 v2, 31, v0")
    a("v_bfe_u32 v3, v0, 5, 1")
    a("s_waitcnt lgkmcnt(0)")
    srd(a, 8, 52, WS_SIZE)
    srd(a, 44, 56, 2097152)
    if STAMP: a("s_mov_b32 s88, s5")
    a("s_cmp_ge_u32 s5, 8")
    a("s_cbranch_scc1 K2_FFN")
    a("s_and_b32 s3, s2, 7")
    a("s_lshl_b32 s3, s3, 2")
    a("s_lshr_b32 s4, s2, 6")
    a("s_add_u32 s3, s3, s4")
    a("s_lshr_b32 s4, s2, 3")
    a("s_and_b32 s4, s4, 7")
    a("s_lshl_b32 s6, s3, 16")
    t = vt
    a(f"v_lshlrev_b32 v{t[0]}, 4, v0")
    stgK = S[0]; stgV = S[2]
    for i in range(8):
        a(f"s_add_u32 s7, s6, {WS_K + i*8192}")
        a(f"buffer_load_dwordx4 {v(stgK+4*i,4)}, v{t[0]}, s[8:11], s7 offen")
    a("s_lshl_b32 s12, s4, 8")
    a("s_lshl_b32 s13, s5, 5")
    a("s_add_u32 s12, s12, s13")
    a(f"v_add_u32 v{t[1]}, s12, v2")
    a(f"v_lshlrev_b32 v{t[2]}, 5, v{t[1]}")
    a(f"v_lshl_add_u32 v{t[2]}, v3, 4, v{t[2]}")
    a(f"s_add_u32 s7, s6, {WS_Q}")
    a(f"buffer_load_dwordx4 {v(vQ,4)}, v{t[2]}, s[8:11], s7 offen")
    for i in range(8):
        a(f"s_add_u32 s7, s6, {WS_V + i*8192}")
        a(f"buffer_load_dwordx4 {v(stgV+4*i,4)}, v{t[0]}, s[8:11], s7 offen")
    for i in range(4):
        a(f"v_mov_b32 v{C+i}, 0x3f803f80")
    a(f"v_add_u32 v{t[3]}, 131072, v{t[0]}")
    a(f"ds_write_b128 v{t[3]}, {v(C,4)}")
    a(f"v_mov_b32 v{t[4]}, {KMAX_ADDR}")
    a(f"v_mov_b32 v{t[5]}, 0")
    a(f"ds_write_b32 v{t[4]}, v{t[5]}")
    a(f"ds_write_b32 v{t[4]}, v{t[5]} offset:64")
    a("s_waitcnt lgkmcnt(0)")
    a("s_barrier")
    a(f"v_add_u32 v{t[3]}, 65536, v{t[0]}")
    a("s_waitcnt vmcnt(9)")
    for i in range(8):
        a(f"ds_write_b128 v{t[0]}, {v(stgK+4*i,4)} offset:{i*8192}")
    N = P[0]
    N2 = P[1]
    for i in range(8):
        a(f"v_dot2_f32_bf16 v{N+i}, v{stgK+4*i}, v{stgK+4*i}, 0")
    for r in range(1, 4):
        for i in range(8):
            a(f"v_dot2_f32_bf16 v{N+i}, v{stgK+4*i+r}, v{stgK+4*i+r}, v{N+i}")
    a("s_nop 3")
    for i in range(8):
        a(f"v_add_f32_dpp v{N2+i}, v{N+i}, v{N+i} quad_perm:[1,0,3,2] row_mask:0xf bank_mask:0xf")
    a(f"v_max3_f32 v{N}, v{N2}, v{N2+1}, v{N2+2}")
    a(f"v_max3_f32 v{N+1}, v{N2+3}, v{N2+4}, v{N2+5}")
    a(f"v_max3_f32 v{N}, v{N}, v{N2+6}, v{N2+7}")
    a(f"v_max_f32 v{N}, v{N}, v{N+1}")
    for ctl in ("row_shr:1 row_mask:0xf", "row_shr:2 row_mask:0xf", "row_shr:4 row_mask:0xf", "row_shr:8 row_mask:0xf",
                "row_bcast:15 row_mask:0xa", "row_bcast:31 row_mask:0xc"):
        a("s_nop 1")
        a(f"v_max_f32_dpp v{N}, v{N}, v{N} {ctl} bank_mask:0xf")
    a("v_cmp_eq_u32 vcc, 63, v1")
    a("s_and_saveexec_b64 s[14:15], vcc")
    a(f"ds_max_u32 v{t[4]}, v{N}")
    a("s_mov_b64 exec, s[14:15]")
    a("s_waitcnt vmcnt(0)")
    for i in range(8):
        a(f"ds_write_b128 v{t[3]}, {v(stgV+4*i,4)} offset:{i*8192}")
    a(f"v_lshlrev_b32 v{vKa0}, 5, v2")
    a(f"v_lshl_add_u32 v{vKa0}, v3, 4, v{vKa0}")
    a(f"v_bfe_u32 v{t[1]}, v0, 2, 2")
    a(f"v_lshl_add_u32 v{t[1]}, v3, 2, v{t[1]}")
    a(f"v_lshlrev_b32 v{t[1]}, 5, v{t[1]}")
    a(f"v_and_b32 v{t[2]}, 3, v0")
    a(f"v_lshl_add_u32 v{t[1]}, v{t[2]}, 3, v{t[1]}")
    a(f"v_add_u32 v{t[1]}, 65536, v{t[1]}")
    a(f"v_and_b32 v{t[2]}, 15, v0")
    a(f"v_lshlrev_b32 v{t[2]}, 3, v{t[2]}")
    a(f"v_add_u32 v{t[2]}, 131072, v{t[2]}")
    a(f"v_bfe_u32 v{t[3]}, v0, 4, 1")
    a(f"v_cmp_eq_u32 vcc, 1, v{t[3]}")
    a(f"v_mov_b32 v{mA}, 4096")
    a(f"v_mov_b32 v{mB}, 0")
    a("s_nop 1")
    a(f"v_cndmask_b32 v{vVa0}, v{t[1]}, v{t[2]}, vcc")
    a(f"v_cndmask_b32 v{vVinc}, v{mA}, v{mB}, vcc")
    a(f"v_dot2_f32_bf16 v{mA}, v{vQ}, v{vQ}, 0")
    for r in range(1, 4):
        a(f"v_dot2_f32_bf16 v{mA}, v{vQ+r}, v{vQ+r}, v{mA}")
    a("s_nop 3")
    a(f"v_mov_b32 v{mB}, v{mA}")
    a("s_nop 1")
    a(f"v_permlane32_swap_b32 v{mA}, v{mB}")
    a("s_nop 1")
    a(f"v_add_f32 v{mA}, v{mA}, v{mB}")
    a("s_waitcnt lgkmcnt(0)")
    a("s_barrier")
    if STAMP: a("s_memtime s[74:75]")
    a(f"ds_read_b32 v{mB}, v{t[4]}")
    a("s_cmp_lt_u32 s5, 4")
    a("s_cbranch_scc1 K2_NOPRIO")
    a("s_setprio 1")
    a.label("K2_NOPRIO")
    a("s_waitcnt lgkmcnt(0)")
    a(f"v_mul_f32 v{mA}, v{mA}, v{mB}")
    a(f"v_sqrt_f32 v{mA}, v{mA}")
    a("s_nop 0")
    a(f"v_mul_f32 v{mA}, 0xbf802000, v{mA}")
    for i in range(16):
        a(f"v_mov_b32 v{C+i}, v{mA}")
    a("s_mov_b32 s17, 0")
    if STAMP: a("s_memtime s[76:77]")
    def kread(slot, tile_off):
        return f"ds_read_b128 {v(KF[slot],4)}, v{vKa} offset:{tile_off*1024}"
    def vreads(slot, tile_off):
        return [f"ds_read_b64_tr_b16 {v(VF[slot]+2*q,2)}, v{vVa} offset:{tile_off*1024 + (q//2)*512 + (q%2)*256}" for q in range(4)]
    a.label("K2_P2_ENTRY")
    a(f"v_mov_b32 v{vKa}, v{vKa0}")
    a(f"v_mov_b32 v{vVa}, v{vVa0}")
    for T in range(3):
        a(kread(T, T))
    for o in vreads(0, 0): a(o)
    a("s_waitcnt lgkmcnt(5)")
    a(f"v_mfma_f32_32x32x16_bf16 {v(S[0],16)}, {v(KF[0],4)}, {v(vQ,4)}, {v(C,16)}")
    a(f"v_mfma_f32_32x32x16_bf16 {v(S[1],16)}, {v(KF[1],4)}, {v(vQ,4)}, {v(C,16)}")
    for i in range(16):
        a(f"v_mov_b32 v{O+i}, 0")
    a("s_mov_b32 s16, 16")
    a.label("K2_P2")
    for u in range(4):
        if VARIANT == 0:
            a(kread((u + 3) % 4, u + 3))
            for o in vreads((u + 1) % 2, u + 1): a(o)
            a("s_waitcnt lgkmcnt(5)")
            a(f"v_mfma_f32_32x32x16_bf16 {v(S[(u+2)%4],16)}, {v(KF[(u+2)%4],4)}, {v(vQ,4)}, {v(C,16)}")
            for i in range(16):
                a(f"v_exp_f32 v{S[u]+i}, v{S[u]+i}")
            for i in range(8):
                a(f"v_cvt_pk_bf16_f32 v{P[u%2]+i}, v{S[u]+2*i}, v{S[u]+2*i+1}")
            a("s_nop 1")
            a(f"v_mfma_f32_32x32x16_bf16 {v(O,16)}, {v(VF[u%2],4)}, {v(P[u%2],4)}, {v(O,16)}")
            a(f"v_mfma_f32_32x32x16_bf16 {v(O,16)}, {v(VF[u%2]+4,4)}, {v(P[u%2]+4,4)}, {v(O,16)}")
        elif VARIANT == 1:
            for i in range(16):
                a(f"v_exp_f32 v{S[u]+i}, v{S[u]+i}")
            for i in range(8):
                a(f"v_cvt_pk_bf16_f32 v{P[u%2]+i}, v{S[u]+2*i}, v{S[u]+2*i+1}")
            a(kread((u + 3) % 4, u + 3))
            for o in vreads((u + 1) % 2, u + 1): a(o)
            a("s_waitcnt lgkmcnt(5)")
            a(f"v_mfma_f32_32x32x16_bf16 {v(S[(u+2)%4],16)}, {v(KF[(u+2)%4],4)}, {v(vQ,4)}, {v(C,16)}")
            a(f"v_mfma_f32_32x32x16_bf16 {v(O,16)}, {v(VF[u%2],4)}, {v(P[u%2],4)}, {v(O,16)}")
            a(f"v_mfma_f32_32x32x16_bf16 {v(O,16)}, {v(VF[u%2]+4,4)}, {v(P[u%2]+4,4)}, {v(O,16)}")
        elif VARIANT == 2:
            a(kread((u + 3) % 4, u + 3))
            for o in vreads((u + 1) % 2, u + 1): a(o)
            a("s_waitcnt lgkmcnt(5)")
            a(f"v_mfma_f32_32x32x16_bf16 {v(S[(u+2)%4],16)}, {v(KF[(u+2)%4],4)}, {v(vQ,4)}, {v(C,16)}")
            for i in range(8):
                a(f"v_exp_f32 v{S[u]+i}, v{S[u]+i}")
            for i in range(4):
                a(f"v_cvt_pk_bf16_f32 v{P[u%2]+i}, v{S[u]+2*i}, v{S[u]+2*i+1}")
            for i in range(8, 10):
                a(f"v_exp_f32 v{S[u]+i}, v{S[u]+i}")
            a(f"v_mfma_f32_32x32x16_bf16 {v(O,16)}, {v(VF[u%2],4)}, {v(P[u%2],4)}, {v(O,16)}")
            for i in range(10, 16):
                a(f"v_exp_f32 v{S[u]+i}, v{S[u]+i}")
            for i in range(4, 8):
                a(f"v_cvt_pk_bf16_f32 v{P[u%2]+i}, v{S[u]+2*i}, v{S[u]+2*i+1}")
            a("s_nop 1")
            a(f"v_mfma_f32_32x32x16_bf16 {v(O,16)}, {v(VF[u%2]+4,4)}, {v(P[u%2]+4,4)}, {v(O,16)}")
    a(f"v_add_u32 v{vKa}, 4096, v{vKa}")
    a(f"v_add_u32 v{vVa}, v{vVinc}, v{vVa}")
    a("s_sub_u32 s16, s16, 1")
    a(f"s_cmp_lg_u32 s16, {PRIO_SWITCH}")
    a("s_cbranch_scc1 K2_P2B")
    a("s_setprio 0")
    a.label("K2_P2B")
    a("s_cmp_lg_u32 s16, 0")
    a("s_cbranch_scc1 K2_P2")
    a("s_waitcnt lgkmcnt(0)")
    a("s_nop 15")
    a("s_nop 7")
    a("s_cmp_lg_u32 s17, 0")
    a("s_cbranch_scc1 K2_FIN")
    a(f"v_mov_b32 v{t[0]}, 0x12800000")
    a(f"v_cmp_nge_f32 vcc, v{O+8}, v{t[0]}")
    a("s_nop 4")
    a("s_cmp_eq_u64 vcc, 0")
    a("s_cbranch_scc1 K2_FIN")
    a("s_mov_b32 s17, 1")
    a(f"v_mov_b32 v{vKa}, v{vKa0}")
    a(f"v_mov_b32 v{mA}, 0xff800000")
    a(f"v_mov_b32 v{mB}, 0xff800000")
    for T in range(3):
        a(kread(T, T))
    a("s_waitcnt lgkmcnt(1)")
    a(f"v_mfma_f32_32x32x16_bf16 {v(S[0],16)}, {v(KF[0],4)}, {v(vQ,4)}, 0")
    a(f"v_mfma_f32_32x32x16_bf16 {v(S[1],16)}, {v(KF[1],4)}, {v(vQ,4)}, 0")
    a("s_mov_b32 s16, 16")
    a.label("K2_P1")
    for u in range(4):
        a(kread((u + 3) % 4, u + 3))
        a("s_waitcnt lgkmcnt(1)")
        a(f"v_mfma_f32_32x32x16_bf16 {v(S[(u+2)%4],16)}, {v(KF[(u+2)%4],4)}, {v(vQ,4)}, 0")
        for i in range(8):
            m = mA if i % 2 == 0 else mB
            a(f"v_max3_f32 v{m}, v{S[u]+2*i}, v{S[u]+2*i+1}, v{m}")
    a(f"v_add_u32 v{vKa}, 4096, v{vKa}")
    a("s_sub_u32 s16, s16, 1")
    a("s_cmp_lg_u32 s16, 0")
    a("s_cbranch_scc1 K2_P1")
    a(f"v_max_f32 v{mA}, v{mA}, v{mB}")
    a("s_nop 1")
    a(f"v_mov_b32 v{mB}, v{mA}")
    a("s_nop 1")
    a(f"v_permlane32_swap_b32 v{mA}, v{mB}")
    a("s_nop 1")
    a(f"v_max_f32 v{mA}, v{mA}, v{mB}")
    a("s_waitcnt lgkmcnt(0)")
    a("s_nop 15")
    for i in range(16):
        a(f"v_sub_f32 v{C+i}, 0, v{mA}")
    a("s_nop 7")
    a("s_branch K2_P2_ENTRY")
    a.label("K2_FIN")
    a(f"v_rcp_f32 v{t[0]}, v{O+8}")
    a("s_nop 1")
    for i in range(8):
        a(f"v_mul_f32 v{O+i}, v{O+i}, v{t[0]}")
    Pp = P[0]
    for i in range(4):
        a(f"v_cvt_pk_bf16_f32 v{Pp+i}, v{O+2*i}, v{O+2*i+1}")
    a(f"v_lshlrev_b32 v{t[1]}, 4, v1")
    a("s_lshr_b32 s7, s12, 5")
    a("s_lshl_b32 s7, s7, 5")
    a("s_add_u32 s7, s7, s3")
    a("s_lshl_b32 s7, s7, 10")
    a(f"s_add_u32 s7, s7, {WS_O}")
    a(f"v_permlane32_swap_b32 v{Pp+0}, v{Pp+2}")
    a(f"v_permlane32_swap_b32 v{Pp+1}, v{Pp+3}")
    a("s_nop 1")
    if not MERGE:
        a(f"buffer_store_dwordx4 {v(Pp,4)}, v{t[1]}, s[8:11], s7 offen")
    else:
        a(f"buffer_store_dwordx4 {v(Pp,4)}, v{t[1]}, s[8:11], s7 offen sc1")
        a(f"v_mov_b32 v{t[2]}, {KMAX_ADDR}")
        a(f"v_mov_b32 v{t[3]}, 1")
        a("s_waitcnt vmcnt(0)")
        a("v_cmp_eq_u32 vcc, 0, v1")
        a("s_and_saveexec_b64 s[14:15], vcc")
        a(f"ds_add_rtn_u32 v{t[4]}, v{t[2]}, v{t[3]} offset:64")
        a("s_waitcnt lgkmcnt(0)")
        a(f"v_readfirstlane_b32 s7, v{t[4]}")
        a("s_cmp_lg_u32 s7, 7")
        a("s_cbranch_scc1 K2_NOFLAG")
        a("s_lshl_b32 s7, s4, 7")
        a("s_lshl_b32 s13, s3, 2")
        a("s_add_u32 s7, s7, s13")
        a(f"s_add_u32 s7, s7, {WS_FLAG}")
        a(f"v_mov_b32 v{t[2]}, 0")
        a(f"buffer_store_dword v{t[3]}, v{t[2]}, s[8:11], s7 offen sc1")
        a.label("K2_NOFLAG")
        a("s_mov_b64 exec, s[14:15]")
    stamp_end(a)
    a("s_endpgm")

    a.label("K2_FFN")
    R2 = RegAlloc(4)
    vA = R2.alloc(); vB = R2.alloc(); vG = R2.alloc(); vS = R2.alloc(); vG2 = R2.alloc()
    facc = R2.alloc(16, 4)
    Pf = R2.alloc(8, 4)
    BBr = R2.alloc(16, 4)
    D = 8; D2 = 12
    slots = R2.alloc(8 * D2, 4)
    a("s_barrier")
    a("s_barrier")
    if STAMP:
        a("s_memtime s[74:75]")
        a("s_memtime s[76:77]")
    a("s_sub_u32 s5, s5, 8")
    a("s_and_b32 s3, s2, 7")
    a("s_lshl_b32 s3, s3, 2")
    a("s_lshr_b32 s4, s2, 6")
    a("s_add_u32 s3, s3, s4")
    a("s_lshr_b32 s4, s2, 3")
    a("s_and_b32 s4, s4, 7")
    a("s_lshl_b32 s3, s3, 6")
    a("s_and_b32 s6, s5, 1")
    a("s_lshl_b32 s6, s6, 5")
    a("s_add_u32 s3, s3, s6")
    a("s_lshl_b32 s4, s4, 6")
    a("s_lshr_b32 s6, s5, 1")
    a("s_lshl_b32 s6, s6, 5")
    a("s_add_u32 s4, s4, s6")
    a("s_lshr_b32 s6, s4, 5")
    a(f"s_mul_i32 s6, s6, {86*1024}")
    a(f"s_add_u32 s6, s6, {WS_W2T}")
    a(f"v_lshlrev_b32 v{vA}, 4, v1")
    a(f"v_add_u32 v{vA}, s6, v{vA}")
    a(f"v_add_u32 v{vS}, s3, v2")
    a("s_lshr_b32 s6, s3, 5")
    a(f"s_mul_i32 s6, s6, {86*1024}")
    a(f"s_add_u32 s6, s6, {WS_ACT}")
    a(f"v_lshlrev_b32 v{vB}, 4, v1")
    a(f"v_add_u32 v{vB}, s6, v{vB}")
    a(f"v_lshlrev_b32 v{vG}, 2, v{vS}")
    a(f"s_mov_b32 s7, {WS_G}")
    a(f"buffer_load_dword v{vG2}, v{vG}, s[8:11], s7 offen")
    a(f"s_mov_b32 s7, {WS_OMG}")
    a(f"buffer_load_dword v{vG}, v{vG}, s[8:11], s7 offen")
    direct_gemm(a, vA, vB, 86, D, slots, facc)
    a("s_nop 15")
    a("s_nop 7")
    for i in range(8):
        a(f"v_cvt_pk_bf16_f32 v{Pf+i}, v{facc+2*i}, v{facc+2*i+1}")
    for i in range(8):
        a(f"v_lshlrev_b32 v{facc+2*i}, 16, v{Pf+i}")
        a(f"v_and_b32 v{facc+2*i+1}, 0xffff0000, v{Pf+i}")
    for i in range(16):
        a(f"v_mul_f32 v{facc+i}, v{facc+i}, v{vG}")
    for i in range(8):
        a(f"v_cvt_pk_bf16_f32 v{Pf+i}, v{facc+2*i}, v{facc+2*i+1}")
    if not MERGE:
        a(f"v_lshlrev_b32 v{vS}, 10, v{vS}")
        a(f"v_lshl_add_u32 v{vS}, v3, 4, v{vS}")
        a("s_lshl_b32 s7, s4, 1")
        a(f"s_add_u32 s7, s7, {WS_BB}")
        a(f"v_permlane32_swap_b32 v{Pf+0}, v{Pf+2}")
        a(f"v_permlane32_swap_b32 v{Pf+1}, v{Pf+3}")
        a(f"v_permlane32_swap_b32 v{Pf+4}, v{Pf+6}")
        a(f"v_permlane32_swap_b32 v{Pf+5}, v{Pf+7}")
        a("s_nop 1")
        a(f"buffer_store_dwordx4 {v(Pf,4)}, v{vS}, s[8:11], s7 offen")
        a(f"buffer_store_dwordx4 {v(Pf+4,4)}, v{vS}, s[8:11], s7 offen offset:32")
    else:
        for i in range(8):
            a(f"v_lshlrev_b32 v{BBr+2*i}, 16, v{Pf+i}")
            a(f"v_and_b32 v{BBr+2*i+1}, 0xffff0000, v{Pf+i}")
        a("s_lshr_b32 s6, s3, 8")
        a("s_lshl_b32 s6, s6, 7")
        a(f"s_add_u32 s6, s6, {WS_FLAG}")
        a(f"v_lshlrev_b32 v{vA}, 2, v2")
        a("s_barrier")
        a.label("K2_POLL")
        a(f"buffer_load_dword v{vB}, v{vA}, s[8:11], s6 offen sc1")
        a("s_waitcnt vmcnt(0)")
        a(f"v_cmp_ne_u32 vcc, 1, v{vB}")
        a("s_nop 4")
        a("s_cmp_eq_u64 vcc, 0")
        a("s_cbranch_scc1 K2_POLLDONE")
        a("s_sleep 2")
        a("s_branch K2_POLL")
        a.label("K2_POLLDONE")
        if STAMP: a("s_memtime s[74:75]")
        if STAMP: a("s_memtime s[76:77]")
        a("s_lshr_b32 s6, s4, 5")
        a(f"s_lshl_b32 s6, s6, 15")
        a(f"s_add_u32 s6, s6, {WS_WOT}")
        a(f"v_lshlrev_b32 v{vA}, 4, v1")
        a(f"v_add_u32 v{vA}, s6, v{vA}")
        a("s_lshr_b32 s6, s3, 5")
        a(f"s_lshl_b32 s6, s6, 15")
        a(f"s_add_u32 s6, s6, {WS_O}")
        a(f"v_lshlrev_b32 v{vB}, 4, v1")
        a(f"v_add_u32 v{vB}, s6, v{vB}")
        direct_gemm(a, vA, vB, 32, D2, slots, facc)
        a("s_nop 15")
        a("s_nop 7")
        for i in range(8):
            a(f"v_cvt_pk_bf16_f32 v{Pf+i}, v{facc+2*i}, v{facc+2*i+1}")
        for i in range(8):
            a(f"v_lshlrev_b32 v{facc+2*i}, 16, v{Pf+i}")
            a(f"v_and_b32 v{facc+2*i+1}, 0xffff0000, v{Pf+i}")
        for i in range(16):
            a(f"v_mul_f32 v{facc+i}, v{facc+i}, v{vG2}")
        for i in range(8):
            a(f"v_cvt_pk_bf16_f32 v{Pf+i}, v{facc+2*i}, v{facc+2*i+1}")
        for i in range(8):
            a(f"v_lshlrev_b32 v{facc+2*i}, 16, v{Pf+i}")
            a(f"v_and_b32 v{facc+2*i+1}, 0xffff0000, v{Pf+i}")
        for i in range(16):
            a(f"v_add_f32 v{facc+i}, v{facc+i}, v{BBr+i}")
        for i in range(8):
            a(f"v_cvt_pk_bf16_f32 v{Pf+i}, v{facc+2*i}, v{facc+2*i+1}")
        a(f"v_lshlrev_b32 v{vS}, 10, v{vS}")
        a(f"v_lshl_add_u32 v{vS}, v3, 4, v{vS}")
        a("s_lshl_b32 s7, s4, 1")
        a(f"v_permlane32_swap_b32 v{Pf+0}, v{Pf+2}")
        a(f"v_permlane32_swap_b32 v{Pf+1}, v{Pf+3}")
        a(f"v_permlane32_swap_b32 v{Pf+4}, v{Pf+6}")
        a(f"v_permlane32_swap_b32 v{Pf+5}, v{Pf+7}")
        a("s_nop 1")
        a(f"buffer_store_dwordx4 {v(Pf,4)}, v{vS}, s[44:47], s7 offen")
        a(f"buffer_store_dwordx4 {v(Pf+4,4)}, v{vS}, s[44:47], s7 offen offset:32")
    stamp_end(a)
    a.label("K2_END")
    a("s_endpgm")
    return a.text(), max(nv_att, R2.next)

K3_LDS = 131072
def gen_k3():
    a = Asm()
    R2 = RegAlloc(4)
    vL = R2.alloc(); vRA = R2.alloc(); vRB = R2.alloc(); vG = R2.alloc(); vS = R2.alloc()
    facc = R2.alloc(16, 4)
    Pf = R2.alloc(8, 4)
    BB = R2.alloc(8, 4)
    T = R2.alloc(16, 4)
    FR = [R2.alloc(8, 4) for _ in range(4)]
    a("s_cmp_ge_u32 s2, 256")
    a("s_cbranch_scc1 K3_END")
    if STAMP:
        a("s_memtime s[72:73]")
        a("s_memrealtime s[90:91]")
    a("s_load_dwordx2 s[52:53], s[0:1], 80")
    a("s_load_dwordx2 s[54:55], s[0:1], 64")
    a("v_lshrrev_b32 v1, 6, v0")
    a("s_nop 0")
    a("v_readfirstlane_b32 s5, v1")
    a("v_and_b32 v1, 63, v0")
    a("v_and_b32 v2, 31, v0")
    a("v_bfe_u32 v3, v0, 5, 1")
    a(f"v_lshlrev_b32 v{vL}, 4, v1")
    a("s_and_b32 s3, s2, 7")
    a("s_lshl_b32 s3, s3, 2")
    a("s_lshr_b32 s4, s2, 6")
    a("s_add_u32 s3, s3, s4")
    a("s_lshr_b32 s4, s2, 3")
    a("s_and_b32 s4, s4, 7")
    a("s_lshl_b32 s6, s4, 1")
    a("s_add_u32 s6, s6, s5")
    a("s_lshl_b32 s6, s6, 15")
    a(f"s_add_u32 s6, s6, {WS_WOT}")
    a("s_lshl_b32 s7, s3, 1")
    a("s_add_u32 s7, s7, s5")
    a("s_sub_u32 s7, s7, 2")
    a("s_lshl_b32 s7, s7, 15")
    a(f"s_add_u32 s7, s7, {WS_O}")
    a("s_cmp_lt_u32 s5, 2")
    a("s_cselect_b32 s18, s6, s7")
    a("s_lshl_b32 s19, s5, 15")
    a("s_waitcnt lgkmcnt(0)")
    srd(a, 8, 52, WS_SIZE)
    srd(a, 12, 54, 2097152)
    for ks in range(32):
        a(f"s_add_u32 m0, s19, {ks*1024}")
        a(f"s_add_u32 s20, s18, {ks*1024}")
        a(f"buffer_load_dwordx4 v{vL}, s[8:11], s20 offen lds")
    a("s_lshl_b32 s3, s3, 6")
    a("s_and_b32 s6, s5, 1")
    a("s_lshl_b32 s6, s6, 5")
    a("s_add_u32 s3, s3, s6")
    a("s_lshl_b32 s4, s4, 6")
    a("s_lshr_b32 s6, s5, 1")
    a("s_lshl_b32 s6, s6, 5")
    a("s_add_u32 s4, s4, s6")
    a(f"v_add_u32 v{vS}, s3, v2")
    a(f"v_lshlrev_b32 v{vG}, 2, v{vS}")
    a(f"s_mov_b32 s7, {WS_G}")
    a(f"buffer_load_dword v{vG}, v{vG}, s[8:11], s7 offen")
    a(f"v_lshlrev_b32 v{vS}, 10, v{vS}")
    a(f"v_lshl_add_u32 v{vS}, v3, 4, v{vS}")
    a("s_lshl_b32 s16, s4, 1")
    a(f"s_add_u32 s17, s16, {WS_BB}")
    a(f"buffer_load_dwordx4 {v(BB,4)}, v{vS}, s[8:11], s17 offen")
    a(f"buffer_load_dwordx4 {v(BB+4,4)}, v{vS}, s[8:11], s17 offen offset:32")
    a("s_lshr_b32 s6, s5, 1")
    a("s_lshl_b32 s6, s6, 15")
    a(f"v_add_u32 v{vRA}, s6, v{vL}")
    a("s_and_b32 s6, s5, 1")
    a("s_add_u32 s6, s6, 2")
    a("s_lshl_b32 s6, s6, 15")
    a(f"v_add_u32 v{vRB}, s6, v{vL}")
    if STAMP: a("s_memtime s[74:75]")
    def rd(ks):
        f = FR[ks % 4]
        a(f"ds_read_b128 {v(f,4)}, v{vRA} offset:{ks*1024}")
        a(f"ds_read_b128 {v(f+4,4)}, v{vRB} offset:{ks*1024}")
    for c in range(4):
        a(f"s_waitcnt vmcnt({3 + 32 - 8*(c+1)})")
        a("s_barrier")
        rd(8*c); rd(8*c+1); rd(8*c+2)
        for k in range(8):
            ks = 8*c + k
            if k + 3 < 8:
                rd(ks + 3)
                a("s_waitcnt lgkmcnt(6)")
            else:
                a(f"s_waitcnt lgkmcnt({2*(7-k)})")
            f = FR[ks % 4]
            cc = "0" if ks == 0 else v(facc, 16)
            a(f"v_mfma_f32_32x32x16_bf16 {v(facc,16)}, {v(f,4)}, {v(f+4,4)}, {cc}")
    if STAMP: a("s_memtime s[76:77]")
    a("s_waitcnt vmcnt(0)")
    a("s_nop 15")
    a("s_nop 7")
    for i in range(8):
        a(f"v_cvt_pk_bf16_f32 v{Pf+i}, v{facc+2*i}, v{facc+2*i+1}")
    for i in range(8):
        a(f"v_lshlrev_b32 v{facc+2*i}, 16, v{Pf+i}")
        a(f"v_and_b32 v{facc+2*i+1}, 0xffff0000, v{Pf+i}")
    for i in range(16):
        a(f"v_mul_f32 v{facc+i}, v{facc+i}, v{vG}")
    for i in range(8):
        a(f"v_cvt_pk_bf16_f32 v{Pf+i}, v{facc+2*i}, v{facc+2*i+1}")
    a("s_nop 1")
    a(f"v_permlane32_swap_b32 v{Pf+0}, v{Pf+2}")
    a(f"v_permlane32_swap_b32 v{Pf+1}, v{Pf+3}")
    a(f"v_permlane32_swap_b32 v{Pf+4}, v{Pf+6}")
    a(f"v_permlane32_swap_b32 v{Pf+5}, v{Pf+7}")
    a("s_nop 1")
    for i in range(8):
        a(f"v_lshlrev_b32 v{facc+2*i}, 16, v{Pf+i}")
        a(f"v_and_b32 v{facc+2*i+1}, 0xffff0000, v{Pf+i}")
        a(f"v_lshlrev_b32 v{T+2*i}, 16, v{BB+i}")
        a(f"v_and_b32 v{T+2*i+1}, 0xffff0000, v{BB+i}")
    for i in range(16):
        a(f"v_add_f32 v{facc+i}, v{facc+i}, v{T+i}")
    for i in range(8):
        a(f"v_cvt_pk_bf16_f32 v{Pf+i}, v{facc+2*i}, v{facc+2*i+1}")
    a(f"buffer_store_dwordx4 {v(Pf,4)}, v{vS}, s[12:15], s16 offen")
    a(f"buffer_store_dwordx4 {v(Pf+4,4)}, v{vS}, s[12:15], s16 offen offset:32")
    if STAMP:
        a("s_waitcnt vmcnt(0)")
        a("s_memtime s[78:79]")
        a("s_memrealtime s[92:93]")
        a("s_waitcnt lgkmcnt(0)")
        a("s_sub_u32 s74, s74, s72")
        a("s_sub_u32 s76, s76, s72")
        a("s_sub_u32 s78, s78, s72")
        a("v_mov_b32 v4, s90")
        a("v_mov_b32 v5, s92")
        a("v_mov_b32 v6, s74")
        a("v_mov_b32 v7, s76")
        a("v_mov_b32 v8, s78")
        a("s_lshl_b32 s87, s2, 2")
        a("s_add_u32 s87, s87, s5")
        a("s_lshl_b32 s87, s87, 5")
        a("s_add_u32 s87, s87, 0x1500000")
        a("v_mov_b32 v9, 0")
        a("buffer_store_dwordx4 v[4:7], v9, s[8:11], s87 offen")
        a("buffer_store_dword v8, v9, s[8:11], s87 offen offset:16")
    a.label("K3_END")
    a("s_endpgm")
    return a.text(), R2.next
```

```python
import sys
sys.path.insert(0, "gen")
from asmlib import *
from k1 import gen_k1, K1_LDS
import k1 as _k1
K1T = getattr(_k1, "K1_THREADS", 256)
from k2 import gen_k2, gen_k3, K2_LDS, K3_LDS, MERGE

t1, n1 = gen_k1()
t2, n2 = gen_k2()
t3, n3 = gen_k3()
hdr = open("gated_mix__mha_block__dense_activation_mish__prompt.s.ref").read().split("; Override")[0]
out = hdr
out += f"; @launch kernel=gm_k1_kernel grid=(256,1,1) block=({K1T},1,1) lds={K1_LDS}\n"
out += f"; @launch kernel=gm_k2_kernel grid=(256,1,1) block=(768,1,1) lds={K2_LDS}\n"
if not MERGE:
    out += f"; @launch kernel=gm_k3_kernel grid=(256,1,1) block=(256,1,1) lds={K3_LDS}\n"
out += '.amdgcn_target "amdgcn-amd-amdhsa--gfx950"\n.text\n'
out += kernel_header("gm_k1_kernel") + t1
out += kernel_header("gm_k2_kernel") + t2
if not MERGE:
    out += kernel_header("gm_k3_kernel") + t3
out += '.section .rodata,"a"\n.p2align 6\n'
out += kernel_desc("gm_k1_kernel", n1)
out += ".p2align 6\n" + kernel_desc("gm_k2_kernel", n2)
if not MERGE:
    out += ".p2align 6\n" + kernel_desc("gm_k3_kernel", n3)
dst = sys.argv[1] if len(sys.argv) > 1 else "gated_mix__mha_block__dense_activation_mish__prompt.s"
open(dst, "w").write(out)
print("vgprs", n1, n2, n3, "bytes", len(out))
```

```python
from asmlib import *
from layout import *
import struct, os
STAMP = os.environ.get('STAMP') == '1'

XB = 16384
WB = 12288
NBUF = int(os.environ.get('NBUF', '3'))
WQ0 = NBUF * XB
WF0 = WQ0 + NBUF * WB
K1_LDS = WF0 + NBUF * WB
WSTR = 192
QSCALE = 0.25 * 1.4426950408889634

def f2u(f):
    return struct.unpack("<I", struct.pack("<f", f))[0]

def acc_(i, n=1):
    return f"a{i}" if n == 1 else f"a[{i}:{i+n-1}]"

def gen_k1():
    a = Asm()
    R = RegAlloc(4)
    vXg = R.alloc(4)
    vWq = R.alloc(3); vWf = R.alloc(3)
    vXr = R.alloc(4)
    vWrQ = R.alloc(); vWrF = R.alloc()
    vTok = R.alloc()
    vSideA = R.alloc(); vSideB = R.alloc(); vBias = R.alloc()
    vt = [R.alloc() for _ in range(6)]
    stg = [R.alloc(20, 4), R.alloc(24, 4)]
    frag = [R.alloc(28, 4), R.alloc(28, 4)]
    ACC = R.alloc(96, 4)
    nvgpr = R.next
    sideT = stg[0]; sideX = stg[0] + 8; sideW = stg[0] + 16
    biasR = stg[1]
    NACC = 0

    a("s_cmp_ge_u32 s2, 256")
    a("s_cbranch_scc1 K1_END2")
    if STAMP:
        a("s_memtime s[72:73]")
        a("s_load_dwordx2 s[84:85], s[0:1], 72")
    a("s_load_dwordx16 s[36:51], s[0:1], 0")
    a("s_load_dwordx2 s[52:53], s[0:1], 80")
    a("s_and_b32 s3, s2, 15")
    a("s_lshr_b32 s4, s2, 4")
    a("v_lshrrev_b32 v1, 6, v0")
    a("s_nop 0")
    a("v_readfirstlane_b32 s5, v1")
    a("v_and_b32 v1, 63, v0")
    a("v_and_b32 v2, 31, v0")
    a("v_bfe_u32 v3, v0, 5, 1")
    t = vt
    a(f"v_lshrrev_b32 v{t[0]}, 3, v1")
    a(f"v_and_b32 v{t[1]}, 7, v1")
    a(f"v_lshrrev_b32 v{t[2]}, 1, v{t[0]}")
    a("s_lshl_b32 s60, s3, 7")
    a("s_lshl_b32 s61, s5, 5")
    a("s_add_u32 s60, s60, s61")
    a(f"v_add_u32 v{t[3]}, s60, v{t[0]}")
    a(f"v_lshlrev_b32 v{t[3]}, 10, v{t[3]}")
    for i in range(4):
        a(f"v_xor_b32 v{t[4]}, {4*(i&1)}, v{t[2]}")
        a(f"v_xor_b32 v{t[4]}, v{t[4]}, v{t[1]}")
        a(f"v_lshl_add_u32 v{t[4]}, v{t[4]}, 4, v{t[3]}")
        a(f"v_add_u32 v{vXg+i}, {8192*i}, v{t[4]}")
    a("s_mul_i32 s60, s5, 192")
    a("s_mul_i32 s61, s4, 192")
    for i in range(3):
        a(f"v_add_u32 v{t[0]}, s60, v1")
        a(f"v_add_u32 v{t[0]}, {64*i}, v{t[0]}")
        a(f"v_mul_u32_u24 v{t[1]}, 43691, v{t[0]}")
        a(f"v_lshrrev_b32 v{t[1]}, 19, v{t[1]}")
        a(f"v_mul_u32_u24 v{t[2]}, 12, v{t[1]}")
        a(f"v_sub_u32 v{t[2]}, v{t[0]}, v{t[2]}")
        a(f"v_lshlrev_b32 v{t[2]}, 4, v{t[2]}")
        a(f"v_add_u32 v{t[2]}, s61, v{t[2]}")
        a(f"v_mul_u32_u24 v{t[3]}, 3072, v{t[1]}")
        a(f"v_add_u32 v{vWq+i}, v{t[3]}, v{t[2]}")
        a(f"v_mul_u32_u24 v{t[3]}, 2752, v{t[1]}")
        a(f"v_add_u32 v{vWf+i}, v{t[3]}, v{t[2]}")
    a("s_lshl_b32 s67, s5, 12")
    a("s_mul_i32 s65, s5, 3072")
    a("s_waitcnt lgkmcnt(0)")
    srd(a, 8, 36, 2097152)
    srd(a, 12, 38, 1572864)
    srd(a, 16, 44, 1409024)

    def issue_loads(st):
        b = st % NBUF
        a(f"s_mov_b32 s60, {st*64*3072}")
        a(f"s_mov_b32 s61, {st*64*2752}")
        a(f"s_mov_b32 s62, {st*128}")
        for i in range(4):
            a(f"s_add_u32 m0, s67, {b*XB + i*1024}")
            a("s_nop 0")
            a(f"buffer_load_dwordx4 v{vXg+i}, s[8:11], s62 offen lds")
        for i in range(3):
            a(f"s_add_u32 m0, s65, {WQ0 + b*WB + i*1024}")
            a("s_nop 0")
            a(f"buffer_load_dwordx4 v{vWq+i}, s[12:15], s60 offen lds")
        for i in range(3):
            a(f"s_add_u32 m0, s65, {WF0 + b*WB + i*1024}")
            a("s_nop 0")
            a(f"buffer_load_dwordx4 v{vWf+i}, s[16:19], s61 offen lds")
    for st0 in range(NBUF - 1):
        issue_loads(st0)

    srd(a, 20, 52, WS_SIZE)
    srd(a, 24, 46, 2752)
    srd(a, 32, 50, 1024)
    a("s_sub_u32 s54, s2, 172")
    a("s_mov_b32 s70, 524288")
    a("s_cmp_lt_u32 s2, 172")
    a("s_cselect_b32 s28, s48, s40")
    a("s_cselect_b32 s29, s49, s41")
    a("s_cselect_b32 s30, 1409024, s70")
    a("s_cselect_b32 s54, s2, s54")
    a("s_and_b32 s29, s29, 0xffff")
    a("s_mov_b32 s31, 0x00020000")
    a("s_lshr_b32 s55, s54, 2")
    a("s_and_b32 s56, s54, 3")
    a(f"v_lshrrev_b32 v{t[0]}, 4, v0")
    a(f"v_and_b32 v{t[1]}, 15, v0")
    a(f"v_lshlrev_b32 v{t[0]}, 10, v{t[0]}")
    a(f"v_lshl_add_u32 v{vSideA}, v{t[1]}, 4, v{t[0]}")
    a("s_lshl_b32 s57, s55, 15")
    a("s_lshl_b32 s58, s56, 8")
    a("s_add_u32 s57, s57, s58")
    a("s_add_u32 s58, s57, 16384")
    a(f"v_lshlrev_b32 v{vSideB}, 4, v1")
    a("s_lshl_b32 s59, s2, 3")
    a("s_lshl_b32 s60, s5, 1")
    a("s_add_u32 s59, s59, s60")
    a("s_lshl_b32 s68, s59, 10")
    a("s_add_u32 s69, s68, 1024")
    a(f"v_lshlrev_b32 v{vBias}, 3, v3")
    a("s_mul_i32 s71, s4, 192")
    a("s_lshl_b32 s60, s5, 5")
    a(f"v_add_u32 v{t[0]}, s60, v2")
    a(f"v_lshlrev_b32 v{t[0]}, 7, v{t[0]}")
    a(f"v_bfe_u32 v{t[1]}, v2, 1, 3")
    for ks in range(4):
        a(f"v_add_u32 v{t[2]}, {2*ks}, v3")
        a(f"v_xor_b32 v{t[2]}, v{t[2]}, v{t[1]}")
        a(f"v_lshl_add_u32 v{vXr+ks}, v{t[2]}, 4, v{t[0]}")
    a(f"v_bfe_u32 v{t[0]}, v0, 2, 2")
    a(f"v_lshl_add_u32 v{t[0]}, v3, 3, v{t[0]}")
    a(f"v_mul_u32_u24 v{t[0]}, {WSTR}, v{t[0]}")
    a(f"v_and_b32 v{t[1]}, 3, v0")
    a(f"v_lshlrev_b32 v{t[1]}, 3, v{t[1]}")
    a(f"v_bfe_u32 v{t[2]}, v0, 4, 1")
    a(f"v_lshl_add_u32 v{t[1]}, v{t[2]}, 5, v{t[1]}")
    a(f"v_add_u32 v{t[0]}, v{t[0]}, v{t[1]}")
    a(f"v_add_u32 v{vWrQ}, {WQ0}, v{t[0]}")
    a(f"v_add_u32 v{vWrF}, {WF0}, v{t[0]}")
    a("s_lshl_b32 s60, s3, 7")
    a("s_lshl_b32 s61, s5, 5")
    a("s_add_u32 s66, s60, s61")
    a(f"v_add_u32 v{vTok}, s66, v2")
    a("s_mov_b32 s80, 2.0")
    a("s_mov_b32 s81, 2.0")
    a("s_mov_b32 s82, 0x3fb8aa3b")
    a("s_mov_b32 s83, 0x3fb8aa3b")

    def read_ops(j):
        st, ks = j // 4, j % 4
        b = st % NBUF; f = frag[j % 2]
        ops = [f"ds_read_b128 {v(f+24,4)}, v{vXr+ks} offset:{b*XB}"]
        for ft in range(6):
            base = vWrQ if ft < 3 else vWrF
            for half in range(2):
                ops.append(f"ds_read_b64_tr_b16 {v(f+4*ft+2*half,2)}, v{base} offset:{b*WB + ks*16*WSTR + half*4*WSTR + (ft%3)*64}")
        return ops
    def mfma_ops(j):
        f = frag[j % 2]
        ops = []
        for ft in range(6):
            d = ACC + 16 * ft
            c = "0" if j == 0 else v(d, 16)
            ops.append(f"v_mfma_f32_32x32x16_bf16 {v(d,16)}, {v(f+4*ft,4)}, {v(f+24,4)}, {c}")
        return ops

    a(f"s_waitcnt vmcnt({10*(NBUF-2)})")
    a("s_barrier")
    if STAMP: a("s_memtime s[74:75]")
    for o in read_ops(0): a(o)
    for j in range(32):
        st, ks = j // 4, j % 4
        a("s_waitcnt lgkmcnt(0)")
        other = []
        if ks == 3 and st < 7:
            a(f"s_waitcnt vmcnt({10 * max(0, min(st + NBUF - 1, 7) - (st + 1))})")
            a("s_barrier")
        if j < 31:
            other += read_ops(j + 1)
        if ks == 0 and st + NBUF - 1 <= 7:
            issue_loads(st + NBUF - 1)
        if j == 28:
            a(f"buffer_load_dwordx4 {v(sideT,4)}, v{vSideA}, s[28:31], s57 offen")
            a(f"buffer_load_dwordx4 {v(sideT+4,4)}, v{vSideA}, s[28:31], s58 offen")
            a(f"buffer_load_dwordx4 {v(sideX,4)}, v{vSideB}, s[8:11], s68 offen")
            a(f"buffer_load_dwordx4 {v(sideX+4,4)}, v{vSideB}, s[8:11], s69 offen")
            a(f"buffer_load_dwordx4 {v(sideW,4)}, v{vSideB}, s[32:35], 0 offen")
            for jf in range(3):
                for q in range(4):
                    a(f"buffer_load_dwordx2 {v(biasR+8*jf+2*q,2)}, v{vBias}, s[24:27], s71 offen offset:{64*jf+16*q}")
        m = mfma_ops(j)
        per = (len(other) + 5) // 6
        oi = 0
        for k in range(6):
            a(m[k])
            for _ in range(per):
                if oi < len(other):
                    a(other[oi]); oi += 1
    if STAMP: a("s_memtime s[76:77]")
    TS = 320
    a("s_barrier")
    a(f"v_lshrrev_b32 v{t[0]}, 4, v0")
    a(f"v_and_b32 v{t[1]}, 15, v0")
    a(f"v_mul_u32_u24 v{t[0]}, {TS}, v{t[0]}")
    a(f"v_lshl_add_u32 v{t[0]}, v{t[1]}, 4, v{t[0]}")
    a("s_waitcnt vmcnt(15)")
    a(f"ds_write_b128 v{t[0]}, {v(sideT,4)}")
    a(f"ds_write_b128 v{t[0]}, {v(sideT+4,4)} offset:{16*TS}")
    a("s_nop 15")
    tmp = frag[0]
    P = tmp; T = tmp + 8; U = tmp + 24; BU = tmp + 40
    vA = vt[0]

    def qkv_tile(ft):
        a(f"s_mul_i32 s60, s4, 3")
        a(f"s_add_u32 s60, s60, {ft}")
        a("s_lshr_b32 s61, s60, 4")
        a("s_and_b32 s62, s60, 15")
        a("s_lshl_b32 s63, s61, 21")
        a("s_lshl_b32 s62, s62, 17")
        a("s_add_u32 s63, s63, s62")
        a("s_add_u32 s64, s63, 65536")
        a("s_cmp_eq_u32 s61, 0")
        a(f"s_cselect_b32 s86, {f2u(QSCALE)}, 1.0")
        a(f"s_cselect_b32 s87, {f2u(QSCALE)}, 1.0")
        D = ACC + 16 * ft
        for i in range(8):
            a(f"v_pk_mul_f32 {v(D+2*i,2)}, {v(D+2*i,2)}, s[86:87]")
        for i in range(8):
            a(f"v_cvt_pk_bf16_f32 v{P+i}, v{D+2*i}, v{D+2*i+1}")
        a(f"v_lshlrev_b32 v{vA}, 5, v{vTok}")
        a(f"v_lshl_add_u32 v{vA}, v3, 4, v{vA}")
        a(f"v_permlane32_swap_b32 v{P+0}, v{P+2}")
        a(f"v_permlane32_swap_b32 v{P+1}, v{P+3}")
        a(f"v_permlane32_swap_b32 v{P+4}, v{P+6}")
        a("s_nop 0")
        a(f"v_permlane32_swap_b32 v{P+5}, v{P+7}")
        a("s_nop 1")
        a(f"buffer_store_dwordx4 {v(P,4)}, v{vA}, s[20:23], s63 offen")
        a(f"buffer_store_dwordx4 {v(P+4,4)}, v{vA}, s[20:23], s64 offen")
        a("s_nop 1")

    def ffn_tile(jf):
        ft = 3 + jf
        lab = a.newlabel("K1_SKIPF")
        a(f"s_mul_i32 s60, s4, 3")
        a(f"s_add_u32 s60, s60, {jf}")
        a("s_cmp_ge_u32 s60, 43")
        a(f"s_cbranch_scc1 {lab}")
        a("s_lshl_b32 s62, s60, 11")
        a(f"s_add_u32 s61, s62, {WS_ACT}")
        for q in range(8):
            a(f"v_lshlrev_b32 v{BU+2*q}, 16, v{biasR+8*jf+q}")
            a(f"v_and_b32 v{BU+2*q+1}, 0xffff0000, v{biasR+8*jf+q}")
        D = ACC + 16 * ft
        for i in range(8):
            a(f"v_pk_add_f32 {v(D+2*i,2)}, {v(D+2*i,2)}, {v(BU+2*i,2)}")
        for i in range(16):
            a(f"v_min_f32 v{T+i}, 0x41a00000, v{D+i}")
        for i in range(8):
            a(f"v_pk_mul_f32 {v(T+2*i,2)}, {v(T+2*i,2)}, s[82:83]")
        for i in range(16):
            a(f"v_exp_f32 v{T+i}, v{T+i}")
        for i in range(8):
            a(f"v_pk_add_f32 {v(U+2*i,2)}, {v(T+2*i,2)}, s[80:81]")
        for i in range(8):
            a(f"v_pk_mul_f32 {v(T+2*i,2)}, {v(T+2*i,2)}, {v(U+2*i,2)}")
        for i in range(8):
            a(f"v_pk_add_f32 {v(U+2*i,2)}, {v(T+2*i,2)}, s[80:81]")
        for i in range(16):
            a(f"v_rcp_f32 v{U+i}, v{U+i}")
        for i in range(8):
            a(f"v_pk_mul_f32 {v(T+2*i,2)}, {v(T+2*i,2)}, {v(U+2*i,2)}")
        for i in range(8):
            a(f"v_pk_mul_f32 {v(D+2*i,2)}, {v(D+2*i,2)}, {v(T+2*i,2)}")
        for i in range(8):
            a(f"v_cvt_pk_bf16_f32 v{P+i}, v{D+2*i}, v{D+2*i+1}")
        a(f"s_lshr_b32 s62, s66, 5")
        a(f"s_mul_i32 s62, s62, {86*1024}")
        a("s_add_u32 s61, s61, s62")
        a(f"v_permlane32_swap_b32 v{P+0}, v{P+2}")
        a(f"v_permlane32_swap_b32 v{P+1}, v{P+3}")
        a(f"v_permlane32_swap_b32 v{P+4}, v{P+6}")
        a(f"v_permlane32_swap_b32 v{P+5}, v{P+7}")
        a("s_nop 1")
        a(f"buffer_store_dwordx4 {v(P,4)}, v{vSideB}, s[20:23], s61 offen")
        a(f"buffer_store_dwordx4 {v(P+4,4)}, v{vSideB}, s[20:23], s61 offen offset:1024")
        a("s_nop 1")
        a.label(lab)

    for ft in range(3):
        qkv_tile(ft)
    a("s_waitcnt vmcnt(6)")
    for jf in range(3):
        ffn_tile(jf)
    if STAMP: a("s_memtime s[78:79]")

    G = tmp
    for i in range(4):
        a(f"v_lshlrev_b32 v{G+2*i}, 16, v{sideW+i}")
        a(f"v_and_b32 v{G+2*i+1}, 0xffff0000, v{sideW+i}")
    S = [vt[2], vt[3]]
    for tk in range(2):
        X = G + 8
        for i in range(4):
            a(f"v_lshlrev_b32 v{X+2*i}, 16, v{sideX+4*tk+i}")
            a(f"v_and_b32 v{X+2*i+1}, 0xffff0000, v{sideX+4*tk+i}")
        for i in range(8):
            a(f"v_mul_f32 v{X+i}, v{X+i}, v{G+i}")
        for i in range(4):
            a(f"v_cvt_pk_bf16_f32 v{X+8+i}, v{X+2*i}, v{X+2*i+1}")
        for i in range(4):
            a(f"v_lshlrev_b32 v{X+2*i}, 16, v{X+8+i}")
            a(f"v_and_b32 v{X+2*i+1}, 0xffff0000, v{X+8+i}")
        a(f"v_add_f32 v{X}, v{X}, v{X+1}")
        a(f"v_add_f32 v{X+2}, v{X+2}, v{X+3}")
        a(f"v_add_f32 v{X+4}, v{X+4}, v{X+5}")
        a(f"v_add_f32 v{X+6}, v{X+6}, v{X+7}")
        a(f"v_add_f32 v{X}, v{X}, v{X+2}")
        a(f"v_add_f32 v{X+4}, v{X+4}, v{X+6}")
        a(f"v_add_f32 v{S[tk]}, v{X}, v{X+4}")
    for ctl in ("row_shr:1 row_mask:0xf bank_mask:0xf bound_ctrl:0", "row_shr:2 row_mask:0xf bank_mask:0xf bound_ctrl:0",
                "row_shr:4 row_mask:0xf bank_mask:0xf bound_ctrl:0", "row_shr:8 row_mask:0xf bank_mask:0xf bound_ctrl:0",
                "row_bcast:15 row_mask:0xa bank_mask:0xf", "row_bcast:31 row_mask:0xc bank_mask:0xf"):
        a("s_nop 1")
        a(f"v_add_f32_dpp v{S[0]}, v{S[0]}, v{S[0]} {ctl}")
        a(f"v_add_f32_dpp v{S[1]}, v{S[1]}, v{S[1]} {ctl}")
    a(f"v_cvt_pk_bf16_f32 v{G}, v{S[0]}, v{S[1]}")
    a(f"v_lshlrev_b32 v{G+1}, 16, v{G}")
    a(f"v_and_b32 v{G+2}, 0xffff0000, v{G}")
    for i in (1, 2):
        a(f"v_mul_f32 v{G+i}, 0xbfb8aa3b, v{G+i}")
    for i in (1, 2):
        a(f"v_exp_f32 v{G+i}, v{G+i}")
    a("s_nop 0")
    for i in (1, 2):
        a(f"v_add_f32 v{G+i}, 1.0, v{G+i}")
    for i in (1, 2):
        a(f"v_rcp_f32 v{G+i}, v{G+i}")
    a("s_nop 0")
    a(f"v_cvt_pk_bf16_f32 v{G}, v{G+1}, v{G+2}")
    a(f"v_lshlrev_b32 v{G+4}, 16, v{G}")
    a(f"v_and_b32 v{G+5}, 0xffff0000, v{G}")
    a(f"v_sub_f32 v{G+6}, 1.0, v{G+4}")
    a(f"v_sub_f32 v{G+7}, 1.0, v{G+5}")
    a(f"v_cvt_pk_bf16_f32 v{G}, v{G+6}, v{G+7}")
    a(f"v_lshlrev_b32 v{G+6}, 16, v{G}")
    a(f"v_and_b32 v{G+7}, 0xffff0000, v{G}")
    a("s_lshl_b32 s60, s59, 2")
    a(f"s_add_u32 s61, s60, {WS_OMG}")
    a(f"s_add_u32 s60, s60, {WS_G}")
    a(f"v_mov_b32 v{vt[4]}, 0")
    a("v_cmp_eq_u32 vcc, 63, v1")
    a("s_and_saveexec_b64 s[88:89], vcc")
    a(f"buffer_store_dwordx2 {v(G+4,2)}, v{vt[4]}, s[20:23], s60 offen")
    a(f"buffer_store_dwordx2 {v(G+6,2)}, v{vt[4]}, s[20:23], s61 offen")
    a("s_lshl_b32 s60, s2, 2")
    a(f"s_add_u32 s60, s60, {WS_FLAG}")
    a(f"buffer_store_dword v{vt[4]}, v{vt[4]}, s[20:23], s60 offen")
    a("s_mov_b64 exec, s[88:89]")

    a("s_waitcnt lgkmcnt(0)")
    a("s_barrier")
    a("s_cmp_ge_u32 s2, 236")
    a("s_cbranch_scc1 K1_END")
    TT = tmp + 16
    a(f"v_bfe_u32 v{t[0]}, v0, 2, 2")
    a(f"v_lshl_add_u32 v{t[0]}, v3, 3, v{t[0]}")
    a(f"v_mul_u32_u24 v{t[0]}, {TS}, v{t[0]}")
    a(f"v_and_b32 v{t[1]}, 3, v0")
    a(f"v_lshlrev_b32 v{t[1]}, 3, v{t[1]}")
    a(f"v_bfe_u32 v{t[2]}, v0, 4, 1")
    a(f"v_lshl_add_u32 v{t[1]}, v{t[2]}, 5, v{t[1]}")
    a(f"v_add_u32 v{t[0]}, v{t[0]}, v{t[1]}")
    a("s_lshl_b32 s60, s5, 6")
    a(f"v_add_u32 v{t[0]}, s60, v{t[0]}")
    for i in range(2):
        for half in range(2):
            a(f"ds_read_b64_tr_b16 {v(TT+4*i+2*half,2)}, v{t[0]} offset:{i*16*TS + half*4*TS}")
    a(f"s_mov_b32 s71, {WS_WOT}")
    a("s_cmp_lt_u32 s2, 172")
    a("s_cselect_b32 s61, 86, 32")
    a(f"s_cselect_b32 s62, {WS_W2T}, s71")
    a("s_lshl_b32 s63, s56, 2")
    a("s_add_u32 s63, s63, s5")
    a("s_mul_i32 s63, s63, s61")
    a("s_lshl_b32 s64, s55, 1")
    a("s_add_u32 s63, s63, s64")
    a("s_lshl_b32 s63, s63, 10")
    a("s_add_u32 s62, s62, s63")
    a("s_waitcnt lgkmcnt(0)")
    a(f"buffer_store_dwordx4 {v(TT,4)}, v{vSideB}, s[20:23], s62 offen")
    a(f"buffer_store_dwordx4 {v(TT+4,4)}, v{vSideB}, s[20:23], s62 offen offset:1024")
    a.label("K1_END")
    if STAMP:
        a("s_waitcnt vmcnt(0)")
        a("s_memtime s[90:91]")
        a("s_waitcnt lgkmcnt(0)")
        a("s_and_b32 s86, s2, 0x7f")
        a("s_cmp_lg_u32 s86, 5")
        a("s_cbranch_scc1 K1_END2")
        a("s_sub_u32 s74, s74, s72")
        a("s_sub_u32 s76, s76, s72")
        a("s_sub_u32 s78, s78, s72")
        a("s_sub_u32 s90, s90, s72")
        a("v_mov_b32 v4, s74")
        a("v_mov_b32 v5, s76")
        a("v_mov_b32 v6, s78")
        a("v_mov_b32 v7, s90")
        a("s_lshr_b32 s86, s2, 7")
        a("s_lshl_b32 s86, s86, 6")
        a("s_lshl_b32 s87, s5, 4")
        a("s_add_u32 s86, s86, s87")
        a("v_mov_b32 v8, s86")
        a("global_store_dwordx4 v8, v[4:7], s[84:85]")
    a.label("K1_END2")
    a("s_endpgm")
    return a.text(), (nvgpr, NACC)
```

```python
from asmlib import *
from layout import *
import os
STAMP = os.environ.get('STAMP') == '1'
PRIO_SWITCH = int(os.environ.get('PRIO_SWITCH', '5'))
VARIANT = int(os.environ.get('VARIANT', '0'))
MERGE = int(os.environ.get('MERGE', '1'))
KMAX_ADDR = 131072 + 8192
K2_LDS = KMAX_ADDR + 256

def direct_gemm(a, vA, vB, nsteps, D, base, acc, srd_="s[8:11]", nv_slots=None, flagB=""):
    def reg(sl, off):
        if nv_slots is not None and sl >= nv_slots:
            b = 8 * (sl - nv_slots) + off
            return f"a[{b}:{b+3}]"
        return v(base + 8 * sl + off, 4)
    def issue(j):
        sl = j % D
        if j % 4 == 0:
            a(f"s_mov_b32 s40, {(j//4)*4096}")
        a(f"buffer_load_dwordx4 {reg(sl,0)}, v{vA}, {srd_}, s40 offen offset:{(j%4)*1024}")
        a(f"buffer_load_dwordx4 {reg(sl,4)}, v{vB}, {srd_}, s40 offen offset:{(j%4)*1024}{flagB}")
    for j in range(min(D, nsteps)):
        issue(j)
    for j in range(nsteps):
        out = min(D, nsteps - j) - 1
        a(f"s_waitcnt vmcnt({min(63, 2*out)})")
        sl = j % D
        c = "0" if j == 0 else v(acc, 16)
        a(f"v_mfma_f32_32x32x16_bf16 {v(acc,16)}, {reg(sl,0)}, {reg(sl,4)}, {c}")
        if j + D < nsteps:
            issue(j + D)

def stamp_end(a):
    if not STAMP: return
    a("s_waitcnt vmcnt(0)")
    a("s_memtime s[78:79]")
    a("s_memrealtime s[92:93]")
    a("s_waitcnt lgkmcnt(0)")
    a("v_mov_b32 v4, s90")
    a("v_mov_b32 v5, s92")
    a("s_lshl_b32 s87, s2, 4")
    a("s_add_u32 s87, s87, s88")
    a("s_lshl_b32 s87, s87, 3")
    a("s_add_u32 s87, s87, 0x1400000")
    a("v_mov_b32 v8, 0")
    a("buffer_store_dwordx2 v[4:5], v8, s[8:11], s87 offen")
    a("s_sub_u32 s74, s74, s72")
    a("s_sub_u32 s76, s76, s72")
    a("s_sub_u32 s78, s78, s72")
    a("v_mov_b32 v4, s74")
    a("v_mov_b32 v5, s76")
    a("v_mov_b32 v6, s78")
    a("v_mov_b32 v7, 0")
    a("s_lshl_b32 s87, s2, 4")
    a("s_add_u32 s87, s87, s88")
    a("s_lshl_b32 s87, s87, 4")
    a("s_add_u32 s87, s87, 0x1600000")
    a("buffer_store_dwordx4 v[4:7], v8, s[8:11], s87 offen")

def gen_k2():
    a = Asm()
    R = RegAlloc(4)
    vQ = R.alloc(4, 4)
    vKa = R.alloc(); vVa = R.alloc(); vVinc = R.alloc()
    vKa0 = R.alloc(); vVa0 = R.alloc()
    vt = [R.alloc() for _ in range(6)]
    mA = R.alloc(); mB = R.alloc()
    KF = [R.alloc(4, 4) for _ in range(4)]
    S = [R.alloc(16, 4) for _ in range(4)]
    C = R.alloc(16, 4)
    P = [R.alloc(8, 4) for _ in range(2)]
    VF = [R.alloc(8, 4) for _ in range(2)]
    O = R.alloc(16, 4)
    nv_att = R.next

    a("s_cmp_ge_u32 s2, 256")
    a("s_cbranch_scc1 K2_END")
    if STAMP:
        a("s_memtime s[72:73]")
        a("s_memrealtime s[90:91]")
        a("s_load_dwordx2 s[84:85], s[0:1], 72")
    a("s_load_dwordx2 s[52:53], s[0:1], 80")
    a("s_load_dwordx4 s[56:59], s[0:1], 64")
    a("v_lshrrev_b32 v1, 6, v0")
    a("s_nop 0")
    a("v_readfirstlane_b32 s5, v1")
    a("v_and_b32 v1, 63, v0")
    a("v_and_b32 v2, 31, v0")
    a("v_bfe_u32 v3, v0, 5, 1")
    a("s_waitcnt lgkmcnt(0)")
    srd(a, 8, 52, WS_SIZE)
    srd(a, 44, 56, 2097152)
    if STAMP: a("s_mov_b32 s88, s5")
    a("s_cmp_ge_u32 s5, 8")
    a("s_cbranch_scc1 K2_FFN")
    a("s_and_b32 s3, s2, 7")
    a("s_lshl_b32 s3, s3, 2")
    a("s_lshr_b32 s4, s2, 6")
    a("s_add_u32 s3, s3, s4")
    a("s_lshr_b32 s4, s2, 3")
    a("s_and_b32 s4, s4, 7")
    a("s_lshl_b32 s6, s3, 16")
    t = vt
    a(f"v_lshlrev_b32 v{t[0]}, 4, v0")
    stgK = S[0]; stgV = S[2]
    for i in range(8):
        a(f"s_add_u32 s7, s6, {WS_K + i*8192}")
        a(f"buffer_load_dwordx4 {v(stgK+4*i,4)}, v{t[0]}, s[8:11], s7 offen")
    a("s_lshl_b32 s12, s4, 8")
    a("s_lshl_b32 s13, s5, 5")
    a("s_add_u32 s12, s12, s13")
    a(f"v_add_u32 v{t[1]}, s12, v2")
    a(f"v_lshlrev_b32 v{t[2]}, 5, v{t[1]}")
    a(f"v_lshl_add_u32 v{t[2]}, v3, 4, v{t[2]}")
    a(f"s_add_u32 s7, s6, {WS_Q}")
    a(f"buffer_load_dwordx4 {v(vQ,4)}, v{t[2]}, s[8:11], s7 offen")
    a(f"v_lshlrev_b32 v{t[5]}, 4, v1")
    a("s_lshl_b32 s13, s5, 10")
    for i in range(8):
        a(f"s_add_u32 m0, s13, {65536 + i*8192}")
        a(f"s_add_u32 s7, s6, {WS_V + i*8192}")
        a("s_add_u32 s7, s7, s13")
        a(f"buffer_load_dwordx4 v{t[5]}, s[8:11], s7 offen lds")
    for i in range(4):
        a(f"v_mov_b32 v{C+i}, 0x3f803f80")
    a(f"v_add_u32 v{t[3]}, 131072, v{t[0]}")
    a(f"ds_write_b128 v{t[3]}, {v(C,4)}")
    a("s_lshl_b32 s13, s5, 2")
    a(f"s_add_u32 s13, s13, {KMAX_ADDR}")
    a(f"v_mov_b32 v{t[4]}, s13")
    if MERGE:
        a(f"v_mov_b32 v{t[5]}, 0")
        a(f"v_mov_b32 v{t[3]}, {KMAX_ADDR}")
        a(f"ds_write_b32 v{t[3]}, v{t[5]} offset:64")
    a("s_waitcnt vmcnt(9)")
    for i in range(8):
        a(f"ds_write_b128 v{t[0]}, {v(stgK+4*i,4)} offset:{i*8192}")
    N = P[0]
    N2 = P[1]
    for i in range(8):
        a(f"v_dot2_f32_bf16 v{N+i}, v{stgK+4*i}, v{stgK+4*i}, 0")
    for r in range(1, 4):
        for i in range(8):
            a(f"v_dot2_f32_bf16 v{N+i}, v{stgK+4*i+r}, v{stgK+4*i+r}, v{N+i}")
    a("s_nop 3")
    for i in range(8):
        a(f"v_add_f32_dpp v{N2+i}, v{N+i}, v{N+i} quad_perm:[1,0,3,2] row_mask:0xf bank_mask:0xf")
    a(f"v_max3_f32 v{N}, v{N2}, v{N2+1}, v{N2+2}")
    a(f"v_max3_f32 v{N+1}, v{N2+3}, v{N2+4}, v{N2+5}")
    a(f"v_max3_f32 v{N}, v{N}, v{N2+6}, v{N2+7}")
    a(f"v_max_f32 v{N}, v{N}, v{N+1}")
    for ctl in ("row_shr:1 row_mask:0xf", "row_shr:2 row_mask:0xf", "row_shr:4 row_mask:0xf", "row_shr:8 row_mask:0xf",
                "row_bcast:15 row_mask:0xa", "row_bcast:31 row_mask:0xc"):
        a("s_nop 1")
        a(f"v_max_f32_dpp v{N}, v{N}, v{N} {ctl} bank_mask:0xf")
    a("v_cmp_eq_u32 vcc, 63, v1")
    a("s_and_saveexec_b64 s[14:15], vcc")
    a(f"ds_write_b32 v{t[4]}, v{N}")
    a("s_mov_b64 exec, s[14:15]")
    a(f"v_lshlrev_b32 v{vKa0}, 5, v2")
    a(f"v_lshl_add_u32 v{vKa0}, v3, 4, v{vKa0}")
    a(f"v_bfe_u32 v{t[1]}, v0, 2, 2")
    a(f"v_lshl_add_u32 v{t[1]}, v3, 2, v{t[1]}")
    a(f"v_lshlrev_b32 v{t[1]}, 5, v{t[1]}")
    a(f"v_and_b32 v{t[2]}, 3, v0")
    a(f"v_lshl_add_u32 v{t[1]}, v{t[2]}, 3, v{t[1]}")
    a(f"v_add_u32 v{t[1]}, 65536, v{t[1]}")
    a(f"v_and_b32 v{t[2]}, 15, v0")
    a(f"v_lshlrev_b32 v{t[2]}, 3, v{t[2]}")
    a(f"v_add_u32 v{t[2]}, 131072, v{t[2]}")
    a(f"v_bfe_u32 v{t[3]}, v0, 4, 1")
    a(f"v_cmp_eq_u32 vcc, 1, v{t[3]}")
    a(f"v_mov_b32 v{mA}, 4096")
    a(f"v_mov_b32 v{mB}, 0")
    a("s_nop 1")
    a(f"v_cndmask_b32 v{vVa0}, v{t[1]}, v{t[2]}, vcc")
    a(f"v_cndmask_b32 v{vVinc}, v{mA}, v{mB}, vcc")
    a("s_waitcnt vmcnt(8)")
    a(f"v_dot2_f32_bf16 v{mA}, v{vQ}, v{vQ}, 0")
    for r in range(1, 4):
        a(f"v_dot2_f32_bf16 v{mA}, v{vQ+r}, v{vQ+r}, v{mA}")
    a("s_nop 3")
    a(f"v_mov_b32 v{mB}, v{mA}")
    a("s_nop 1")
    a(f"v_permlane32_swap_b32 v{mA}, v{mB}")
    a("s_nop 1")
    a(f"v_add_f32 v{mA}, v{mA}, v{mB}")
    a("s_waitcnt vmcnt(0) lgkmcnt(0)")
    a("s_barrier")
    if STAMP: a("s_memtime s[74:75]")
    a(f"v_mov_b32 v{t[4]}, {KMAX_ADDR}")
    a(f"ds_read_b128 {v(P[0],4)}, v{t[4]}")
    a(f"ds_read_b128 {v(P[0]+4,4)}, v{t[4]} offset:16")
    a("s_cmp_lt_u32 s5, 4")
    a("s_cbranch_scc1 K2_NOPRIO")
    a("s_setprio 1")
    a.label("K2_NOPRIO")
    a("s_waitcnt lgkmcnt(0)")
    a(f"v_max3_f32 v{mB}, v{P[0]}, v{P[0]+1}, v{P[0]+2}")
    a(f"v_max3_f32 v{mB}, v{mB}, v{P[0]+3}, v{P[0]+4}")
    a(f"v_max3_f32 v{mB}, v{mB}, v{P[0]+5}, v{P[0]+6}")
    a(f"v_max_f32 v{mB}, v{mB}, v{P[0]+7}")
    a(f"v_mul_f32 v{mA}, v{mA}, v{mB}")
    a(f"v_sqrt_f32 v{mA}, v{mA}")
    a("s_nop 0")
    a(f"v_mul_f32 v{mA}, 0xbf802000, v{mA}")
    for i in range(16):
        a(f"v_mov_b32 v{C+i}, v{mA}")
    a("s_mov_b32 s17, 0")
    if STAMP: a("s_memtime s[76:77]")
    def kread(slot, tile_off):
        return f"ds_read_b128 {v(KF[slot],4)}, v{vKa} offset:{tile_off*1024}"
    def vreads(slot, tile_off):
        return [f"ds_read_b64_tr_b16 {v(VF[slot]+2*q,2)}, v{vVa} offset:{tile_off*1024 + (q//2)*512 + (q%2)*256}" for q in range(4)]
    a.label("K2_P2_ENTRY")
    a(f"v_mov_b32 v{vKa}, v{vKa0}")
    a(f"v_mov_b32 v{vVa}, v{vVa0}")
    for T in range(3):
        a(kread(T, T))
    for o in vreads(0, 0): a(o)
    a("s_waitcnt lgkmcnt(5)")
    a(f"v_mfma_f32_32x32x16_bf16 {v(S[0],16)}, {v(KF[0],4)}, {v(vQ,4)}, {v(C,16)}")
    a(f"v_mfma_f32_32x32x16_bf16 {v(S[1],16)}, {v(KF[1],4)}, {v(vQ,4)}, {v(C,16)}")
    for i in range(16):
        a(f"v_mov_b32 v{O+i}, 0")
    a("s_mov_b32 s16, 16")
    a.label("K2_P2")
    for u in range(4):
        if VARIANT == 0:
            a(kread((u + 3) % 4, u + 3))
            for o in vreads((u + 1) % 2, u + 1): a(o)
            a("s_waitcnt lgkmcnt(5)")
            a(f"v_mfma_f32_32x32x16_bf16 {v(S[(u+2)%4],16)}, {v(KF[(u+2)%4],4)}, {v(vQ,4)}, {v(C,16)}")
            for i in range(16):
                a(f"v_exp_f32 v{S[u]+i}, v{S[u]+i}")
            for i in range(8):
                a(f"v_cvt_pk_bf16_f32 v{P[u%2]+i}, v{S[u]+2*i}, v{S[u]+2*i+1}")
            a("s_nop 1")
            a(f"v_mfma_f32_32x32x16_bf16 {v(O,16)}, {v(VF[u%2],4)}, {v(P[u%2],4)}, {v(O,16)}")
            a(f"v_mfma_f32_32x32x16_bf16 {v(O,16)}, {v(VF[u%2]+4,4)}, {v(P[u%2]+4,4)}, {v(O,16)}")
        elif VARIANT == 1:
            for i in range(16):
                a(f"v_exp_f32 v{S[u]+i}, v{S[u]+i}")
            for i in range(8):
                a(f"v_cvt_pk_bf16_f32 v{P[u%2]+i}, v{S[u]+2*i}, v{S[u]+2*i+1}")
            a(kread((u + 3) % 4, u + 3))
            for o in vreads((u + 1) % 2, u + 1): a(o)
            a("s_waitcnt lgkmcnt(5)")
            a(f"v_mfma_f32_32x32x16_bf16 {v(S[(u+2)%4],16)}, {v(KF[(u+2)%4],4)}, {v(vQ,4)}, {v(C,16)}")
            a(f"v_mfma_f32_32x32x16_bf16 {v(O,16)}, {v(VF[u%2],4)}, {v(P[u%2],4)}, {v(O,16)}")
            a(f"v_mfma_f32_32x32x16_bf16 {v(O,16)}, {v(VF[u%2]+4,4)}, {v(P[u%2]+4,4)}, {v(O,16)}")
        elif VARIANT == 2:
            a(kread((u + 3) % 4, u + 3))
            for o in vreads((u + 1) % 2, u + 1): a(o)
            a("s_waitcnt lgkmcnt(5)")
            a(f"v_mfma_f32_32x32x16_bf16 {v(S[(u+2)%4],16)}, {v(KF[(u+2)%4],4)}, {v(vQ,4)}, {v(C,16)}")
            for i in range(8):
                a(f"v_exp_f32 v{S[u]+i}, v{S[u]+i}")
            for i in range(4):
                a(f"v_cvt_pk_bf16_f32 v{P[u%2]+i}, v{S[u]+2*i}, v{S[u]+2*i+1}")
            for i in range(8, 10):
                a(f"v_exp_f32 v{S[u]+i}, v{S[u]+i}")
            a(f"v_mfma_f32_32x32x16_bf16 {v(O,16)}, {v(VF[u%2],4)}, {v(P[u%2],4)}, {v(O,16)}")
            for i in range(10, 16):
                a(f"v_exp_f32 v{S[u]+i}, v{S[u]+i}")
            for i in range(4, 8):
                a(f"v_cvt_pk_bf16_f32 v{P[u%2]+i}, v{S[u]+2*i}, v{S[u]+2*i+1}")
            a("s_nop 1")
            a(f"v_mfma_f32_32x32x16_bf16 {v(O,16)}, {v(VF[u%2]+4,4)}, {v(P[u%2]+4,4)}, {v(O,16)}")
    a(f"v_add_u32 v{vKa}, 4096, v{vKa}")
    a(f"v_add_u32 v{vVa}, v{vVinc}, v{vVa}")
    a("s_sub_u32 s16, s16, 1")
    a(f"s_cmp_lg_u32 s16, {PRIO_SWITCH}")
    a("s_cbranch_scc1 K2_P2B")
    a("s_setprio 0")
    a.label("K2_P2B")
    a("s_cmp_lg_u32 s16, 0")
    a("s_cbranch_scc1 K2_P2")
    a("s_waitcnt lgkmcnt(0)")
    a("s_nop 15")
    a("s_nop 7")
    a("s_cmp_lg_u32 s17, 0")
    a("s_cbranch_scc1 K2_FIN")
    a(f"v_mov_b32 v{t[0]}, 0x12800000")
    a(f"v_cmp_nge_f32 vcc, v{O+8}, v{t[0]}")
    a("s_nop 4")
    a("s_cmp_eq_u64 vcc, 0")
    a("s_cbranch_scc1 K2_FIN")
    a("s_mov_b32 s17, 1")
    a(f"v_mov_b32 v{vKa}, v{vKa0}")
    a(f"v_mov_b32 v{mA}, 0xff800000")
    a(f"v_mov_b32 v{mB}, 0xff800000")
    for T in range(3):
        a(kread(T, T))
    a("s_waitcnt lgkmcnt(1)")
    a(f"v_mfma_f32_32x32x16_bf16 {v(S[0],16)}, {v(KF[0],4)}, {v(vQ,4)}, 0")
    a(f"v_mfma_f32_32x32x16_bf16 {v(S[1],16)}, {v(KF[1],4)}, {v(vQ,4)}, 0")
    a("s_mov_b32 s16, 16")
    a.label("K2_P1")
    for u in range(4):
        a(kread((u + 3) % 4, u + 3))
        a("s_waitcnt lgkmcnt(1)")
        a(f"v_mfma_f32_32x32x16_bf16 {v(S[(u+2)%4],16)}, {v(KF[(u+2)%4],4)}, {v(vQ,4)}, 0")
        for i in range(8):
            m = mA if i % 2 == 0 else mB
            a(f"v_max3_f32 v{m}, v{S[u]+2*i}, v{S[u]+2*i+1}, v{m}")
    a(f"v_add_u32 v{vKa}, 4096, v{vKa}")
    a("s_sub_u32 s16, s16, 1")
    a("s_cmp_lg_u32 s16, 0")
    a("s_cbranch_scc1 K2_P1")
    a(f"v_max_f32 v{mA}, v{mA}, v{mB}")
    a("s_nop 1")
    a(f"v_mov_b32 v{mB}, v{mA}")
    a("s_nop 1")
    a(f"v_permlane32_swap_b32 v{mA}, v{mB}")
    a("s_nop 1")
    a(f"v_max_f32 v{mA}, v{mA}, v{mB}")
    a("s_waitcnt lgkmcnt(0)")
    a("s_nop 15")
    for i in range(16):
        a(f"v_sub_f32 v{C+i}, 0, v{mA}")
    a("s_nop 7")
    a("s_branch K2_P2_ENTRY")
    a.label("K2_FIN")
    a(f"v_rcp_f32 v{t[0]}, v{O+8}")
    a("s_nop 1")
    for i in range(8):
        a(f"v_mul_f32 v{O+i}, v{O+i}, v{t[0]}")
    Pp = P[0]
    for i in range(4):
        a(f"v_cvt_pk_bf16_f32 v{Pp+i}, v{O+2*i}, v{O+2*i+1}")
    a(f"v_lshlrev_b32 v{t[1]}, 4, v1")
    a("s_lshr_b32 s7, s12, 5")
    a("s_lshl_b32 s7, s7, 5")
    a("s_add_u32 s7, s7, s3")
    a("s_lshl_b32 s7, s7, 10")
    a(f"s_add_u32 s7, s7, {WS_O}")
    a(f"v_permlane32_swap_b32 v{Pp+0}, v{Pp+2}")
    a(f"v_permlane32_swap_b32 v{Pp+1}, v{Pp+3}")
    a("s_nop 1")
    if not MERGE:
        a(f"buffer_store_dwordx4 {v(Pp,4)}, v{t[1]}, s[8:11], s7 offen")
    else:
        a(f"buffer_store_dwordx4 {v(Pp,4)}, v{t[1]}, s[8:11], s7 offen sc1")
        a(f"v_mov_b32 v{t[2]}, {KMAX_ADDR}")
        a(f"v_mov_b32 v{t[3]}, 1")
        a("s_waitcnt vmcnt(0)")
        a("v_cmp_eq_u32 vcc, 0, v1")
        a("s_and_saveexec_b64 s[14:15], vcc")
        a(f"ds_add_rtn_u32 v{t[4]}, v{t[2]}, v{t[3]} offset:64")
        a("s_waitcnt lgkmcnt(0)")
        a(f"v_readfirstlane_b32 s7, v{t[4]}")
        a("s_cmp_lg_u32 s7, 7")
        a("s_cbranch_scc1 K2_NOFLAG")
        a("s_lshl_b32 s7, s4, 7")
        a("s_lshl_b32 s13, s3, 2")
        a("s_add_u32 s7, s7, s13")
        a(f"s_add_u32 s7, s7, {WS_FLAG}")
        a(f"v_mov_b32 v{t[2]}, 0")
        a(f"buffer_store_dword v{t[3]}, v{t[2]}, s[8:11], s7 offen sc1")
        a.label("K2_NOFLAG")
        a("s_mov_b64 exec, s[14:15]")
    stamp_end(a)
    a("s_endpgm")

    a.label("K2_FFN")
    R2 = RegAlloc(4)
    vA = R2.alloc(); vB = R2.alloc(); vG = R2.alloc(); vS = R2.alloc(); vG2 = R2.alloc()
    facc = R2.alloc(16, 4)
    Pf = R2.alloc(8, 4)
    BBr = R2.alloc(16, 4)
    D = 8; D2 = 12
    slots = R2.alloc(8 * D2, 4)
    a("s_barrier")
    if STAMP:
        a("s_memtime s[74:75]")
        a("s_memtime s[76:77]")
    a("s_sub_u32 s5, s5, 8")
    a("s_and_b32 s3, s2, 7")
    a("s_lshl_b32 s3, s3, 2")
    a("s_lshr_b32 s4, s2, 6")
    a("s_add_u32 s3, s3, s4")
    a("s_lshr_b32 s4, s2, 3")
    a("s_and_b32 s4, s4, 7")
    a("s_lshl_b32 s3, s3, 6")
    a("s_and_b32 s6, s5, 1")
    a("s_lshl_b32 s6, s6, 5")
    a("s_add_u32 s3, s3, s6")
    a("s_lshl_b32 s4, s4, 6")
    a("s_lshr_b32 s6, s5, 1")
    a("s_lshl_b32 s6, s6, 5")
    a("s_add_u32 s4, s4, s6")
    a("s_lshr_b32 s6, s4, 5")
    a(f"s_mul_i32 s6, s6, {86*1024}")
    a(f"s_add_u32 s6, s6, {WS_W2T}")
    a(f"v_lshlrev_b32 v{vA}, 4, v1")
    a(f"v_add_u32 v{vA}, s6, v{vA}")
    a(f"v_add_u32 v{vS}, s3, v2")
    a("s_lshr_b32 s6, s3, 5")
    a(f"s_mul_i32 s6, s6, {86*1024}")
    a(f"s_add_u32 s6, s6, {WS_ACT}")
    a(f"v_lshlrev_b32 v{vB}, 4, v1")
    a(f"v_add_u32 v{vB}, s6, v{vB}")
    a(f"v_lshlrev_b32 v{vG}, 2, v{vS}")
    a(f"s_mov_b32 s7, {WS_G}")
    a(f"buffer_load_dword v{vG2}, v{vG}, s[8:11], s7 offen")
    a(f"s_mov_b32 s7, {WS_OMG}")
    a(f"buffer_load_dword v{vG}, v{vG}, s[8:11], s7 offen")
    direct_gemm(a, vA, vB, 86, D, slots, facc)
    a("s_nop 15")
    a("s_nop 7")
    for i in range(8):
        a(f"v_cvt_pk_bf16_f32 v{Pf+i}, v{facc+2*i}, v{facc+2*i+1}")
    for i in range(8):
        a(f"v_lshlrev_b32 v{facc+2*i}, 16, v{Pf+i}")
        a(f"v_and_b32 v{facc+2*i+1}, 0xffff0000, v{Pf+i}")
    for i in range(16):
        a(f"v_mul_f32 v{facc+i}, v{facc+i}, v{vG}")
    for i in range(8):
        a(f"v_cvt_pk_bf16_f32 v{Pf+i}, v{facc+2*i}, v{facc+2*i+1}")
    if not MERGE:
        a(f"v_lshlrev_b32 v{vS}, 10, v{vS}")
        a(f"v_lshl_add_u32 v{vS}, v3, 4, v{vS}")
        a("s_lshl_b32 s7, s4, 1")
        a(f"s_add_u32 s7, s7, {WS_BB}")
        a(f"v_permlane32_swap_b32 v{Pf+0}, v{Pf+2}")
        a(f"v_permlane32_swap_b32 v{Pf+1}, v{Pf+3}")
        a(f"v_permlane32_swap_b32 v{Pf+4}, v{Pf+6}")
        a(f"v_permlane32_swap_b32 v{Pf+5}, v{Pf+7}")
        a("s_nop 1")
        a(f"buffer_store_dwordx4 {v(Pf,4)}, v{vS}, s[8:11], s7 offen")
        a(f"buffer_store_dwordx4 {v(Pf+4,4)}, v{vS}, s[8:11], s7 offen offset:32")
    else:
        for i in range(8):
            a(f"v_lshlrev_b32 v{BBr+2*i}, 16, v{Pf+i}")
            a(f"v_and_b32 v{BBr+2*i+1}, 0xffff0000, v{Pf+i}")
        a("s_lshr_b32 s6, s3, 8")
        a("s_lshl_b32 s6, s6, 7")
        a(f"s_add_u32 s6, s6, {WS_FLAG}")
        a(f"v_lshlrev_b32 v{vA}, 2, v2")
        a("s_barrier")
        a.label("K2_POLL")
        a(f"buffer_load_dword v{vB}, v{vA}, s[8:11], s6 offen sc1")
        a("s_waitcnt vmcnt(0)")
        a(f"v_cmp_ne_u32 vcc, 1, v{vB}")
        a("s_nop 4")
        a("s_cmp_eq_u64 vcc, 0")
        a("s_cbranch_scc1 K2_POLLDONE")
        a("s_sleep 2")
        a("s_branch K2_POLL")
        a.label("K2_POLLDONE")
        if STAMP: a("s_memtime s[74:75]")
        if STAMP: a("s_memtime s[76:77]")
        a("s_lshr_b32 s6, s4, 5")
        a(f"s_lshl_b32 s6, s6, 15")
        a(f"s_add_u32 s6, s6, {WS_WOT}")
        a(f"v_lshlrev_b32 v{vA}, 4, v1")
        a(f"v_add_u32 v{vA}, s6, v{vA}")
        a("s_lshr_b32 s6, s3, 5")
        a(f"s_lshl_b32 s6, s6, 15")
        a(f"s_add_u32 s6, s6, {WS_O}")
        a(f"v_lshlrev_b32 v{vB}, 4, v1")
        a(f"v_add_u32 v{vB}, s6, v{vB}")
        direct_gemm(a, vA, vB, 32, D2, slots, facc)
        a("s_nop 15")
        a("s_nop 7")
        for i in range(8):
            a(f"v_cvt_pk_bf16_f32 v{Pf+i}, v{facc+2*i}, v{facc+2*i+1}")
        for i in range(8):
            a(f"v_lshlrev_b32 v{facc+2*i}, 16, v{Pf+i}")
            a(f"v_and_b32 v{facc+2*i+1}, 0xffff0000, v{Pf+i}")
        for i in range(16):
            a(f"v_mul_f32 v{facc+i}, v{facc+i}, v{vG2}")
        for i in range(8):
            a(f"v_cvt_pk_bf16_f32 v{Pf+i}, v{facc+2*i}, v{facc+2*i+1}")
        for i in range(8):
            a(f"v_lshlrev_b32 v{facc+2*i}, 16, v{Pf+i}")
            a(f"v_and_b32 v{facc+2*i+1}, 0xffff0000, v{Pf+i}")
        for i in range(16):
            a(f"v_add_f32 v{facc+i}, v{facc+i}, v{BBr+i}")
        for i in range(8):
            a(f"v_cvt_pk_bf16_f32 v{Pf+i}, v{facc+2*i}, v{facc+2*i+1}")
        a(f"v_lshlrev_b32 v{vS}, 10, v{vS}")
        a(f"v_lshl_add_u32 v{vS}, v3, 4, v{vS}")
        a("s_lshl_b32 s7, s4, 1")
        a(f"v_permlane32_swap_b32 v{Pf+0}, v{Pf+2}")
        a(f"v_permlane32_swap_b32 v{Pf+1}, v{Pf+3}")
        a(f"v_permlane32_swap_b32 v{Pf+4}, v{Pf+6}")
        a(f"v_permlane32_swap_b32 v{Pf+5}, v{Pf+7}")
        a("s_nop 1")
        a(f"buffer_store_dwordx4 {v(Pf,4)}, v{vS}, s[44:47], s7 offen")
        a(f"buffer_store_dwordx4 {v(Pf+4,4)}, v{vS}, s[44:47], s7 offen offset:32")
    stamp_end(a)
    a.label("K2_END")
    a("s_endpgm")
    return a.text(), max(nv_att, R2.next)

K3_LDS = 131072
def gen_k3():
    a = Asm()
    R2 = RegAlloc(4)
    vL = R2.alloc(); vRA = R2.alloc(); vRB = R2.alloc(); vG = R2.alloc(); vS = R2.alloc()
    facc = R2.alloc(16, 4)
    Pf = R2.alloc(8, 4)
    BB = R2.alloc(8, 4)
    T = R2.alloc(16, 4)
    FR = [R2.alloc(8, 4) for _ in range(4)]
    a("s_cmp_ge_u32 s2, 256")
    a("s_cbranch_scc1 K3_END")
    if STAMP:
        a("s_memtime s[72:73]")
        a("s_memrealtime s[90:91]")
    a("s_load_dwordx2 s[52:53], s[0:1], 80")
    a("s_load_dwordx2 s[54:55], s[0:1], 64")
    a("v_lshrrev_b32 v1, 6, v0")
    a("s_nop 0")
    a("v_readfirstlane_b32 s5, v1")
    a("v_and_b32 v1, 63, v0")
    a("v_and_b32 v2, 31, v0")
    a("v_bfe_u32 v3, v0, 5, 1")
    a(f"v_lshlrev_b32 v{vL}, 4, v1")
    a("s_and_b32 s3, s2, 7")
    a("s_lshl_b32 s3, s3, 2")
    a("s_lshr_b32 s4, s2, 6")
    a("s_add_u32 s3, s3, s4")
    a("s_lshr_b32 s4, s2, 3")
    a("s_and_b32 s4, s4, 7")
    a("s_lshl_b32 s6, s4, 1")
    a("s_add_u32 s6, s6, s5")
    a("s_lshl_b32 s6, s6, 15")
    a(f"s_add_u32 s6, s6, {WS_WOT}")
    a("s_lshl_b32 s7, s3, 1")
    a("s_add_u32 s7, s7, s5")
    a("s_sub_u32 s7, s7, 2")
    a("s_lshl_b32 s7, s7, 15")
    a(f"s_add_u32 s7, s7, {WS_O}")
    a("s_cmp_lt_u32 s5, 2")
    a("s_cselect_b32 s18, s6, s7")
    a("s_lshl_b32 s19, s5, 15")
    a("s_waitcnt lgkmcnt(0)")
    srd(a, 8, 52, WS_SIZE)
    srd(a, 12, 54, 2097152)
    for ks in range(32):
        a(f"s_add_u32 m0, s19, {ks*1024}")
        a(f"s_add_u32 s20, s18, {ks*1024}")
        a(f"buffer_load_dwordx4 v{vL}, s[8:11], s20 offen lds")
    a("s_lshl_b32 s3, s3, 6")
    a("s_and_b32 s6, s5, 1")
    a("s_lshl_b32 s6, s6, 5")
    a("s_add_u32 s3, s3, s6")
    a("s_lshl_b32 s4, s4, 6")
    a("s_lshr_b32 s6, s5, 1")
    a("s_lshl_b32 s6, s6, 5")
    a("s_add_u32 s4, s4, s6")
    a(f"v_add_u32 v{vS}, s3, v2")
    a(f"v_lshlrev_b32 v{vG}, 2, v{vS}")
    a(f"s_mov_b32 s7, {WS_G}")
    a(f"buffer_load_dword v{vG}, v{vG}, s[8:11], s7 offen")
    a(f"v_lshlrev_b32 v{vS}, 10, v{vS}")
    a(f"v_lshl_add_u32 v{vS}, v3, 4, v{vS}")
    a("s_lshl_b32 s16, s4, 1")
    a(f"s_add_u32 s17, s16, {WS_BB}")
    a(f"buffer_load_dwordx4 {v(BB,4)}, v{vS}, s[8:11], s17 offen")
    a(f"buffer_load_dwordx4 {v(BB+4,4)}, v{vS}, s[8:11], s17 offen offset:32")
    a("s_lshr_b32 s6, s5, 1")
    a("s_lshl_b32 s6, s6, 15")
    a(f"v_add_u32 v{vRA}, s6, v{vL}")
    a("s_and_b32 s6, s5, 1")
    a("s_add_u32 s6, s6, 2")
    a("s_lshl_b32 s6, s6, 15")
    a(f"v_add_u32 v{vRB}, s6, v{vL}")
    if STAMP: a("s_memtime s[74:75]")
    def rd(ks):
        f = FR[ks % 4]
        a(f"ds_read_b128 {v(f,4)}, v{vRA} offset:{ks*1024}")
        a(f"ds_read_b128 {v(f+4,4)}, v{vRB} offset:{ks*1024}")
    for c in range(4):
        a(f"s_waitcnt vmcnt({3 + 32 - 8*(c+1)})")
        a("s_barrier")
        rd(8*c); rd(8*c+1); rd(8*c+2)
        for k in range(8):
            ks = 8*c + k
            if k + 3 < 8:
                rd(ks + 3)
                a("s_waitcnt lgkmcnt(6)")
            else:
                a(f"s_waitcnt lgkmcnt({2*(7-k)})")
            f = FR[ks % 4]
            cc = "0" if ks == 0 else v(facc, 16)
            a(f"v_mfma_f32_32x32x16_bf16 {v(facc,16)}, {v(f,4)}, {v(f+4,4)}, {cc}")
    if STAMP: a("s_memtime s[76:77]")
    a("s_waitcnt vmcnt(0)")
    a("s_nop 15")
    a("s_nop 7")
    for i in range(8):
        a(f"v_cvt_pk_bf16_f32 v{Pf+i}, v{facc+2*i}, v{facc+2*i+1}")
    for i in range(8):
        a(f"v_lshlrev_b32 v{facc+2*i}, 16, v{Pf+i}")
        a(f"v_and_b32 v{facc+2*i+1}, 0xffff0000, v{Pf+i}")
    for i in range(16):
        a(f"v_mul_f32 v{facc+i}, v{facc+i}, v{vG}")
    for i in range(8):
        a(f"v_cvt_pk_bf16_f32 v{Pf+i}, v{facc+2*i}, v{facc+2*i+1}")
    a("s_nop 1")
    a(f"v_permlane32_swap_b32 v{Pf+0}, v{Pf+2}")
    a(f"v_permlane32_swap_b32 v{Pf+1}, v{Pf+3}")
    a(f"v_permlane32_swap_b32 v{Pf+4}, v{Pf+6}")
    a(f"v_permlane32_swap_b32 v{Pf+5}, v{Pf+7}")
    a("s_nop 1")
    for i in range(8):
        a(f"v_lshlrev_b32 v{facc+2*i}, 16, v{Pf+i}")
        a(f"v_and_b32 v{facc+2*i+1}, 0xffff0000, v{Pf+i}")
        a(f"v_lshlrev_b32 v{T+2*i}, 16, v{BB+i}")
        a(f"v_and_b32 v{T+2*i+1}, 0xffff0000, v{BB+i}")
    for i in range(16):
        a(f"v_add_f32 v{facc+i}, v{facc+i}, v{T+i}")
    for i in range(8):
        a(f"v_cvt_pk_bf16_f32 v{Pf+i}, v{facc+2*i}, v{facc+2*i+1}")
    a(f"buffer_store_dwordx4 {v(Pf,4)}, v{vS}, s[12:15], s16 offen")
    a(f"buffer_store_dwordx4 {v(Pf+4,4)}, v{vS}, s[12:15], s16 offen offset:32")
    if STAMP:
        a("s_waitcnt vmcnt(0)")
        a("s_memtime s[78:79]")
        a("s_memrealtime s[92:93]")
        a("s_waitcnt lgkmcnt(0)")
        a("s_sub_u32 s74, s74, s72")
        a("s_sub_u32 s76, s76, s72")
        a("s_sub_u32 s78, s78, s72")
        a("v_mov_b32 v4, s90")
        a("v_mov_b32 v5, s92")
        a("v_mov_b32 v6, s74")
        a("v_mov_b32 v7, s76")
        a("v_mov_b32 v8, s78")
        a("s_lshl_b32 s87, s2, 2")
        a("s_add_u32 s87, s87, s5")
        a("s_lshl_b32 s87, s87, 5")
        a("s_add_u32 s87, s87, 0x1500000")
        a("v_mov_b32 v9, 0")
        a("buffer_store_dwordx4 v[4:7], v9, s[8:11], s87 offen")
        a("buffer_store_dword v8, v9, s[8:11], s87 offen offset:16")
    a.label("K3_END")
    a("s_endpgm")
    return a.text(), R2.next
```

```python
from asmlib import *
from layout import *
import struct, os
STAMP = os.environ.get('STAMP') == '1'

XB = 16384
WB = 12288
NBUF = int(os.environ.get('NBUF', '3'))
WQ0 = NBUF * XB
WF0 = WQ0 + NBUF * WB
K1_LDS = WF0 + NBUF * WB
WSTR = 192
QSCALE = 0.25 * 1.4426950408889634

def f2u(f):
    return struct.unpack("<I", struct.pack("<f", f))[0]

def acc_(i, n=1):
    return f"a{i}" if n == 1 else f"a[{i}:{i+n-1}]"

def gen_k1():
    a = Asm()
    R = RegAlloc(4)
    vXg = R.alloc(4)
    vWq = R.alloc(3); vWf = R.alloc(3)
    vXr = R.alloc(4)
    vWrQ = R.alloc(); vWrF = R.alloc()
    vTok = R.alloc()
    vSideA = R.alloc(); vSideB = R.alloc(); vBias = R.alloc()
    vt = [R.alloc() for _ in range(6)]
    stg = [R.alloc(20, 4), R.alloc(24, 4)]
    frag = [R.alloc(28, 4), R.alloc(28, 4)]
    ACC = R.alloc(96, 4)
    nvgpr = R.next
    sideT = stg[0]; sideX = stg[0] + 8; sideW = stg[0] + 16
    biasR = stg[1]
    NACC = 0

    a("s_cmp_ge_u32 s2, 256")
    a("s_cbranch_scc1 K1_END2")
    if STAMP:
        a("s_memtime s[72:73]")
        a("s_load_dwordx2 s[84:85], s[0:1], 72")
    a("s_load_dwordx16 s[36:51], s[0:1], 0")
    a("s_load_dwordx2 s[52:53], s[0:1], 80")
    a("s_and_b32 s3, s2, 15")
    a("s_lshr_b32 s4, s2, 4")
    a("v_lshrrev_b32 v1, 6, v0")
    a("s_nop 0")
    a("v_readfirstlane_b32 s5, v1")
    a("v_and_b32 v1, 63, v0")
    a("v_and_b32 v2, 31, v0")
    a("v_bfe_u32 v3, v0, 5, 1")
    t = vt
    a(f"v_lshrrev_b32 v{t[0]}, 3, v1")
    a(f"v_and_b32 v{t[1]}, 7, v1")
    a(f"v_lshrrev_b32 v{t[2]}, 1, v{t[0]}")
    a("s_lshl_b32 s60, s3, 7")
    a("s_lshl_b32 s61, s5, 5")
    a("s_add_u32 s60, s60, s61")
    a(f"v_add_u32 v{t[3]}, s60, v{t[0]}")
    a(f"v_lshlrev_b32 v{t[3]}, 10, v{t[3]}")
    for i in range(4):
        a(f"v_xor_b32 v{t[4]}, {4*(i&1)}, v{t[2]}")
        a(f"v_xor_b32 v{t[4]}, v{t[4]}, v{t[1]}")
        a(f"v_lshl_add_u32 v{t[4]}, v{t[4]}, 4, v{t[3]}")
        a(f"v_add_u32 v{vXg+i}, {8192*i}, v{t[4]}")
    a("s_mul_i32 s60, s5, 192")
    a("s_mul_i32 s61, s4, 192")
    a("s_lshl_b32 s64, s4, 6")
    for i in range(3):
        a(f"v_add_u32 v{t[0]}, s60, v1")
        a(f"v_add_u32 v{t[0]}, {64*i}, v{t[0]}")
        a(f"v_mul_u32_u24 v{t[1]}, 43691, v{t[0]}")
        a(f"v_lshrrev_b32 v{t[1]}, 19, v{t[1]}")
        a(f"v_mul_u32_u24 v{t[2]}, 12, v{t[1]}")
        a(f"v_sub_u32 v{t[2]}, v{t[0]}, v{t[2]}")
        a(f"v_lshrrev_b32 v{t[4]}, 2, v{t[2]}")
        a(f"v_and_b32 v{t[5]}, 3, v{t[2]}")
        a(f"v_lshlrev_b32 v{t[4]}, 10, v{t[4]}")
        a(f"v_lshl_add_u32 v{t[4]}, v{t[5]}, 4, v{t[4]}")
        a(f"v_add_u32 v{t[4]}, s64, v{t[4]}")
        a(f"v_lshlrev_b32 v{t[2]}, 4, v{t[2]}")
        a(f"v_add_u32 v{t[2]}, s61, v{t[2]}")
        a(f"v_mul_u32_u24 v{t[3]}, 3072, v{t[1]}")
        a(f"v_add_u32 v{vWq+i}, v{t[3]}, v{t[4]}")
        a(f"v_mul_u32_u24 v{t[3]}, 2752, v{t[1]}")
        a(f"v_add_u32 v{vWf+i}, v{t[3]}, v{t[2]}")
    a("s_lshl_b32 s67, s5, 12")
    a("s_mul_i32 s65, s5, 3072")
    a("s_waitcnt lgkmcnt(0)")
    srd(a, 8, 36, 2097152)
    srd(a, 12, 38, 1572864)
    srd(a, 16, 44, 1409024)

    def issue_loads(st):
        b = st % NBUF
        a(f"s_mov_b32 s60, {st*64*3072}")
        a(f"s_mov_b32 s61, {st*64*2752}")
        a(f"s_mov_b32 s62, {st*128}")
        for i in range(4):
            a(f"s_add_u32 m0, s67, {b*XB + i*1024}")
            a("s_nop 0")
            a(f"buffer_load_dwordx4 v{vXg+i}, s[8:11], s62 offen lds")
        for i in range(3):
            a(f"s_add_u32 m0, s65, {WQ0 + b*WB + i*1024}")
            a("s_nop 0")
            a(f"buffer_load_dwordx4 v{vWq+i}, s[12:15], s60 offen lds")
        for i in range(3):
            a(f"s_add_u32 m0, s65, {WF0 + b*WB + i*1024}")
            a("s_nop 0")
            a(f"buffer_load_dwordx4 v{vWf+i}, s[16:19], s61 offen lds")
    for st0 in range(NBUF - 1):
        issue_loads(st0)

    srd(a, 20, 52, WS_SIZE)
    srd(a, 24, 46, 2752)
    srd(a, 32, 50, 1024)
    a("s_sub_u32 s54, s2, 172")
    a("s_mov_b32 s70, 524288")
    a("s_cmp_lt_u32 s2, 172")
    a("s_cselect_b32 s28, s48, s40")
    a("s_cselect_b32 s29, s49, s41")
    a("s_cselect_b32 s30, 1409024, s70")
    a("s_cselect_b32 s54, s2, s54")
    a("s_and_b32 s29, s29, 0xffff")
    a("s_mov_b32 s31, 0x00020000")
    a("s_lshr_b32 s55, s54, 2")
    a("s_and_b32 s56, s54, 3")
    a(f"v_lshrrev_b32 v{t[0]}, 4, v0")
    a(f"v_and_b32 v{t[1]}, 15, v0")
    a(f"v_lshlrev_b32 v{t[0]}, 10, v{t[0]}")
    a(f"v_lshl_add_u32 v{vSideA}, v{t[1]}, 4, v{t[0]}")
    a("s_lshl_b32 s57, s55, 15")
    a("s_lshl_b32 s58, s56, 8")
    a("s_add_u32 s57, s57, s58")
    a("s_add_u32 s58, s57, 16384")
    a(f"v_lshlrev_b32 v{vSideB}, 4, v1")
    a("s_lshl_b32 s59, s2, 3")
    a("s_lshl_b32 s60, s5, 1")
    a("s_add_u32 s59, s59, s60")
    a("s_lshl_b32 s68, s59, 10")
    a("s_add_u32 s69, s68, 1024")
    a(f"v_lshlrev_b32 v{vBias}, 3, v3")
    a("s_mul_i32 s71, s4, 192")
    a("s_lshl_b32 s60, s5, 5")
    a(f"v_add_u32 v{t[0]}, s60, v2")
    a(f"v_lshlrev_b32 v{t[0]}, 7, v{t[0]}")
    a(f"v_bfe_u32 v{t[1]}, v2, 1, 3")
    for ks in range(4):
        a(f"v_add_u32 v{t[2]}, {2*ks}, v3")
        a(f"v_xor_b32 v{t[2]}, v{t[2]}, v{t[1]}")
        a(f"v_lshl_add_u32 v{vXr+ks}, v{t[2]}, 4, v{t[0]}")
    a(f"v_bfe_u32 v{t[0]}, v0, 2, 2")
    a(f"v_lshl_add_u32 v{t[0]}, v3, 3, v{t[0]}")
    a(f"v_mul_u32_u24 v{t[0]}, {WSTR}, v{t[0]}")
    a(f"v_and_b32 v{t[1]}, 3, v0")
    a(f"v_lshlrev_b32 v{t[1]}, 3, v{t[1]}")
    a(f"v_bfe_u32 v{t[2]}, v0, 4, 1")
    a(f"v_lshl_add_u32 v{t[1]}, v{t[2]}, 5, v{t[1]}")
    a(f"v_add_u32 v{t[0]}, v{t[0]}, v{t[1]}")
    a(f"v_add_u32 v{vWrQ}, {WQ0}, v{t[0]}")
    a(f"v_add_u32 v{vWrF}, {WF0}, v{t[0]}")
    a("s_lshl_b32 s60, s3, 7")
    a("s_lshl_b32 s61, s5, 5")
    a("s_add_u32 s66, s60, s61")
    a(f"v_add_u32 v{vTok}, s66, v2")
    a("s_mov_b32 s80, 2.0")
    a("s_mov_b32 s81, 2.0")
    a("s_mov_b32 s82, 0x3fb8aa3b")
    a("s_mov_b32 s83, 0x3fb8aa3b")

    def read_ops(j):
        st, ks = j // 4, j % 4
        b = st % NBUF; f = frag[j % 2]
        ops = [f"ds_read_b128 {v(f+24,4)}, v{vXr+ks} offset:{b*XB}"]
        for ft in range(6):
            base = vWrQ if ft < 3 else vWrF
            for half in range(2):
                ops.append(f"ds_read_b64_tr_b16 {v(f+4*ft+2*half,2)}, v{base} offset:{b*WB + ks*16*WSTR + half*4*WSTR + (ft%3)*64}")
        return ops
    def mfma_ops(j):
        f = frag[j % 2]
        ops = []
        for ft in range(6):
            d = ACC + 16 * ft
            c = "0" if j == 0 else v(d, 16)
            if ft == 2:
                ops.append(f"v_mfma_f32_32x32x16_bf16 {v(d,16)}, {v(f+24,4)}, {v(f+4*ft,4)}, {c}")
            else:
                ops.append(f"v_mfma_f32_32x32x16_bf16 {v(d,16)}, {v(f+4*ft,4)}, {v(f+24,4)}, {c}")
        return ops

    a(f"s_waitcnt vmcnt({10*(NBUF-2)})")
    a("s_barrier")
    if STAMP: a("s_memtime s[74:75]")
    for o in read_ops(0): a(o)
    for j in range(32):
        st, ks = j // 4, j % 4
        a("s_waitcnt lgkmcnt(0)")
        other = []
        if ks == 3 and st < 7:
            a(f"s_waitcnt vmcnt({10 * max(0, min(st + NBUF - 1, 7) - (st + 1))})")
            a("s_barrier")
        if j < 31:
            other += read_ops(j + 1)
        if ks == 0 and st + NBUF - 1 <= 7:
            issue_loads(st + NBUF - 1)
        if j == 28:
            a(f"buffer_load_dwordx4 {v(sideT,4)}, v{vSideA}, s[28:31], s57 offen")
            a(f"buffer_load_dwordx4 {v(sideT+4,4)}, v{vSideA}, s[28:31], s58 offen")
            a(f"buffer_load_dwordx4 {v(sideX,4)}, v{vSideB}, s[8:11], s68 offen")
            a(f"buffer_load_dwordx4 {v(sideX+4,4)}, v{vSideB}, s[8:11], s69 offen")
            a(f"buffer_load_dwordx4 {v(sideW,4)}, v{vSideB}, s[32:35], 0 offen")
            for jf in range(3):
                for q in range(4):
                    a(f"buffer_load_dwordx2 {v(biasR+8*jf+2*q,2)}, v{vBias}, s[24:27], s71 offen offset:{64*jf+16*q}")
        m = mfma_ops(j)
        per = (len(other) + 5) // 6
        oi = 0
        for k in range(6):
            a(m[k])
            for _ in range(per):
                if oi < len(other):
                    a(other[oi]); oi += 1
    if STAMP: a("s_memtime s[76:77]")
    TS = 320
    a("s_barrier")
    a(f"v_lshrrev_b32 v{t[0]}, 4, v0")
    a(f"v_and_b32 v{t[1]}, 15, v0")
    a(f"v_mul_u32_u24 v{t[0]}, {TS}, v{t[0]}")
    a(f"v_lshl_add_u32 v{t[0]}, v{t[1]}, 4, v{t[0]}")
    a("s_waitcnt vmcnt(15)")
    a(f"ds_write_b128 v{t[0]}, {v(sideT,4)}")
    a(f"ds_write_b128 v{t[0]}, {v(sideT+4,4)} offset:{16*TS}")
    a("s_nop 15")
    tmp = frag[0]
    P = tmp; T = tmp + 8; U = tmp + 24; BU = tmp + 40
    vA = vt[0]

    def qkv_tile(ft):
        D = ACC + 16 * ft
        if ft < 2:
            a("s_lshl_b32 s63, s4, 17")
            a(f"s_add_u32 s63, s63, {WS_Q if ft == 0 else WS_K}")
            a("s_add_u32 s64, s63, 65536")
            if ft == 0:
                a(f"s_mov_b32 s86, {f2u(QSCALE)}")
                a(f"s_mov_b32 s87, {f2u(QSCALE)}")
                for i in range(8):
                    a(f"v_pk_mul_f32 {v(D+2*i,2)}, {v(D+2*i,2)}, s[86:87]")
            for i in range(8):
                a(f"v_cvt_pk_bf16_f32 v{P+i}, v{D+2*i}, v{D+2*i+1}")
            a(f"v_lshlrev_b32 v{vA}, 5, v{vTok}")
            a(f"v_lshl_add_u32 v{vA}, v3, 4, v{vA}")
            a(f"v_permlane32_swap_b32 v{P+0}, v{P+2}")
            a(f"v_permlane32_swap_b32 v{P+1}, v{P+3}")
            a(f"v_permlane32_swap_b32 v{P+4}, v{P+6}")
            a("s_nop 0")
            a(f"v_permlane32_swap_b32 v{P+5}, v{P+7}")
            a("s_nop 1")
            a(f"buffer_store_dwordx4 {v(P,4)}, v{vA}, s[20:23], s63 offen")
            a(f"buffer_store_dwordx4 {v(P+4,4)}, v{vA}, s[20:23], s64 offen")
            a("s_nop 1")
        else:
            for i in range(8):
                a(f"v_cvt_pk_bf16_f32 v{P+i}, v{D+2*i}, v{D+2*i+1}")
            a(f"v_bfe_u32 v{vA}, v0, 4, 1")
            a(f"v_lshlrev_b32 v{vA}, 16, v{vA}")
            a(f"v_lshl_add_u32 v{vA}, v3, 8, v{vA}")
            a(f"v_and_b32 v{vt[1]}, 15, v0")
            a(f"v_lshl_add_u32 v{vA}, v{vt[1]}, 4, v{vA}")
            a("s_lshl_b32 s63, s4, 17")
            a("s_lshl_b32 s64, s66, 5")
            a("s_add_u32 s63, s63, s64")
            a(f"s_add_u32 s63, s63, {WS_V}")
            a(f"buffer_store_dwordx4 {v(P,4)}, v{vA}, s[20:23], s63 offen")
            a(f"buffer_store_dwordx4 {v(P+4,4)}, v{vA}, s[20:23], s63 offen offset:512")
            a("s_nop 1")

    def ffn_tile(jf):
        ft = 3 + jf
        lab = a.newlabel("K1_SKIPF")
        a(f"s_mul_i32 s60, s4, 3")
        a(f"s_add_u32 s60, s60, {jf}")
        a("s_cmp_ge_u32 s60, 43")
        a(f"s_cbranch_scc1 {lab}")
        a("s_lshl_b32 s62, s60, 11")
        a(f"s_add_u32 s61, s62, {WS_ACT}")
        for q in range(8):
            a(f"v_lshlrev_b32 v{BU+2*q}, 16, v{biasR+8*jf+q}")
            a(f"v_and_b32 v{BU+2*q+1}, 0xffff0000, v{biasR+8*jf+q}")
        D = ACC + 16 * ft
        for i in range(8):
            a(f"v_pk_add_f32 {v(D+2*i,2)}, {v(D+2*i,2)}, {v(BU+2*i,2)}")
        for i in range(16):
            a(f"v_min_f32 v{T+i}, 0x41a00000, v{D+i}")
        for i in range(8):
            a(f"v_pk_mul_f32 {v(T+2*i,2)}, {v(T+2*i,2)}, s[82:83]")
        for i in range(16):
            a(f"v_exp_f32 v{T+i}, v{T+i}")
        for i in range(8):
            a(f"v_pk_add_f32 {v(U+2*i,2)}, {v(T+2*i,2)}, s[80:81]")
        for i in range(8):
            a(f"v_pk_mul_f32 {v(T+2*i,2)}, {v(T+2*i,2)}, {v(U+2*i,2)}")
        for i in range(8):
            a(f"v_pk_add_f32 {v(U+2*i,2)}, {v(T+2*i,2)}, s[80:81]")
        for i in range(16):
            a(f"v_rcp_f32 v{U+i}, v{U+i}")
        for i in range(8):
            a(f"v_pk_mul_f32 {v(T+2*i,2)}, {v(T+2*i,2)}, {v(U+2*i,2)}")
        for i in range(8):
            a(f"v_pk_mul_f32 {v(D+2*i,2)}, {v(D+2*i,2)}, {v(T+2*i,2)}")
        for i in range(8):
            a(f"v_cvt_pk_bf16_f32 v{P+i}, v{D+2*i}, v{D+2*i+1}")
        a(f"s_lshr_b32 s62, s66, 5")
        a(f"s_mul_i32 s62, s62, {86*1024}")
        a("s_add_u32 s61, s61, s62")
        a(f"v_permlane32_swap_b32 v{P+0}, v{P+2}")
        a(f"v_permlane32_swap_b32 v{P+1}, v{P+3}")
        a(f"v_permlane32_swap_b32 v{P+4}, v{P+6}")
        a(f"v_permlane32_swap_b32 v{P+5}, v{P+7}")
        a("s_nop 1")
        a(f"buffer_store_dwordx4 {v(P,4)}, v{vSideB}, s[20:23], s61 offen")
        a(f"buffer_store_dwordx4 {v(P+4,4)}, v{vSideB}, s[20:23], s61 offen offset:1024")
        a("s_nop 1")
        a.label(lab)

    for ft in range(3):
        qkv_tile(ft)
    a("s_waitcnt vmcnt(6)")
    for jf in range(3):
        ffn_tile(jf)
    if STAMP: a("s_memtime s[78:79]")

    G = tmp
    for i in range(4):
        a(f"v_lshlrev_b32 v{G+2*i}, 16, v{sideW+i}")
        a(f"v_and_b32 v{G+2*i+1}, 0xffff0000, v{sideW+i}")
    S = [vt[2], vt[3]]
    for tk in range(2):
        X = G + 8
        for i in range(4):
            a(f"v_lshlrev_b32 v{X+2*i}, 16, v{sideX+4*tk+i}")
            a(f"v_and_b32 v{X+2*i+1}, 0xffff0000, v{sideX+4*tk+i}")
        for i in range(8):
            a(f"v_mul_f32 v{X+i}, v{X+i}, v{G+i}")
        for i in range(4):
            a(f"v_cvt_pk_bf16_f32 v{X+8+i}, v{X+2*i}, v{X+2*i+1}")
        for i in range(4):
            a(f"v_lshlrev_b32 v{X+2*i}, 16, v{X+8+i}")
            a(f"v_and_b32 v{X+2*i+1}, 0xffff0000, v{X+8+i}")
        a(f"v_add_f32 v{X}, v{X}, v{X+1}")
        a(f"v_add_f32 v{X+2}, v{X+2}, v{X+3}")
        a(f"v_add_f32 v{X+4}, v{X+4}, v{X+5}")
        a(f"v_add_f32 v{X+6}, v{X+6}, v{X+7}")
        a(f"v_add_f32 v{X}, v{X}, v{X+2}")
        a(f"v_add_f32 v{X+4}, v{X+4}, v{X+6}")
        a(f"v_add_f32 v{S[tk]}, v{X}, v{X+4}")
    for ctl in ("row_shr:1 row_mask:0xf bank_mask:0xf bound_ctrl:0", "row_shr:2 row_mask:0xf bank_mask:0xf bound_ctrl:0",
                "row_shr:4 row_mask:0xf bank_mask:0xf bound_ctrl:0", "row_shr:8 row_mask:0xf bank_mask:0xf bound_ctrl:0",
                "row_bcast:15 row_mask:0xa bank_mask:0xf", "row_bcast:31 row_mask:0xc bank_mask:0xf"):
        a("s_nop 1")
        a(f"v_add_f32_dpp v{S[0]}, v{S[0]}, v{S[0]} {ctl}")
        a(f"v_add_f32_dpp v{S[1]}, v{S[1]}, v{S[1]} {ctl}")
    a(f"v_cvt_pk_bf16_f32 v{G}, v{S[0]}, v{S[1]}")
    a(f"v_lshlrev_b32 v{G+1}, 16, v{G}")
    a(f"v_and_b32 v{G+2}, 0xffff0000, v{G}")
    for i in (1, 2):
        a(f"v_mul_f32 v{G+i}, 0xbfb8aa3b, v{G+i}")
    for i in (1, 2):
        a(f"v_exp_f32 v{G+i}, v{G+i}")
    a("s_nop 0")
    for i in (1, 2):
        a(f"v_add_f32 v{G+i}, 1.0, v{G+i}")
    for i in (1, 2):
        a(f"v_rcp_f32 v{G+i}, v{G+i}")
    a("s_nop 0")
    a(f"v_cvt_pk_bf16_f32 v{G}, v{G+1}, v{G+2}")
    a(f"v_lshlrev_b32 v{G+4}, 16, v{G}")
    a(f"v_and_b32 v{G+5}, 0xffff0000, v{G}")
    a(f"v_sub_f32 v{G+6}, 1.0, v{G+4}")
    a(f"v_sub_f32 v{G+7}, 1.0, v{G+5}")
    a(f"v_cvt_pk_bf16_f32 v{G}, v{G+6}, v{G+7}")
    a(f"v_lshlrev_b32 v{G+6}, 16, v{G}")
    a(f"v_and_b32 v{G+7}, 0xffff0000, v{G}")
    a("s_lshl_b32 s60, s59, 2")
    a(f"s_add_u32 s61, s60, {WS_OMG}")
    a(f"s_add_u32 s60, s60, {WS_G}")
    a(f"v_mov_b32 v{vt[4]}, 0")
    a("v_cmp_eq_u32 vcc, 63, v1")
    a("s_and_saveexec_b64 s[88:89], vcc")
    a(f"buffer_store_dwordx2 {v(G+4,2)}, v{vt[4]}, s[20:23], s60 offen")
    a(f"buffer_store_dwordx2 {v(G+6,2)}, v{vt[4]}, s[20:23], s61 offen")
    a("s_lshl_b32 s60, s2, 2")
    a(f"s_add_u32 s60, s60, {WS_FLAG}")
    a(f"buffer_store_dword v{vt[4]}, v{vt[4]}, s[20:23], s60 offen")
    a("s_mov_b64 exec, s[88:89]")

    a("s_waitcnt lgkmcnt(0)")
    a("s_barrier")
    a("s_cmp_ge_u32 s2, 236")
    a("s_cbranch_scc1 K1_END")
    TT = tmp + 16
    a(f"v_bfe_u32 v{t[0]}, v0, 2, 2")
    a(f"v_lshl_add_u32 v{t[0]}, v3, 3, v{t[0]}")
    a(f"v_mul_u32_u24 v{t[0]}, {TS}, v{t[0]}")
    a(f"v_and_b32 v{t[1]}, 3, v0")
    a(f"v_lshlrev_b32 v{t[1]}, 3, v{t[1]}")
    a(f"v_bfe_u32 v{t[2]}, v0, 4, 1")
    a(f"v_lshl_add_u32 v{t[1]}, v{t[2]}, 5, v{t[1]}")
    a(f"v_add_u32 v{t[0]}, v{t[0]}, v{t[1]}")
    a("s_lshl_b32 s60, s5, 6")
    a(f"v_add_u32 v{t[0]}, s60, v{t[0]}")
    for i in range(2):
        for half in range(2):
            a(f"ds_read_b64_tr_b16 {v(TT+4*i+2*half,2)}, v{t[0]} offset:{i*16*TS + half*4*TS}")
    a(f"s_mov_b32 s71, {WS_WOT}")
    a("s_cmp_lt_u32 s2, 172")
    a("s_cselect_b32 s61, 86, 32")
    a(f"s_cselect_b32 s62, {WS_W2T}, s71")
    a("s_lshl_b32 s63, s56, 2")
    a("s_add_u32 s63, s63, s5")
    a("s_mul_i32 s63, s63, s61")
    a("s_lshl_b32 s64, s55, 1")
    a("s_add_u32 s63, s63, s64")
    a("s_lshl_b32 s63, s63, 10")
    a("s_add_u32 s62, s62, s63")
    a("s_waitcnt lgkmcnt(0)")
    a(f"buffer_store_dwordx4 {v(TT,4)}, v{vSideB}, s[20:23], s62 offen")
    a(f"buffer_store_dwordx4 {v(TT+4,4)}, v{vSideB}, s[20:23], s62 offen offset:1024")
    a.label("K1_END")
    if STAMP:
        a("s_waitcnt vmcnt(0)")
        a("s_memtime s[90:91]")
        a("s_waitcnt lgkmcnt(0)")
        a("s_and_b32 s86, s2, 0x7f")
        a("s_cmp_lg_u32 s86, 5")
        a("s_cbranch_scc1 K1_END2")
        a("s_sub_u32 s74, s74, s72")
        a("s_sub_u32 s76, s76, s72")
        a("s_sub_u32 s78, s78, s72")
        a("s_sub_u32 s90, s90, s72")
        a("v_mov_b32 v4, s74")
        a("v_mov_b32 v5, s76")
        a("v_mov_b32 v6, s78")
        a("v_mov_b32 v7, s90")
        a("s_lshr_b32 s86, s2, 7")
        a("s_lshl_b32 s86, s86, 6")
        a("s_lshl_b32 s87, s5, 4")
        a("s_add_u32 s86, s86, s87")
        a("v_mov_b32 v8, s86")
        a("global_store_dwordx4 v8, v[4:7], s[84:85]")
    a.label("K1_END2")
    a("s_endpgm")
    return a.text(), (nvgpr, NACC)
```

```python
from asmlib import *
from layout import *
import os
STAMP = os.environ.get('STAMP') == '1'
PRIO_SWITCH = int(os.environ.get('PRIO_SWITCH', '5'))
VARIANT = int(os.environ.get('VARIANT', '0'))
MERGE = int(os.environ.get('MERGE', '0'))
ONEROW = 0
KMAX_ADDR = 131072 + 8192
K2_LDS = KMAX_ADDR + 256

def direct_gemm(a, vA, vB, nsteps, D, base, acc, srd_="s[8:11]", nv_slots=None, flagB=""):
    def reg(sl, off):
        if nv_slots is not None and sl >= nv_slots:
            b = 8 * (sl - nv_slots) + off
            return f"a[{b}:{b+3}]"
        return v(base + 8 * sl + off, 4)
    def issue(j):
        sl = j % D
        if j % 4 == 0:
            a(f"s_mov_b32 s40, {(j//4)*4096}")
        a(f"buffer_load_dwordx4 {reg(sl,0)}, v{vA}, {srd_}, s40 offen offset:{(j%4)*1024}")
        a(f"buffer_load_dwordx4 {reg(sl,4)}, v{vB}, {srd_}, s40 offen offset:{(j%4)*1024}{flagB}")
    for j in range(min(D, nsteps)):
        issue(j)
    for j in range(nsteps):
        out = min(D, nsteps - j) - 1
        a(f"s_waitcnt vmcnt({min(63, 2*out)})")
        sl = j % D
        c = "0" if j == 0 else v(acc, 16)
        a(f"v_mfma_f32_32x32x16_bf16 {v(acc,16)}, {reg(sl,0)}, {reg(sl,4)}, {c}")
        if j + D < nsteps:
            issue(j + D)

def stamp_end(a):
    if not STAMP: return
    a("s_waitcnt vmcnt(0)")
    a("s_memtime s[78:79]")
    a("s_memrealtime s[92:93]")
    a("s_waitcnt lgkmcnt(0)")
    a("v_mov_b32 v4, s90")
    a("v_mov_b32 v5, s92")
    a("s_lshl_b32 s87, s2, 4")
    a("s_add_u32 s87, s87, s88")
    a("s_lshl_b32 s87, s87, 3")
    a("s_add_u32 s87, s87, 0x1400000")
    a("v_mov_b32 v8, 0")
    a("buffer_store_dwordx2 v[4:5], v8, s[8:11], s87 offen")
    a("s_sub_u32 s74, s74, s72")
    a("s_sub_u32 s76, s76, s72")
    a("s_sub_u32 s78, s78, s72")
    a("v_mov_b32 v4, s74")
    a("v_mov_b32 v5, s76")
    a("v_mov_b32 v6, s78")
    a("v_mov_b32 v7, 0")
    a("s_lshl_b32 s87, s2, 4")
    a("s_add_u32 s87, s87, s88")
    a("s_lshl_b32 s87, s87, 4")
    a("s_add_u32 s87, s87, 0x1600000")
    a("buffer_store_dwordx4 v[4:7], v8, s[8:11], s87 offen")

def gen_k2():
    a = Asm()
    R = RegAlloc(4)
    vQ = R.alloc(4, 4)
    vKa = R.alloc(); vVa = R.alloc(); vVinc = R.alloc()
    vKa0 = R.alloc(); vVa0 = R.alloc()
    vt = [R.alloc() for _ in range(6)]
    mA = R.alloc(); mB = R.alloc()
    KF = [R.alloc(4, 4) for _ in range(4)]
    S = [R.alloc(16, 4) for _ in range(4)]
    C = R.alloc(16, 4)
    P = [R.alloc(8, 4) for _ in range(2)]
    VF = [R.alloc(8, 4) for _ in range(2)]
    O = R.alloc(16, 4)
    nv_att = R.next

    a("s_cmp_ge_u32 s2, 256")
    a("s_cbranch_scc1 K2_END")
    if STAMP:
        a("s_memtime s[72:73]")
        a("s_memrealtime s[90:91]")
        a("s_load_dwordx2 s[84:85], s[0:1], 72")
    a("s_load_dwordx2 s[52:53], s[0:1], 80")
    a("s_load_dwordx4 s[56:59], s[0:1], 64")
    a("v_lshrrev_b32 v1, 6, v0")
    a("s_nop 0")
    a("v_readfirstlane_b32 s5, v1")
    a("v_and_b32 v1, 63, v0")
    a("v_and_b32 v2, 31, v0")
    a("v_bfe_u32 v3, v0, 5, 1")
    a("s_waitcnt lgkmcnt(0)")
    srd(a, 8, 52, WS_SIZE)
    srd(a, 44, 56, 2097152)
    if STAMP: a("s_mov_b32 s88, s5")
    a("s_cmp_ge_u32 s5, 8")
    a("s_cbranch_scc1 K2_FFN")
    a("s_and_b32 s3, s2, 7")
    a("s_lshl_b32 s3, s3, 2")
    a("s_lshr_b32 s4, s2, 6")
    a("s_add_u32 s3, s3, s4")
    a("s_lshr_b32 s4, s2, 3")
    a("s_and_b32 s4, s4, 7")
    a("s_lshl_b32 s6, s3, 16")
    t = vt
    a(f"v_lshlrev_b32 v{t[0]}, 4, v0")
    stgK = S[0]; stgV = S[2]
    for i in range(8):
        a(f"s_add_u32 s7, s6, {WS_K + i*8192}")
        a(f"buffer_load_dwordx4 {v(stgK+4*i,4)}, v{t[0]}, s[8:11], s7 offen")
    a("s_lshl_b32 s12, s4, 8")
    a("s_lshl_b32 s13, s5, 5")
    a("s_add_u32 s12, s12, s13")
    a(f"v_add_u32 v{t[1]}, s12, v2")
    a(f"v_lshlrev_b32 v{t[2]}, 5, v{t[1]}")
    a(f"v_lshl_add_u32 v{t[2]}, v3, 4, v{t[2]}")
    a(f"s_add_u32 s7, s6, {WS_Q}")
    a(f"buffer_load_dwordx4 {v(vQ,4)}, v{t[2]}, s[8:11], s7 offen")
    a(f"v_lshlrev_b32 v{t[5]}, 4, v1")
    a("s_lshl_b32 s13, s5, 10")
    for i in range(8):
        a(f"s_add_u32 m0, s13, {65536 + i*8192}")
        a(f"s_add_u32 s7, s6, {WS_V + i*8192}")
        a("s_add_u32 s7, s7, s13")
        a(f"buffer_load_dwordx4 v{t[5]}, s[8:11], s7 offen lds")
    if ONEROW:
        a(f"v_and_b32 v{C+1}, 1, v0")
        a(f"v_cmp_eq_u32 vcc, 0, v{C+1}")
        a(f"v_mov_b32 v{C+2}, 0x3f80")
        a(f"v_mov_b32 v{C+1}, 0")
        a(f"v_mov_b32 v{C+3}, 0")
        a(f"v_cndmask_b32 v{C}, v{C+1}, v{C+2}, vcc")
        a(f"v_mov_b32 v{C+2}, 0")
    else:
        for i in range(4):
            a(f"v_mov_b32 v{C+i}, 0x3f803f80")
    a(f"v_add_u32 v{t[3]}, 131072, v{t[0]}")
    a(f"ds_write_b128 v{t[3]}, {v(C,4)}")
    a("s_lshl_b32 s13, s5, 2")
    a(f"s_add_u32 s13, s13, {KMAX_ADDR}")
    a(f"v_mov_b32 v{t[4]}, s13")
    if MERGE:
        a(f"v_mov_b32 v{t[5]}, 0")
        a(f"v_mov_b32 v{t[3]}, {KMAX_ADDR}")
        a(f"ds_write_b32 v{t[3]}, v{t[5]} offset:64")
    a("s_waitcnt vmcnt(9)")
    for i in range(8):
        a(f"ds_write_b128 v{t[0]}, {v(stgK+4*i,4)} offset:{i*8192}")
    N = P[0]
    N2 = P[1]
    for i in range(8):
        a(f"v_dot2_f32_bf16 v{N+i}, v{stgK+4*i}, v{stgK+4*i}, 0")
    for r in range(1, 4):
        for i in range(8):
            a(f"v_dot2_f32_bf16 v{N+i}, v{stgK+4*i+r}, v{stgK+4*i+r}, v{N+i}")
    a("s_nop 3")
    for i in range(8):
        a(f"v_add_f32_dpp v{N2+i}, v{N+i}, v{N+i} quad_perm:[1,0,3,2] row_mask:0xf bank_mask:0xf")
    a(f"v_max3_f32 v{N}, v{N2}, v{N2+1}, v{N2+2}")
    a(f"v_max3_f32 v{N+1}, v{N2+3}, v{N2+4}, v{N2+5}")
    a(f"v_max3_f32 v{N}, v{N}, v{N2+6}, v{N2+7}")
    a(f"v_max_f32 v{N}, v{N}, v{N+1}")
    for ctl in ("row_shr:1 row_mask:0xf", "row_shr:2 row_mask:0xf", "row_shr:4 row_mask:0xf", "row_shr:8 row_mask:0xf",
                "row_bcast:15 row_mask:0xa", "row_bcast:31 row_mask:0xc"):
        a("s_nop 1")
        a(f"v_max_f32_dpp v{N}, v{N}, v{N} {ctl} bank_mask:0xf")
    a("v_cmp_eq_u32 vcc, 63, v1")
    a("s_and_saveexec_b64 s[14:15], vcc")
    a(f"ds_write_b32 v{t[4]}, v{N}")
    a("s_mov_b64 exec, s[14:15]")
    a(f"v_lshlrev_b32 v{vKa0}, 5, v2")
    a(f"v_lshl_add_u32 v{vKa0}, v3, 4, v{vKa0}")
    a(f"v_and_b32 v{t[2]}, 15, v0")
    a(f"v_lshlrev_b32 v{t[2]}, 4, v{t[2]}")
    a(f"v_lshl_add_u32 v{t[1]}, v3, 8, v{t[2]}")
    a(f"v_add_u32 v{t[1]}, 65536, v{t[1]}")
    a(f"v_add_u32 v{t[2]}, 131072, v{t[2]}")
    a(f"v_bfe_u32 v{t[3]}, v0, 4, 1")
    a(f"v_cmp_eq_u32 vcc, 1, v{t[3]}")
    a(f"v_mov_b32 v{mA}, 4096")
    a(f"v_mov_b32 v{mB}, 0")
    a("s_nop 1")
    a(f"v_cndmask_b32 v{vVa0}, v{t[1]}, v{t[2]}, vcc")
    a(f"v_cndmask_b32 v{vVinc}, v{mA}, v{mB}, vcc")
    a("s_waitcnt vmcnt(8)")
    a(f"v_dot2_f32_bf16 v{mA}, v{vQ}, v{vQ}, 0")
    for r in range(1, 4):
        a(f"v_dot2_f32_bf16 v{mA}, v{vQ+r}, v{vQ+r}, v{mA}")
    a("s_nop 3")
    a(f"v_mov_b32 v{mB}, v{mA}")
    a("s_nop 1")
    a(f"v_permlane32_swap_b32 v{mA}, v{mB}")
    a("s_nop 1")
    a(f"v_add_f32 v{mA}, v{mA}, v{mB}")
    a("s_waitcnt vmcnt(0) lgkmcnt(0)")
    a("s_barrier")
    if STAMP: a("s_memtime s[74:75]")
    a(f"v_mov_b32 v{t[4]}, {KMAX_ADDR}")
    a(f"ds_read_b128 {v(P[0],4)}, v{t[4]}")
    a(f"ds_read_b128 {v(P[0]+4,4)}, v{t[4]} offset:16")
    a("s_cmp_lt_u32 s5, 4")
    a("s_cbranch_scc1 K2_NOPRIO")
    a("s_setprio 1")
    a.label("K2_NOPRIO")
    a("s_waitcnt lgkmcnt(0)")
    a(f"v_max3_f32 v{mB}, v{P[0]}, v{P[0]+1}, v{P[0]+2}")
    a(f"v_max3_f32 v{mB}, v{mB}, v{P[0]+3}, v{P[0]+4}")
    a(f"v_max3_f32 v{mB}, v{mB}, v{P[0]+5}, v{P[0]+6}")
    a(f"v_max_f32 v{mB}, v{mB}, v{P[0]+7}")
    a(f"v_mul_f32 v{mA}, v{mA}, v{mB}")
    a(f"v_sqrt_f32 v{mA}, v{mA}")
    a("s_nop 0")
    a(f"v_mul_f32 v{mA}, 0xbf802000, v{mA}")
    for i in range(16):
        a(f"v_mov_b32 v{C+i}, v{mA}")
    a("s_mov_b32 s17, 0")
    if STAMP: a("s_memtime s[76:77]")
    def kread(slot, tile_off):
        return f"ds_read_b128 {v(KF[slot],4)}, v{vKa} offset:{tile_off*1024}"
    def vreads(slot, tile_off):
        return [f"ds_read_b128 {v(VF[slot]+4*q,4)}, v{vVa} offset:{tile_off*1024 + q*512}" for q in range(2)]
    a.label("K2_P2_ENTRY")
    a(f"v_mov_b32 v{vKa}, v{vKa0}")
    a(f"v_mov_b32 v{vVa}, v{vVa0}")
    for T in range(3):
        a(kread(T, T))
    for o in vreads(0, 0): a(o)
    a("s_waitcnt lgkmcnt(3)")
    a(f"v_mfma_f32_32x32x16_bf16 {v(S[0],16)}, {v(KF[0],4)}, {v(vQ,4)}, {v(C,16)}")
    a(f"v_mfma_f32_32x32x16_bf16 {v(S[1],16)}, {v(KF[1],4)}, {v(vQ,4)}, {v(C,16)}")
    for i in range(16):
        a(f"v_mov_b32 v{O+i}, 0")
    a("s_mov_b32 s16, 16")
    a.label("K2_P2")
    for u in range(4):
        if VARIANT == 0:
            a(kread((u + 3) % 4, u + 3))
            for o in vreads((u + 1) % 2, u + 1): a(o)
            a("s_waitcnt lgkmcnt(3)")
            a(f"v_mfma_f32_32x32x16_bf16 {v(S[(u+2)%4],16)}, {v(KF[(u+2)%4],4)}, {v(vQ,4)}, {v(C,16)}")
            for i in range(16):
                a(f"v_exp_f32 v{S[u]+i}, v{S[u]+i}")
            for i in range(8):
                a(f"v_cvt_pk_bf16_f32 v{P[u%2]+i}, v{S[u]+2*i}, v{S[u]+2*i+1}")
            a("s_nop 1")
            a(f"v_mfma_f32_32x32x16_bf16 {v(O,16)}, {v(VF[u%2],4)}, {v(P[u%2],4)}, {v(O,16)}")
            a(f"v_mfma_f32_32x32x16_bf16 {v(O,16)}, {v(VF[u%2]+4,4)}, {v(P[u%2]+4,4)}, {v(O,16)}")
        elif VARIANT == 1:
            for i in range(16):
                a(f"v_exp_f32 v{S[u]+i}, v{S[u]+i}")
            for i in range(8):
                a(f"v_cvt_pk_bf16_f32 v{P[u%2]+i}, v{S[u]+2*i}, v{S[u]+2*i+1}")
            a(kread((u + 3) % 4, u + 3))
            for o in vreads((u + 1) % 2, u + 1): a(o)
            a("s_waitcnt lgkmcnt(3)")
            a(f"v_mfma_f32_32x32x16_bf16 {v(S[(u+2)%4],16)}, {v(KF[(u+2)%4],4)}, {v(vQ,4)}, {v(C,16)}")
            a(f"v_mfma_f32_32x32x16_bf16 {v(O,16)}, {v(VF[u%2],4)}, {v(P[u%2],4)}, {v(O,16)}")
            a(f"v_mfma_f32_32x32x16_bf16 {v(O,16)}, {v(VF[u%2]+4,4)}, {v(P[u%2]+4,4)}, {v(O,16)}")
        elif VARIANT == 2:
            a(kread((u + 3) % 4, u + 3))
            for o in vreads((u + 1) % 2, u + 1): a(o)
            a("s_waitcnt lgkmcnt(3)")
            a(f"v_mfma_f32_32x32x16_bf16 {v(S[(u+2)%4],16)}, {v(KF[(u+2)%4],4)}, {v(vQ,4)}, {v(C,16)}")
            for i in range(8):
                a(f"v_exp_f32 v{S[u]+i}, v{S[u]+i}")
            for i in range(4):
                a(f"v_cvt_pk_bf16_f32 v{P[u%2]+i}, v{S[u]+2*i}, v{S[u]+2*i+1}")
            for i in range(8, 10):
                a(f"v_exp_f32 v{S[u]+i}, v{S[u]+i}")
            a(f"v_mfma_f32_32x32x16_bf16 {v(O,16)}, {v(VF[u%2],4)}, {v(P[u%2],4)}, {v(O,16)}")
            for i in range(10, 16):
                a(f"v_exp_f32 v{S[u]+i}, v{S[u]+i}")
            for i in range(4, 8):
                a(f"v_cvt_pk_bf16_f32 v{P[u%2]+i}, v{S[u]+2*i}, v{S[u]+2*i+1}")
            a("s_nop 1")
            a(f"v_mfma_f32_32x32x16_bf16 {v(O,16)}, {v(VF[u%2]+4,4)}, {v(P[u%2]+4,4)}, {v(O,16)}")
    a(f"v_add_u32 v{vKa}, 4096, v{vKa}")
    a(f"v_add_u32 v{vVa}, v{vVinc}, v{vVa}")
    a("s_sub_u32 s16, s16, 1")
    a(f"s_cmp_lg_u32 s16, {PRIO_SWITCH}")
    a("s_cbranch_scc1 K2_P2B")
    a("s_setprio 0")
    a.label("K2_P2B")
    a("s_cmp_lg_u32 s16, 0")
    a("s_cbranch_scc1 K2_P2")
    a("s_waitcnt lgkmcnt(0)")
    a("s_nop 15")
    a("s_nop 7")
    if ONEROW:
        a(f"v_mov_b32 v{t[1]}, v{O+8}")
        a("s_nop 1")
        a(f"v_permlane32_swap_b32 v{O+8}, v{t[1]}")
        a("s_nop 1")
    a("s_cmp_lg_u32 s17, 0")
    a("s_cbranch_scc1 K2_FIN")
    a(f"v_mov_b32 v{t[0]}, 0x12800000")
    a(f"v_cmp_nge_f32 vcc, v{O+8}, v{t[0]}")
    a("s_nop 4")
    a("s_cmp_eq_u64 vcc, 0")
    a("s_cbranch_scc1 K2_FIN")
    a("s_mov_b32 s17, 1")
    a(f"v_mov_b32 v{vKa}, v{vKa0}")
    a(f"v_mov_b32 v{mA}, 0xff800000")
    a(f"v_mov_b32 v{mB}, 0xff800000")
    for T in range(3):
        a(kread(T, T))
    a("s_waitcnt lgkmcnt(1)")
    a(f"v_mfma_f32_32x32x16_bf16 {v(S[0],16)}, {v(KF[0],4)}, {v(vQ,4)}, 0")
    a(f"v_mfma_f32_32x32x16_bf16 {v(S[1],16)}, {v(KF[1],4)}, {v(vQ,4)}, 0")
    a("s_mov_b32 s16, 16")
    a.label("K2_P1")
    for u in range(4):
        a(kread((u + 3) % 4, u + 3))
        a("s_waitcnt lgkmcnt(1)")
        a(f"v_mfma_f32_32x32x16_bf16 {v(S[(u+2)%4],16)}, {v(KF[(u+2)%4],4)}, {v(vQ,4)}, 0")
        for i in range(8):
            m = mA if i % 2 == 0 else mB
            a(f"v_max3_f32 v{m}, v{S[u]+2*i}, v{S[u]+2*i+1}, v{m}")
    a(f"v_add_u32 v{vKa}, 4096, v{vKa}")
    a("s_sub_u32 s16, s16, 1")
    a("s_cmp_lg_u32 s16, 0")
    a("s_cbranch_scc1 K2_P1")
    a(f"v_max_f32 v{mA}, v{mA}, v{mB}")
    a("s_nop 1")
    a(f"v_mov_b32 v{mB}, v{mA}")
    a("s_nop 1")
    a(f"v_permlane32_swap_b32 v{mA}, v{mB}")
    a("s_nop 1")
    a(f"v_max_f32 v{mA}, v{mA}, v{mB}")
    a("s_waitcnt lgkmcnt(0)")
    a("s_nop 15")
    for i in range(16):
        a(f"v_sub_f32 v{C+i}, 0, v{mA}")
    a("s_nop 7")
    a("s_branch K2_P2_ENTRY")
    a.label("K2_FIN")
    a(f"v_rcp_f32 v{t[0]}, v{O+8}")
    a("s_nop 1")
    for i in range(8):
        a(f"v_mul_f32 v{O+i}, v{O+i}, v{t[0]}")
    Pp = P[0]
    for i in range(4):
        a(f"v_cvt_pk_bf16_f32 v{Pp+i}, v{O+2*i}, v{O+2*i+1}")
    a(f"v_lshlrev_b32 v{t[1]}, 4, v1")
    a("s_lshr_b32 s7, s12, 5")
    a("s_lshl_b32 s7, s7, 5")
    a("s_add_u32 s7, s7, s3")
    a("s_lshl_b32 s7, s7, 10")
    a(f"s_add_u32 s7, s7, {WS_O}")
    a(f"v_permlane32_swap_b32 v{Pp+0}, v{Pp+2}")
    a(f"v_permlane32_swap_b32 v{Pp+1}, v{Pp+3}")
    a("s_nop 1")
    if not MERGE:
        a(f"buffer_store_dwordx4 {v(Pp,4)}, v{t[1]}, s[8:11], s7 offen")
    else:
        a(f"buffer_store_dwordx4 {v(Pp,4)}, v{t[1]}, s[8:11], s7 offen sc1")
        a(f"v_mov_b32 v{t[2]}, {KMAX_ADDR}")
        a(f"v_mov_b32 v{t[3]}, 1")
        a("s_waitcnt vmcnt(0)")
        a("v_cmp_eq_u32 vcc, 0, v1")
        a("s_and_saveexec_b64 s[14:15], vcc")
        a(f"ds_add_rtn_u32 v{t[4]}, v{t[2]}, v{t[3]} offset:64")
        a("s_waitcnt lgkmcnt(0)")
        a(f"v_readfirstlane_b32 s7, v{t[4]}")
        a("s_cmp_lg_u32 s7, 7")
        a("s_cbranch_scc1 K2_NOFLAG")
        a("s_lshl_b32 s7, s4, 7")
        a("s_lshl_b32 s13, s3, 2")
        a("s_add_u32 s7, s7, s13")
        a(f"s_add_u32 s7, s7, {WS_FLAG}")
        a(f"v_mov_b32 v{t[2]}, 0")
        a(f"buffer_store_dword v{t[3]}, v{t[2]}, s[8:11], s7 offen sc1")
        a.label("K2_NOFLAG")
        a("s_mov_b64 exec, s[14:15]")
    stamp_end(a)
    a("s_endpgm")

    a.label("K2_FFN")
    R2 = RegAlloc(4)
    vA = R2.alloc(); vB = R2.alloc(); vG = R2.alloc(); vS = R2.alloc(); vG2 = R2.alloc()
    facc = R2.alloc(16, 4)
    Pf = R2.alloc(8, 4)
    BBr = R2.alloc(16, 4)
    D = 8; D2 = 12
    slots = R2.alloc(8 * D2, 4)
    a("s_barrier")
    if STAMP:
        a("s_memtime s[74:75]")
        a("s_memtime s[76:77]")
    a("s_sub_u32 s5, s5, 8")
    a("s_and_b32 s3, s2, 7")
    a("s_lshl_b32 s3, s3, 2")
    a("s_lshr_b32 s4, s2, 6")
    a("s_add_u32 s3, s3, s4")
    a("s_lshr_b32 s4, s2, 3")
    a("s_and_b32 s4, s4, 7")
    a("s_lshl_b32 s3, s3, 6")
    a("s_and_b32 s6, s5, 1")
    a("s_lshl_b32 s6, s6, 5")
    a("s_add_u32 s3, s3, s6")
    a("s_lshl_b32 s4, s4, 6")
    a("s_lshr_b32 s6, s5, 1")
    a("s_lshl_b32 s6, s6, 5")
    a("s_add_u32 s4, s4, s6")
    a("s_lshr_b32 s6, s4, 5")
    a(f"s_mul_i32 s6, s6, {86*1024}")
    a(f"s_add_u32 s6, s6, {WS_W2T}")
    a(f"v_lshlrev_b32 v{vA}, 4, v1")
    a(f"v_add_u32 v{vA}, s6, v{vA}")
    a(f"v_add_u32 v{vS}, s3, v2")
    a("s_lshr_b32 s6, s3, 5")
    a(f"s_mul_i32 s6, s6, {86*1024}")
    a(f"s_add_u32 s6, s6, {WS_ACT}")
    a(f"v_lshlrev_b32 v{vB}, 4, v1")
    a(f"v_add_u32 v{vB}, s6, v{vB}")
    a(f"v_lshlrev_b32 v{vG}, 2, v{vS}")
    a(f"s_mov_b32 s7, {WS_G}")
    a(f"buffer_load_dword v{vG2}, v{vG}, s[8:11], s7 offen")
    a(f"s_mov_b32 s7, {WS_OMG}")
    a(f"buffer_load_dword v{vG}, v{vG}, s[8:11], s7 offen")
    direct_gemm(a, vA, vB, 86, D, slots, facc)
    a("s_nop 15")
    a("s_nop 7")
    for i in range(8):
        a(f"v_cvt_pk_bf16_f32 v{Pf+i}, v{facc+2*i}, v{facc+2*i+1}")
    for i in range(8):
        a(f"v_lshlrev_b32 v{facc+2*i}, 16, v{Pf+i}")
        a(f"v_and_b32 v{facc+2*i+1}, 0xffff0000, v{Pf+i}")
    for i in range(16):
        a(f"v_mul_f32 v{facc+i}, v{facc+i}, v{vG}")
    for i in range(8):
        a(f"v_cvt_pk_bf16_f32 v{Pf+i}, v{facc+2*i}, v{facc+2*i+1}")
    if not MERGE:
        a(f"v_lshlrev_b32 v{vS}, 10, v{vS}")
        a(f"v_lshl_add_u32 v{vS}, v3, 4, v{vS}")
        a("s_lshl_b32 s7, s4, 1")
        a(f"s_add_u32 s7, s7, {WS_BB}")
        a(f"v_permlane32_swap_b32 v{Pf+0}, v{Pf+2}")
        a(f"v_permlane32_swap_b32 v{Pf+1}, v{Pf+3}")
        a(f"v_permlane32_swap_b32 v{Pf+4}, v{Pf+6}")
        a(f"v_permlane32_swap_b32 v{Pf+5}, v{Pf+7}")
        a("s_nop 1")
        a(f"buffer_store_dwordx4 {v(Pf,4)}, v{vS}, s[8:11], s7 offen")
        a(f"buffer_store_dwordx4 {v(Pf+4,4)}, v{vS}, s[8:11], s7 offen offset:32")
    else:
        for i in range(8):
            a(f"v_lshlrev_b32 v{BBr+2*i}, 16, v{Pf+i}")
            a(f"v_and_b32 v{BBr+2*i+1}, 0xffff0000, v{Pf+i}")
        a("s_lshr_b32 s6, s3, 8")
        a("s_lshl_b32 s6, s6, 7")
        a(f"s_add_u32 s6, s6, {WS_FLAG}")
        a(f"v_lshlrev_b32 v{vA}, 2, v2")
        a("s_barrier")
        a.label("K2_POLL")
        a(f"buffer_load_dword v{vB}, v{vA}, s[8:11], s6 offen sc1")
        a("s_waitcnt vmcnt(0)")
        a(f"v_cmp_ne_u32 vcc, 1, v{vB}")
        a("s_nop 4")
        a("s_cmp_eq_u64 vcc, 0")
        a("s_cbranch_scc1 K2_POLLDONE")
        a("s_sleep 2")
        a("s_branch K2_POLL")
        a.label("K2_POLLDONE")
        if STAMP: a("s_memtime s[74:75]")
        if STAMP: a("s_memtime s[76:77]")
        a("s_lshr_b32 s6, s4, 5")
        a(f"s_lshl_b32 s6, s6, 15")
        a(f"s_add_u32 s6, s6, {WS_WOT}")
        a(f"v_lshlrev_b32 v{vA}, 4, v1")
        a(f"v_add_u32 v{vA}, s6, v{vA}")
        a("s_lshr_b32 s6, s3, 5")
        a(f"s_lshl_b32 s6, s6, 15")
        a(f"s_add_u32 s6, s6, {WS_O}")
        a(f"v_lshlrev_b32 v{vB}, 4, v1")
        a(f"v_add_u32 v{vB}, s6, v{vB}")
        direct_gemm(a, vA, vB, 32, D2, slots, facc)
        a("s_nop 15")
        a("s_nop 7")
        for i in range(8):
            a(f"v_cvt_pk_bf16_f32 v{Pf+i}, v{facc+2*i}, v{facc+2*i+1}")
        for i in range(8):
            a(f"v_lshlrev_b32 v{facc+2*i}, 16, v{Pf+i}")
            a(f"v_and_b32 v{facc+2*i+1}, 0xffff0000, v{Pf+i}")
        for i in range(16):
            a(f"v_mul_f32 v{facc+i}, v{facc+i}, v{vG2}")
        for i in range(8):
            a(f"v_cvt_pk_bf16_f32 v{Pf+i}, v{facc+2*i}, v{facc+2*i+1}")
        for i in range(8):
            a(f"v_lshlrev_b32 v{facc+2*i}, 16, v{Pf+i}")
            a(f"v_and_b32 v{facc+2*i+1}, 0xffff0000, v{Pf+i}")
        for i in range(16):
            a(f"v_add_f32 v{facc+i}, v{facc+i}, v{BBr+i}")
        for i in range(8):
            a(f"v_cvt_pk_bf16_f32 v{Pf+i}, v{facc+2*i}, v{facc+2*i+1}")
        a(f"v_lshlrev_b32 v{vS}, 10, v{vS}")
        a(f"v_lshl_add_u32 v{vS}, v3, 4, v{vS}")
        a("s_lshl_b32 s7, s4, 1")
        a(f"v_permlane32_swap_b32 v{Pf+0}, v{Pf+2}")
        a(f"v_permlane32_swap_b32 v{Pf+1}, v{Pf+3}")
        a(f"v_permlane32_swap_b32 v{Pf+4}, v{Pf+6}")
        a(f"v_permlane32_swap_b32 v{Pf+5}, v{Pf+7}")
        a("s_nop 1")
        a(f"buffer_store_dwordx4 {v(Pf,4)}, v{vS}, s[44:47], s7 offen")
        a(f"buffer_store_dwordx4 {v(Pf+4,4)}, v{vS}, s[44:47], s7 offen offset:32")
    stamp_end(a)
    a.label("K2_END")
    a("s_endpgm")
    return a.text(), max(nv_att, R2.next)

K3_LDS = 131072
def gen_k3():
    a = Asm()
    R2 = RegAlloc(4)
    vL = R2.alloc(); vRA = R2.alloc(); vRB = R2.alloc(); vG = R2.alloc(); vS = R2.alloc()
    facc = R2.alloc(16, 4)
    Pf = R2.alloc(8, 4)
    BB = R2.alloc(8, 4)
    T = R2.alloc(16, 4)
    FR = [R2.alloc(8, 4) for _ in range(4)]
    a("s_cmp_ge_u32 s2, 256")
    a("s_cbranch_scc1 K3_END")
    if STAMP:
        a("s_memtime s[72:73]")
        a("s_memrealtime s[90:91]")
    a("s_load_dwordx2 s[52:53], s[0:1], 80")
    a("s_load_dwordx2 s[54:55], s[0:1], 64")
    a("v_lshrrev_b32 v1, 6, v0")
    a("s_nop 0")
    a("v_readfirstlane_b32 s5, v1")
    a("v_and_b32 v1, 63, v0")
    a("v_and_b32 v2, 31, v0")
    a("v_bfe_u32 v3, v0, 5, 1")
    a(f"v_lshlrev_b32 v{vL}, 4, v1")
    a("s_and_b32 s3, s2, 7")
    a("s_lshl_b32 s3, s3, 2")
    a("s_lshr_b32 s4, s2, 6")
    a("s_add_u32 s3, s3, s4")
    a("s_lshr_b32 s4, s2, 3")
    a("s_and_b32 s4, s4, 7")
    a("s_lshl_b32 s6, s4, 1")
    a("s_add_u32 s6, s6, s5")
    a("s_lshl_b32 s6, s6, 15")
    a(f"s_add_u32 s6, s6, {WS_WOT}")
    a("s_lshl_b32 s7, s3, 1")
    a("s_add_u32 s7, s7, s5")
    a("s_sub_u32 s7, s7, 2")
    a("s_lshl_b32 s7, s7, 15")
    a(f"s_add_u32 s7, s7, {WS_O}")
    a("s_cmp_lt_u32 s5, 2")
    a("s_cselect_b32 s18, s6, s7")
    a("s_lshl_b32 s19, s5, 15")
    a("s_waitcnt lgkmcnt(0)")
    srd(a, 8, 52, WS_SIZE)
    srd(a, 12, 54, 2097152)
    for ks in range(32):
        a(f"s_add_u32 m0, s19, {ks*1024}")
        a(f"s_add_u32 s20, s18, {ks*1024}")
        a(f"buffer_load_dwordx4 v{vL}, s[8:11], s20 offen lds")
    a("s_lshl_b32 s3, s3, 6")
    a("s_and_b32 s6, s5, 1")
    a("s_lshl_b32 s6, s6, 5")
    a("s_add_u32 s3, s3, s6")
    a("s_lshl_b32 s4, s4, 6")
    a("s_lshr_b32 s6, s5, 1")
    a("s_lshl_b32 s6, s6, 5")
    a("s_add_u32 s4, s4, s6")
    a(f"v_add_u32 v{vS}, s3, v2")
    a(f"v_lshlrev_b32 v{vG}, 2, v{vS}")
    a(f"s_mov_b32 s7, {WS_G}")
    a(f"buffer_load_dword v{vG}, v{vG}, s[8:11], s7 offen")
    a(f"v_lshlrev_b32 v{vS}, 10, v{vS}")
    a(f"v_lshl_add_u32 v{vS}, v3, 4, v{vS}")
    a("s_lshl_b32 s16, s4, 1")
    a(f"s_add_u32 s17, s16, {WS_BB}")
    a(f"buffer_load_dwordx4 {v(BB,4)}, v{vS}, s[8:11], s17 offen")
    a(f"buffer_load_dwordx4 {v(BB+4,4)}, v{vS}, s[8:11], s17 offen offset:32")
    a("s_lshr_b32 s6, s5, 1")
    a("s_lshl_b32 s6, s6, 15")
    a(f"v_add_u32 v{vRA}, s6, v{vL}")
    a("s_and_b32 s6, s5, 1")
    a("s_add_u32 s6, s6, 2")
    a("s_lshl_b32 s6, s6, 15")
    a(f"v_add_u32 v{vRB}, s6, v{vL}")
    if STAMP: a("s_memtime s[74:75]")
    def rd(ks):
        f = FR[ks % 4]
        a(f"ds_read_b128 {v(f,4)}, v{vRA} offset:{ks*1024}")
        a(f"ds_read_b128 {v(f+4,4)}, v{vRB} offset:{ks*1024}")
    for c in range(4):
        a(f"s_waitcnt vmcnt({3 + 32 - 8*(c+1)})")
        a("s_barrier")
        rd(8*c); rd(8*c+1); rd(8*c+2)
        for k in range(8):
            ks = 8*c + k
            if k + 3 < 8:
                rd(ks + 3)
                a("s_waitcnt lgkmcnt(6)")
            else:
                a(f"s_waitcnt lgkmcnt({2*(7-k)})")
            f = FR[ks % 4]
            cc = "0" if ks == 0 else v(facc, 16)
            a(f"v_mfma_f32_32x32x16_bf16 {v(facc,16)}, {v(f,4)}, {v(f+4,4)}, {cc}")
    if STAMP: a("s_memtime s[76:77]")
    a("s_waitcnt vmcnt(0)")
    a("s_nop 15")
    a("s_nop 7")
    for i in range(8):
        a(f"v_cvt_pk_bf16_f32 v{Pf+i}, v{facc+2*i}, v{facc+2*i+1}")
    for i in range(8):
        a(f"v_lshlrev_b32 v{facc+2*i}, 16, v{Pf+i}")
        a(f"v_and_b32 v{facc+2*i+1}, 0xffff0000, v{Pf+i}")
    for i in range(16):
        a(f"v_mul_f32 v{facc+i}, v{facc+i}, v{vG}")
    for i in range(8):
        a(f"v_cvt_pk_bf16_f32 v{Pf+i}, v{facc+2*i}, v{facc+2*i+1}")
    a("s_nop 1")
    a(f"v_permlane32_swap_b32 v{Pf+0}, v{Pf+2}")
    a(f"v_permlane32_swap_b32 v{Pf+1}, v{Pf+3}")
    a(f"v_permlane32_swap_b32 v{Pf+4}, v{Pf+6}")
    a(f"v_permlane32_swap_b32 v{Pf+5}, v{Pf+7}")
    a("s_nop 1")
    for i in range(8):
        a(f"v_lshlrev_b32 v{facc+2*i}, 16, v{Pf+i}")
        a(f"v_and_b32 v{facc+2*i+1}, 0xffff0000, v{Pf+i}")
        a(f"v_lshlrev_b32 v{T+2*i}, 16, v{BB+i}")
        a(f"v_and_b32 v{T+2*i+1}, 0xffff0000, v{BB+i}")
    for i in range(16):
        a(f"v_add_f32 v{facc+i}, v{facc+i}, v{T+i}")
    for i in range(8):
        a(f"v_cvt_pk_bf16_f32 v{Pf+i}, v{facc+2*i}, v{facc+2*i+1}")
    a(f"buffer_store_dwordx4 {v(Pf,4)}, v{vS}, s[12:15], s16 offen")
    a(f"buffer_store_dwordx4 {v(Pf+4,4)}, v{vS}, s[12:15], s16 offen offset:32")
    if STAMP:
        a("s_waitcnt vmcnt(0)")
        a("s_memtime s[78:79]")
        a("s_memrealtime s[92:93]")
        a("s_waitcnt lgkmcnt(0)")
        a("s_sub_u32 s74, s74, s72")
        a("s_sub_u32 s76, s76, s72")
        a("s_sub_u32 s78, s78, s72")
        a("v_mov_b32 v4, s90")
        a("v_mov_b32 v5, s92")
        a("v_mov_b32 v6, s74")
        a("v_mov_b32 v7, s76")
        a("v_mov_b32 v8, s78")
        a("s_lshl_b32 s87, s2, 2")
        a("s_add_u32 s87, s87, s5")
        a("s_lshl_b32 s87, s87, 5")
        a("s_add_u32 s87, s87, 0x1500000")
        a("v_mov_b32 v9, 0")
        a("buffer_store_dwordx4 v[4:7], v9, s[8:11], s87 offen")
        a("buffer_store_dword v8, v9, s[8:11], s87 offen offset:16")
    a.label("K3_END")
    a("s_endpgm")
    return a.text(), R2.next
```

```python
from asmlib import *
from layout import *
import os
STAMP = os.environ.get('STAMP') == '1'
PRIO_SWITCH = int(os.environ.get('PRIO_SWITCH', '5'))
VARIANT = int(os.environ.get('VARIANT', '0'))
MERGE = int(os.environ.get('MERGE', '1'))
ONEROW = int(os.environ.get('ONEROW', '1'))
KMAX_ADDR = 131072 + 8192
K2_LDS = KMAX_ADDR + 256

def direct_gemm(a, vA, vB, nsteps, D, base, acc, srd_="s[8:11]", nv_slots=None, flagB=""):
    def reg(sl, off):
        if nv_slots is not None and sl >= nv_slots:
            b = 8 * (sl - nv_slots) + off
            return f"a[{b}:{b+3}]"
        return v(base + 8 * sl + off, 4)
    def issue(j):
        sl = j % D
        if j % 4 == 0:
            a(f"s_mov_b32 s40, {(j//4)*4096}")
        a(f"buffer_load_dwordx4 {reg(sl,0)}, v{vA}, {srd_}, s40 offen offset:{(j%4)*1024}")
        a(f"buffer_load_dwordx4 {reg(sl,4)}, v{vB}, {srd_}, s40 offen offset:{(j%4)*1024}{flagB}")
    for j in range(min(D, nsteps)):
        issue(j)
    for j in range(nsteps):
        out = min(D, nsteps - j) - 1
        a(f"s_waitcnt vmcnt({min(63, 2*out)})")
        sl = j % D
        c = "0" if j == 0 else v(acc, 16)
        a(f"v_mfma_f32_32x32x16_bf16 {v(acc,16)}, {reg(sl,0)}, {reg(sl,4)}, {c}")
        if j + D < nsteps:
            issue(j + D)

def stamp_end(a):
    if not STAMP: return
    a("s_waitcnt vmcnt(0)")
    a("s_memtime s[78:79]")
    a("s_memrealtime s[92:93]")
    a("s_waitcnt lgkmcnt(0)")
    a("v_mov_b32 v4, s90")
    a("v_mov_b32 v5, s92")
    a("s_lshl_b32 s87, s2, 4")
    a("s_add_u32 s87, s87, s88")
    a("s_lshl_b32 s87, s87, 3")
    a("s_add_u32 s87, s87, 0x1400000")
    a("v_mov_b32 v8, 0")
    a("buffer_store_dwordx2 v[4:5], v8, s[8:11], s87 offen")
    a("s_sub_u32 s74, s74, s72")
    a("s_sub_u32 s76, s76, s72")
    a("s_sub_u32 s78, s78, s72")
    a("v_mov_b32 v4, s74")
    a("v_mov_b32 v5, s76")
    a("v_mov_b32 v6, s78")
    a("v_mov_b32 v7, 0")
    a("s_lshl_b32 s87, s2, 4")
    a("s_add_u32 s87, s87, s88")
    a("s_lshl_b32 s87, s87, 4")
    a("s_add_u32 s87, s87, 0x1600000")
    a("buffer_store_dwordx4 v[4:7], v8, s[8:11], s87 offen")

def gen_k2():
    a = Asm()
    R = RegAlloc(4)
    vQ = R.alloc(4, 4)
    vKa = R.alloc(); vVa = R.alloc(); vVinc = R.alloc()
    vKa0 = R.alloc(); vVa0 = R.alloc()
    vt = [R.alloc() for _ in range(6)]
    mA = R.alloc(); mB = R.alloc()
    KF = [R.alloc(4, 4) for _ in range(4)]
    S = [R.alloc(16, 4) for _ in range(4)]
    C = R.alloc(16, 4)
    P = [R.alloc(8, 4) for _ in range(2)]
    VF = [R.alloc(8, 4) for _ in range(2)]
    O = R.alloc(16, 4)
    nv_att = R.next

    a("s_cmp_ge_u32 s2, 256")
    a("s_cbranch_scc1 K2_END")
    if STAMP:
        a("s_memtime s[72:73]")
        a("s_memrealtime s[90:91]")
        a("s_load_dwordx2 s[84:85], s[0:1], 72")
    a("s_load_dwordx2 s[52:53], s[0:1], 80")
    a("s_load_dwordx4 s[56:59], s[0:1], 64")
    a("v_lshrrev_b32 v1, 6, v0")
    a("s_nop 0")
    a("v_readfirstlane_b32 s5, v1")
    a("v_and_b32 v1, 63, v0")
    a("v_and_b32 v2, 31, v0")
    a("v_bfe_u32 v3, v0, 5, 1")
    a("s_waitcnt lgkmcnt(0)")
    srd(a, 8, 52, WS_SIZE)
    srd(a, 44, 56, 2097152)
    if STAMP: a("s_mov_b32 s88, s5")
    a("s_cmp_ge_u32 s5, 8")
    a("s_cbranch_scc1 K2_FFN")
    a("s_and_b32 s3, s2, 7")
    a("s_lshl_b32 s3, s3, 2")
    a("s_lshr_b32 s4, s2, 6")
    a("s_add_u32 s3, s3, s4")
    a("s_lshr_b32 s4, s2, 3")
    a("s_and_b32 s4, s4, 7")
    a("s_lshl_b32 s6, s3, 16")
    t = vt
    a(f"v_lshlrev_b32 v{t[0]}, 4, v0")
    stgK = S[0]; stgV = S[2]
    for i in range(8):
        a(f"s_add_u32 s7, s6, {WS_K + i*8192}")
        a(f"buffer_load_dwordx4 {v(stgK+4*i,4)}, v{t[0]}, s[8:11], s7 offen")
    a("s_lshl_b32 s12, s4, 8")
    a("s_lshl_b32 s13, s5, 5")
    a("s_add_u32 s12, s12, s13")
    a(f"v_add_u32 v{t[1]}, s12, v2")
    a(f"v_lshlrev_b32 v{t[2]}, 5, v{t[1]}")
    a(f"v_lshl_add_u32 v{t[2]}, v3, 4, v{t[2]}")
    a(f"s_add_u32 s7, s6, {WS_Q}")
    a(f"buffer_load_dwordx4 {v(vQ,4)}, v{t[2]}, s[8:11], s7 offen")
    a(f"v_lshlrev_b32 v{t[5]}, 4, v1")
    a("s_lshl_b32 s13, s5, 10")
    for i in range(8):
        a(f"s_add_u32 m0, s13, {65536 + i*8192}")
        a(f"s_add_u32 s7, s6, {WS_V + i*8192}")
        a("s_add_u32 s7, s7, s13")
        a(f"buffer_load_dwordx4 v{t[5]}, s[8:11], s7 offen lds")
    if ONEROW:
        a(f"v_and_b32 v{C+1}, 1, v0")
        a(f"v_cmp_eq_u32 vcc, 0, v{C+1}")
        a(f"v_mov_b32 v{C+2}, 0x3f80")
        a(f"v_mov_b32 v{C+1}, 0")
        a(f"v_mov_b32 v{C+3}, 0")
        a(f"v_cndmask_b32 v{C}, v{C+1}, v{C+2}, vcc")
        a(f"v_mov_b32 v{C+2}, 0")
    else:
        for i in range(4):
            a(f"v_mov_b32 v{C+i}, 0x3f803f80")
    a(f"v_add_u32 v{t[3]}, 131072, v{t[0]}")
    a(f"ds_write_b128 v{t[3]}, {v(C,4)}")
    a("s_lshl_b32 s13, s5, 2")
    a(f"s_add_u32 s13, s13, {KMAX_ADDR}")
    a(f"v_mov_b32 v{t[4]}, s13")
    if MERGE:
        a(f"v_mov_b32 v{t[5]}, 0")
        a(f"v_mov_b32 v{t[3]}, {KMAX_ADDR}")
        a(f"ds_write_b32 v{t[3]}, v{t[5]} offset:64")
    a("s_waitcnt vmcnt(9)")
    for i in range(8):
        a(f"ds_write_b128 v{t[0]}, {v(stgK+4*i,4)} offset:{i*8192}")
    N = P[0]
    N2 = P[1]
    for i in range(8):
        a(f"v_dot2_f32_bf16 v{N+i}, v{stgK+4*i}, v{stgK+4*i}, 0")
    for r in range(1, 4):
        for i in range(8):
            a(f"v_dot2_f32_bf16 v{N+i}, v{stgK+4*i+r}, v{stgK+4*i+r}, v{N+i}")
    a("s_nop 3")
    for i in range(8):
        a(f"v_add_f32_dpp v{N2+i}, v{N+i}, v{N+i} quad_perm:[1,0,3,2] row_mask:0xf bank_mask:0xf")
    a(f"v_max3_f32 v{N}, v{N2}, v{N2+1}, v{N2+2}")
    a(f"v_max3_f32 v{N+1}, v{N2+3}, v{N2+4}, v{N2+5}")
    a(f"v_max3_f32 v{N}, v{N}, v{N2+6}, v{N2+7}")
    a(f"v_max_f32 v{N}, v{N}, v{N+1}")
    for ctl in ("row_shr:1 row_mask:0xf", "row_shr:2 row_mask:0xf", "row_shr:4 row_mask:0xf", "row_shr:8 row_mask:0xf",
                "row_bcast:15 row_mask:0xa", "row_bcast:31 row_mask:0xc"):
        a("s_nop 1")
        a(f"v_max_f32_dpp v{N}, v{N}, v{N} {ctl} bank_mask:0xf")
    a("v_cmp_eq_u32 vcc, 63, v1")
    a("s_and_saveexec_b64 s[14:15], vcc")
    a(f"ds_write_b32 v{t[4]}, v{N}")
    a("s_mov_b64 exec, s[14:15]")
    a(f"v_lshlrev_b32 v{vKa0}, 5, v2")
    a(f"v_lshl_add_u32 v{vKa0}, v3, 4, v{vKa0}")
    a(f"v_bfe_u32 v{t[1]}, v0, 2, 2")
    a(f"v_lshl_add_u32 v{t[1]}, v3, 2, v{t[1]}")
    a(f"v_lshlrev_b32 v{t[1]}, 5, v{t[1]}")
    a(f"v_and_b32 v{t[2]}, 3, v0")
    a(f"v_lshl_add_u32 v{t[1]}, v{t[2]}, 3, v{t[1]}")
    a(f"v_add_u32 v{t[1]}, 65536, v{t[1]}")
    a(f"v_and_b32 v{t[2]}, 15, v0")
    a(f"v_lshlrev_b32 v{t[2]}, 3, v{t[2]}")
    a(f"v_add_u32 v{t[2]}, 131072, v{t[2]}")
    a(f"v_bfe_u32 v{t[3]}, v0, 4, 1")
    a(f"v_cmp_eq_u32 vcc, 1, v{t[3]}")
    a(f"v_mov_b32 v{mA}, 4096")
    a(f"v_mov_b32 v{mB}, 0")
    a("s_nop 1")
    a(f"v_cndmask_b32 v{vVa0}, v{t[1]}, v{t[2]}, vcc")
    a(f"v_cndmask_b32 v{vVinc}, v{mA}, v{mB}, vcc")
    a("s_waitcnt vmcnt(8)")
    a(f"v_dot2_f32_bf16 v{mA}, v{vQ}, v{vQ}, 0")
    for r in range(1, 4):
        a(f"v_dot2_f32_bf16 v{mA}, v{vQ+r}, v{vQ+r}, v{mA}")
    a("s_nop 3")
    a(f"v_mov_b32 v{mB}, v{mA}")
    a("s_nop 1")
    a(f"v_permlane32_swap_b32 v{mA}, v{mB}")
    a("s_nop 1")
    a(f"v_add_f32 v{mA}, v{mA}, v{mB}")
    a("s_waitcnt vmcnt(0) lgkmcnt(0)")
    a("s_barrier")
    if STAMP: a("s_memtime s[74:75]")
    a(f"v_mov_b32 v{t[4]}, {KMAX_ADDR}")
    a(f"ds_read_b128 {v(P[0],4)}, v{t[4]}")
    a(f"ds_read_b128 {v(P[0]+4,4)}, v{t[4]} offset:16")
    a("s_cmp_lt_u32 s5, 4")
    a("s_cbranch_scc1 K2_NOPRIO")
    a("s_setprio 1")
    a.label("K2_NOPRIO")
    a("s_waitcnt lgkmcnt(0)")
    a(f"v_max3_f32 v{mB}, v{P[0]}, v{P[0]+1}, v{P[0]+2}")
    a(f"v_max3_f32 v{mB}, v{mB}, v{P[0]+3}, v{P[0]+4}")
    a(f"v_max3_f32 v{mB}, v{mB}, v{P[0]+5}, v{P[0]+6}")
    a(f"v_max_f32 v{mB}, v{mB}, v{P[0]+7}")
    a(f"v_mul_f32 v{mA}, v{mA}, v{mB}")
    a(f"v_sqrt_f32 v{mA}, v{mA}")
    a("s_nop 0")
    a(f"v_mul_f32 v{mA}, 0xbf802000, v{mA}")
    for i in range(16):
        a(f"v_mov_b32 v{C+i}, v{mA}")
    a("s_mov_b32 s17, 0")
    if STAMP: a("s_memtime s[76:77]")
    def kread(slot, tile_off):
        return f"ds_read_b128 {v(KF[slot],4)}, v{vKa} offset:{tile_off*1024}"
    def vreads(slot, tile_off):
        return [f"ds_read_b64_tr_b16 {v(VF[slot]+2*q,2)}, v{vVa} offset:{tile_off*1024 + (q//2)*512 + (q%2)*256}" for q in range(4)]
    a.label("K2_P2_ENTRY")
    a(f"v_mov_b32 v{vKa}, v{vKa0}")
    a(f"v_mov_b32 v{vVa}, v{vVa0}")
    for T in range(3):
        a(kread(T, T))
    for o in vreads(0, 0): a(o)
    a("s_waitcnt lgkmcnt(5)")
    a(f"v_mfma_f32_32x32x16_bf16 {v(S[0],16)}, {v(KF[0],4)}, {v(vQ,4)}, {v(C,16)}")
    a(f"v_mfma_f32_32x32x16_bf16 {v(S[1],16)}, {v(KF[1],4)}, {v(vQ,4)}, {v(C,16)}")
    for i in range(16):
        a(f"v_mov_b32 v{O+i}, 0")
    a("s_mov_b32 s16, 16")
    a.label("K2_P2")
    for u in range(4):
        if VARIANT == 0:
            a(kread((u + 3) % 4, u + 3))
            for o in vreads((u + 1) % 2, u + 1): a(o)
            a("s_waitcnt lgkmcnt(5)")
            a(f"v_mfma_f32_32x32x16_bf16 {v(S[(u+2)%4],16)}, {v(KF[(u+2)%4],4)}, {v(vQ,4)}, {v(C,16)}")
            for i in range(16):
                a(f"v_exp_f32 v{S[u]+i}, v{S[u]+i}")
            for i in range(8):
                a(f"v_cvt_pk_bf16_f32 v{P[u%2]+i}, v{S[u]+2*i}, v{S[u]+2*i+1}")
            a("s_nop 1")
            a(f"v_mfma_f32_32x32x16_bf16 {v(O,16)}, {v(VF[u%2],4)}, {v(P[u%2],4)}, {v(O,16)}")
            a(f"v_mfma_f32_32x32x16_bf16 {v(O,16)}, {v(VF[u%2]+4,4)}, {v(P[u%2]+4,4)}, {v(O,16)}")
        elif VARIANT == 1:
            for i in range(16):
                a(f"v_exp_f32 v{S[u]+i}, v{S[u]+i}")
            for i in range(8):
                a(f"v_cvt_pk_bf16_f32 v{P[u%2]+i}, v{S[u]+2*i}, v{S[u]+2*i+1}")
            a(kread((u + 3) % 4, u + 3))
            for o in vreads((u + 1) % 2, u + 1): a(o)
            a("s_waitcnt lgkmcnt(5)")
            a(f"v_mfma_f32_32x32x16_bf16 {v(S[(u+2)%4],16)}, {v(KF[(u+2)%4],4)}, {v(vQ,4)}, {v(C,16)}")
            a(f"v_mfma_f32_32x32x16_bf16 {v(O,16)}, {v(VF[u%2],4)}, {v(P[u%2],4)}, {v(O,16)}")
            a(f"v_mfma_f32_32x32x16_bf16 {v(O,16)}, {v(VF[u%2]+4,4)}, {v(P[u%2]+4,4)}, {v(O,16)}")
        elif VARIANT == 2:
            a(kread((u + 3) % 4, u + 3))
            for o in vreads((u + 1) % 2, u + 1): a(o)
            a("s_waitcnt lgkmcnt(5)")
            a(f"v_mfma_f32_32x32x16_bf16 {v(S[(u+2)%4],16)}, {v(KF[(u+2)%4],4)}, {v(vQ,4)}, {v(C,16)}")
            for i in range(8):
                a(f"v_exp_f32 v{S[u]+i}, v{S[u]+i}")
            for i in range(4):
                a(f"v_cvt_pk_bf16_f32 v{P[u%2]+i}, v{S[u]+2*i}, v{S[u]+2*i+1}")
            for i in range(8, 10):
                a(f"v_exp_f32 v{S[u]+i}, v{S[u]+i}")
            a(f"v_mfma_f32_32x32x16_bf16 {v(O,16)}, {v(VF[u%2],4)}, {v(P[u%2],4)}, {v(O,16)}")
            for i in range(10, 16):
                a(f"v_exp_f32 v{S[u]+i}, v{S[u]+i}")
            for i in range(4, 8):
                a(f"v_cvt_pk_bf16_f32 v{P[u%2]+i}, v{S[u]+2*i}, v{S[u]+2*i+1}")
            a("s_nop 1")
            a(f"v_mfma_f32_32x32x16_bf16 {v(O,16)}, {v(VF[u%2]+4,4)}, {v(P[u%2]+4,4)}, {v(O,16)}")
    a(f"v_add_u32 v{vKa}, 4096, v{vKa}")
    a(f"v_add_u32 v{vVa}, v{vVinc}, v{vVa}")
    a("s_sub_u32 s16, s16, 1")
    a(f"s_cmp_lg_u32 s16, {PRIO_SWITCH}")
    a("s_cbranch_scc1 K2_P2B")
    a("s_setprio 0")
    a.label("K2_P2B")
    a("s_cmp_lg_u32 s16, 0")
    a("s_cbranch_scc1 K2_P2")
    a("s_waitcnt lgkmcnt(0)")
    a("s_nop 15")
    a("s_nop 7")
    if ONEROW:
        a(f"v_mov_b32 v{t[1]}, v{O+8}")
        a("s_nop 1")
        a(f"v_permlane32_swap_b32 v{O+8}, v{t[1]}")
        a("s_nop 1")
    a("s_cmp_lg_u32 s17, 0")
    a("s_cbranch_scc1 K2_FIN")
    a(f"v_mov_b32 v{t[0]}, 0x12800000")
    a(f"v_cmp_nge_f32 vcc, v{O+8}, v{t[0]}")
    a("s_nop 4")
    a("s_cmp_eq_u64 vcc, 0")
    a("s_cbranch_scc1 K2_FIN")
    a("s_mov_b32 s17, 1")
    a(f"v_mov_b32 v{vKa}, v{vKa0}")
    a(f"v_mov_b32 v{mA}, 0xff800000")
    a(f"v_mov_b32 v{mB}, 0xff800000")
    for T in range(3):
        a(kread(T, T))
    a("s_waitcnt lgkmcnt(1)")
    a(f"v_mfma_f32_32x32x16_bf16 {v(S[0],16)}, {v(KF[0],4)}, {v(vQ,4)}, 0")
    a(f"v_mfma_f32_32x32x16_bf16 {v(S[1],16)}, {v(KF[1],4)}, {v(vQ,4)}, 0")
    a("s_mov_b32 s16, 16")
    a.label("K2_P1")
    for u in range(4):
        a(kread((u + 3) % 4, u + 3))
        a("s_waitcnt lgkmcnt(1)")
        a(f"v_mfma_f32_32x32x16_bf16 {v(S[(u+2)%4],16)}, {v(KF[(u+2)%4],4)}, {v(vQ,4)}, 0")
        for i in range(8):
            m = mA if i % 2 == 0 else mB
            a(f"v_max3_f32 v{m}, v{S[u]+2*i}, v{S[u]+2*i+1}, v{m}")
    a(f"v_add_u32 v{vKa}, 4096, v{vKa}")
    a("s_sub_u32 s16, s16, 1")
    a("s_cmp_lg_u32 s16, 0")
    a("s_cbranch_scc1 K2_P1")
    a(f"v_max_f32 v{mA}, v{mA}, v{mB}")
    a("s_nop 1")
    a(f"v_mov_b32 v{mB}, v{mA}")
    a("s_nop 1")
    a(f"v_permlane32_swap_b32 v{mA}, v{mB}")
    a("s_nop 1")
    a(f"v_max_f32 v{mA}, v{mA}, v{mB}")
    a("s_waitcnt lgkmcnt(0)")
    a("s_nop 15")
    for i in range(16):
        a(f"v_sub_f32 v{C+i}, 0, v{mA}")
    a("s_nop 7")
    a("s_branch K2_P2_ENTRY")
    a.label("K2_FIN")
    a(f"v_rcp_f32 v{t[0]}, v{O+8}")
    a("s_nop 1")
    for i in range(8):
        a(f"v_mul_f32 v{O+i}, v{O+i}, v{t[0]}")
    Pp = P[0]
    for i in range(4):
        a(f"v_cvt_pk_bf16_f32 v{Pp+i}, v{O+2*i}, v{O+2*i+1}")
    a(f"v_lshlrev_b32 v{t[1]}, 4, v1")
    a("s_lshr_b32 s7, s12, 5")
    a("s_lshl_b32 s7, s7, 5")
    a("s_add_u32 s7, s7, s3")
    a("s_lshl_b32 s7, s7, 10")
    a(f"s_add_u32 s7, s7, {WS_O}")
    a(f"v_permlane32_swap_b32 v{Pp+0}, v{Pp+2}")
    a(f"v_permlane32_swap_b32 v{Pp+1}, v{Pp+3}")
    a("s_nop 1")
    if not MERGE:
        a(f"buffer_store_dwordx4 {v(Pp,4)}, v{t[1]}, s[8:11], s7 offen")
    else:
        a(f"buffer_store_dwordx4 {v(Pp,4)}, v{t[1]}, s[8:11], s7 offen sc1")
        a(f"v_mov_b32 v{t[2]}, {KMAX_ADDR}")
        a(f"v_mov_b32 v{t[3]}, 1")
        a("s_waitcnt vmcnt(0)")
        a("v_cmp_eq_u32 vcc, 0, v1")
        a("s_and_saveexec_b64 s[14:15], vcc")
        a(f"ds_add_rtn_u32 v{t[4]}, v{t[2]}, v{t[3]} offset:64")
        a("s_waitcnt lgkmcnt(0)")
        a(f"v_readfirstlane_b32 s7, v{t[4]}")
        a("s_cmp_lg_u32 s7, 7")
        a("s_cbranch_scc1 K2_NOFLAG")
        a("s_lshl_b32 s7, s4, 7")
        a("s_lshl_b32 s13, s3, 2")
        a("s_add_u32 s7, s7, s13")
        a(f"s_add_u32 s7, s7, {WS_FLAG}")
        a(f"v_mov_b32 v{t[2]}, 0")
        a(f"buffer_store_dword v{t[3]}, v{t[2]}, s[8:11], s7 offen sc1")
        a.label("K2_NOFLAG")
        a("s_mov_b64 exec, s[14:15]")
    stamp_end(a)
    a("s_endpgm")

    a.label("K2_FFN")
    R2 = RegAlloc(4)
    vA = R2.alloc(); vB = R2.alloc(); vG = R2.alloc(); vS = R2.alloc(); vG2 = R2.alloc()
    facc = R2.alloc(16, 4)
    Pf = R2.alloc(8, 4)
    BBr = R2.alloc(16, 4)
    D = 8; D2 = 12
    slots = R2.alloc(8 * D2, 4)
    a("s_barrier")
    if STAMP:
        a("s_memtime s[74:75]")
        a("s_memtime s[76:77]")
    a("s_sub_u32 s5, s5, 8")
    a("s_and_b32 s3, s2, 7")
    a("s_lshl_b32 s3, s3, 2")
    a("s_lshr_b32 s4, s2, 6")
    a("s_add_u32 s3, s3, s4")
    a("s_lshr_b32 s4, s2, 3")
    a("s_and_b32 s4, s4, 7")
    a("s_lshl_b32 s3, s3, 6")
    a("s_and_b32 s6, s5, 1")
    a("s_lshl_b32 s6, s6, 5")
    a("s_add_u32 s3, s3, s6")
    a("s_lshl_b32 s4, s4, 6")
    a("s_lshr_b32 s6, s5, 1")
    a("s_lshl_b32 s6, s6, 5")
    a("s_add_u32 s4, s4, s6")
    a("s_lshr_b32 s6, s4, 5")
    a(f"s_mul_i32 s6, s6, {86*1024}")
    a(f"s_add_u32 s6, s6, {WS_W2T}")
    a(f"v_lshlrev_b32 v{vA}, 4, v1")
    a(f"v_add_u32 v{vA}, s6, v{vA}")
    a(f"v_add_u32 v{vS}, s3, v2")
    a("s_lshr_b32 s6, s3, 5")
    a(f"s_mul_i32 s6, s6, {86*1024}")
    a(f"s_add_u32 s6, s6, {WS_ACT}")
    a(f"v_lshlrev_b32 v{vB}, 4, v1")
    a(f"v_add_u32 v{vB}, s6, v{vB}")
    a(f"v_lshlrev_b32 v{vG}, 2, v{vS}")
    a(f"s_mov_b32 s7, {WS_G}")
    a(f"buffer_load_dword v{vG2}, v{vG}, s[8:11], s7 offen")
    a(f"s_mov_b32 s7, {WS_OMG}")
    a(f"buffer_load_dword v{vG}, v{vG}, s[8:11], s7 offen")
    direct_gemm(a, vA, vB, 86, D, slots, facc)
    a("s_nop 15")
    a("s_nop 7")
    for i in range(8):
        a(f"v_cvt_pk_bf16_f32 v{Pf+i}, v{facc+2*i}, v{facc+2*i+1}")
    for i in range(8):
        a(f"v_lshlrev_b32 v{facc+2*i}, 16, v{Pf+i}")
        a(f"v_and_b32 v{facc+2*i+1}, 0xffff0000, v{Pf+i}")
    for i in range(16):
        a(f"v_mul_f32 v{facc+i}, v{facc+i}, v{vG}")
    for i in range(8):
        a(f"v_cvt_pk_bf16_f32 v{Pf+i}, v{facc+2*i}, v{facc+2*i+1}")
    if not MERGE:
        a(f"v_lshlrev_b32 v{vS}, 10, v{vS}")
        a(f"v_lshl_add_u32 v{vS}, v3, 4, v{vS}")
        a("s_lshl_b32 s7, s4, 1")
        a(f"s_add_u32 s7, s7, {WS_BB}")
        a(f"v_permlane32_swap_b32 v{Pf+0}, v{Pf+2}")
        a(f"v_permlane32_swap_b32 v{Pf+1}, v{Pf+3}")
        a(f"v_permlane32_swap_b32 v{Pf+4}, v{Pf+6}")
        a(f"v_permlane32_swap_b32 v{Pf+5}, v{Pf+7}")
        a("s_nop 1")
        a(f"buffer_store_dwordx4 {v(Pf,4)}, v{vS}, s[8:11], s7 offen")
        a(f"buffer_store_dwordx4 {v(Pf+4,4)}, v{vS}, s[8:11], s7 offen offset:32")
    else:
        for i in range(8):
            a(f"v_lshlrev_b32 v{BBr+2*i}, 16, v{Pf+i}")
            a(f"v_and_b32 v{BBr+2*i+1}, 0xffff0000, v{Pf+i}")
        a("s_lshr_b32 s6, s3, 8")
        a("s_lshl_b32 s6, s6, 7")
        a(f"s_add_u32 s6, s6, {WS_FLAG}")
        a(f"v_lshlrev_b32 v{vA}, 2, v2")
        a("s_barrier")
        a.label("K2_POLL")
        a(f"buffer_load_dword v{vB}, v{vA}, s[8:11], s6 offen sc1")
        a("s_waitcnt vmcnt(0)")
        a(f"v_cmp_ne_u32 vcc, 1, v{vB}")
        a("s_nop 4")
        a("s_cmp_eq_u64 vcc, 0")
        a("s_cbranch_scc1 K2_POLLDONE")
        a("s_sleep 2")
        a("s_branch K2_POLL")
        a.label("K2_POLLDONE")
        if STAMP: a("s_memtime s[74:75]")
        if STAMP: a("s_memtime s[76:77]")
        a("s_lshr_b32 s6, s4, 5")
        a(f"s_lshl_b32 s6, s6, 15")
        a(f"s_add_u32 s6, s6, {WS_WOT}")
        a(f"v_lshlrev_b32 v{vA}, 4, v1")
        a(f"v_add_u32 v{vA}, s6, v{vA}")
        a("s_lshr_b32 s6, s3, 5")
        a(f"s_lshl_b32 s6, s6, 15")
        a(f"s_add_u32 s6, s6, {WS_O}")
        a(f"v_lshlrev_b32 v{vB}, 4, v1")
        a(f"v_add_u32 v{vB}, s6, v{vB}")
        direct_gemm(a, vA, vB, 32, D2, slots, facc)
        a("s_nop 15")
        a("s_nop 7")
        for i in range(8):
            a(f"v_cvt_pk_bf16_f32 v{Pf+i}, v{facc+2*i}, v{facc+2*i+1}")
        for i in range(8):
            a(f"v_lshlrev_b32 v{facc+2*i}, 16, v{Pf+i}")
            a(f"v_and_b32 v{facc+2*i+1}, 0xffff0000, v{Pf+i}")
        for i in range(16):
            a(f"v_mul_f32 v{facc+i}, v{facc+i}, v{vG2}")
        for i in range(8):
            a(f"v_cvt_pk_bf16_f32 v{Pf+i}, v{facc+2*i}, v{facc+2*i+1}")
        for i in range(8):
            a(f"v_lshlrev_b32 v{facc+2*i}, 16, v{Pf+i}")
            a(f"v_and_b32 v{facc+2*i+1}, 0xffff0000, v{Pf+i}")
        for i in range(16):
            a(f"v_add_f32 v{facc+i}, v{facc+i}, v{BBr+i}")
        for i in range(8):
            a(f"v_cvt_pk_bf16_f32 v{Pf+i}, v{facc+2*i}, v{facc+2*i+1}")
        a(f"v_lshlrev_b32 v{vS}, 10, v{vS}")
        a(f"v_lshl_add_u32 v{vS}, v3, 4, v{vS}")
        a("s_lshl_b32 s7, s4, 1")
        a(f"v_permlane32_swap_b32 v{Pf+0}, v{Pf+2}")
        a(f"v_permlane32_swap_b32 v{Pf+1}, v{Pf+3}")
        a(f"v_permlane32_swap_b32 v{Pf+4}, v{Pf+6}")
        a(f"v_permlane32_swap_b32 v{Pf+5}, v{Pf+7}")
        a("s_nop 1")
        a(f"buffer_store_dwordx4 {v(Pf,4)}, v{vS}, s[44:47], s7 offen")
        a(f"buffer_store_dwordx4 {v(Pf+4,4)}, v{vS}, s[44:47], s7 offen offset:32")
    stamp_end(a)
    a.label("K2_END")
    a("s_endpgm")
    return a.text(), max(nv_att, R2.next)

K3_LDS = 131072
def gen_k3():
    a = Asm()
    R2 = RegAlloc(4)
    vL = R2.alloc(); vRA = R2.alloc(); vRB = R2.alloc(); vG = R2.alloc(); vS = R2.alloc()
    facc = R2.alloc(16, 4)
    Pf = R2.alloc(8, 4)
    BB = R2.alloc(8, 4)
    T = R2.alloc(16, 4)
    FR = [R2.alloc(8, 4) for _ in range(4)]
    a("s_cmp_ge_u32 s2, 256")
    a("s_cbranch_scc1 K3_END")
    if STAMP:
        a("s_memtime s[72:73]")
        a("s_memrealtime s[90:91]")
    a("s_load_dwordx2 s[52:53], s[0:1], 80")
    a("s_load_dwordx2 s[54:55], s[0:1], 64")
    a("v_lshrrev_b32 v1, 6, v0")
    a("s_nop 0")
    a("v_readfirstlane_b32 s5, v1")
    a("v_and_b32 v1, 63, v0")
    a("v_and_b32 v2, 31, v0")
    a("v_bfe_u32 v3, v0, 5, 1")
    a(f"v_lshlrev_b32 v{vL}, 4, v1")
    a("s_and_b32 s3, s2, 7")
    a("s_lshl_b32 s3, s3, 2")
    a("s_lshr_b32 s4, s2, 6")
    a("s_add_u32 s3, s3, s4")
    a("s_lshr_b32 s4, s2, 3")
    a("s_and_b32 s4, s4, 7")
    a("s_lshl_b32 s6, s4, 1")
    a("s_add_u32 s6, s6, s5")
    a("s_lshl_b32 s6, s6, 15")
    a(f"s_add_u32 s6, s6, {WS_WOT}")
    a("s_lshl_b32 s7, s3, 1")
    a("s_add_u32 s7, s7, s5")
    a("s_sub_u32 s7, s7, 2")
    a("s_lshl_b32 s7, s7, 15")
    a(f"s_add_u32 s7, s7, {WS_O}")
    a("s_cmp_lt_u32 s5, 2")
    a("s_cselect_b32 s18, s6, s7")
    a("s_lshl_b32 s19, s5, 15")
    a("s_waitcnt lgkmcnt(0)")
    srd(a, 8, 52, WS_SIZE)
    srd(a, 12, 54, 2097152)
    for ks in range(32):
        a(f"s_add_u32 m0, s19, {ks*1024}")
        a(f"s_add_u32 s20, s18, {ks*1024}")
        a(f"buffer_load_dwordx4 v{vL}, s[8:11], s20 offen lds")
    a("s_lshl_b32 s3, s3, 6")
    a("s_and_b32 s6, s5, 1")
    a("s_lshl_b32 s6, s6, 5")
    a("s_add_u32 s3, s3, s6")
    a("s_lshl_b32 s4, s4, 6")
    a("s_lshr_b32 s6, s5, 1")
    a("s_lshl_b32 s6, s6, 5")
    a("s_add_u32 s4, s4, s6")
    a(f"v_add_u32 v{vS}, s3, v2")
    a(f"v_lshlrev_b32 v{vG}, 2, v{vS}")
    a(f"s_mov_b32 s7, {WS_G}")
    a(f"buffer_load_dword v{vG}, v{vG}, s[8:11], s7 offen")
    a(f"v_lshlrev_b32 v{vS}, 10, v{vS}")
    a(f"v_lshl_add_u32 v{vS}, v3, 4, v{vS}")
    a("s_lshl_b32 s16, s4, 1")
    a(f"s_add_u32 s17, s16, {WS_BB}")
    a(f"buffer_load_dwordx4 {v(BB,4)}, v{vS}, s[8:11], s17 offen")
    a(f"buffer_load_dwordx4 {v(BB+4,4)}, v{vS}, s[8:11], s17 offen offset:32")
    a("s_lshr_b32 s6, s5, 1")
    a("s_lshl_b32 s6, s6, 15")
    a(f"v_add_u32 v{vRA}, s6, v{vL}")
    a("s_and_b32 s6, s5, 1")
    a("s_add_u32 s6, s6, 2")
    a("s_lshl_b32 s6, s6, 15")
    a(f"v_add_u32 v{vRB}, s6, v{vL}")
    if STAMP: a("s_memtime s[74:75]")
    def rd(ks):
        f = FR[ks % 4]
        a(f"ds_read_b128 {v(f,4)}, v{vRA} offset:{ks*1024}")
        a(f"ds_read_b128 {v(f+4,4)}, v{vRB} offset:{ks*1024}")
    for c in range(4):
        a(f"s_waitcnt vmcnt({3 + 32 - 8*(c+1)})")
        a("s_barrier")
        rd(8*c); rd(8*c+1); rd(8*c+2)
        for k in range(8):
            ks = 8*c + k
            if k + 3 < 8:
                rd(ks + 3)
                a("s_waitcnt lgkmcnt(6)")
            else:
                a(f"s_waitcnt lgkmcnt({2*(7-k)})")
            f = FR[ks % 4]
            cc = "0" if ks == 0 else v(facc, 16)
            a(f"v_mfma_f32_32x32x16_bf16 {v(facc,16)}, {v(f,4)}, {v(f+4,4)}, {cc}")
    if STAMP: a("s_memtime s[76:77]")
    a("s_waitcnt vmcnt(0)")
    a("s_nop 15")
    a("s_nop 7")
    for i in range(8):
        a(f"v_cvt_pk_bf16_f32 v{Pf+i}, v{facc+2*i}, v{facc+2*i+1}")
    for i in range(8):
        a(f"v_lshlrev_b32 v{facc+2*i}, 16, v{Pf+i}")
        a(f"v_and_b32 v{facc+2*i+1}, 0xffff0000, v{Pf+i}")
    for i in range(16):
        a(f"v_mul_f32 v{facc+i}, v{facc+i}, v{vG}")
    for i in range(8):
        a(f"v_cvt_pk_bf16_f32 v{Pf+i}, v{facc+2*i}, v{facc+2*i+1}")
    a("s_nop 1")
    a(f"v_permlane32_swap_b32 v{Pf+0}, v{Pf+2}")
    a(f"v_permlane32_swap_b32 v{Pf+1}, v{Pf+3}")
    a(f"v_permlane32_swap_b32 v{Pf+4}, v{Pf+6}")
    a(f"v_permlane32_swap_b32 v{Pf+5}, v{Pf+7}")
    a("s_nop 1")
    for i in range(8):
        a(f"v_lshlrev_b32 v{facc+2*i}, 16, v{Pf+i}")
        a(f"v_and_b32 v{facc+2*i+1}, 0xffff0000, v{Pf+i}")
        a(f"v_lshlrev_b32 v{T+2*i}, 16, v{BB+i}")
        a(f"v_and_b32 v{T+2*i+1}, 0xffff0000, v{BB+i}")
    for i in range(16):
        a(f"v_add_f32 v{facc+i}, v{facc+i}, v{T+i}")
    for i in range(8):
        a(f"v_cvt_pk_bf16_f32 v{Pf+i}, v{facc+2*i}, v{facc+2*i+1}")
    a(f"buffer_store_dwordx4 {v(Pf,4)}, v{vS}, s[12:15], s16 offen")
    a(f"buffer_store_dwordx4 {v(Pf+4,4)}, v{vS}, s[12:15], s16 offen offset:32")
    if STAMP:
        a("s_waitcnt vmcnt(0)")
        a("s_memtime s[78:79]")
        a("s_memrealtime s[92:93]")
        a("s_waitcnt lgkmcnt(0)")
        a("s_sub_u32 s74, s74, s72")
        a("s_sub_u32 s76, s76, s72")
        a("s_sub_u32 s78, s78, s72")
        a("v_mov_b32 v4, s90")
        a("v_mov_b32 v5, s92")
        a("v_mov_b32 v6, s74")
        a("v_mov_b32 v7, s76")
        a("v_mov_b32 v8, s78")
        a("s_lshl_b32 s87, s2, 2")
        a("s_add_u32 s87, s87, s5")
        a("s_lshl_b32 s87, s87, 5")
        a("s_add_u32 s87, s87, 0x1500000")
        a("v_mov_b32 v9, 0")
        a("buffer_store_dwordx4 v[4:7], v9, s[8:11], s87 offen")
        a("buffer_store_dword v8, v9, s[8:11], s87 offen offset:16")
    a.label("K3_END")
    a("s_endpgm")
    return a.text(), R2.next
```

```python
import sys
sys.path.insert(0, "alt")
from asmlib import *
from k1 import gen_k1, K1_LDS
from k2 import gen_k2, gen_k3, K2_LDS, K3_LDS, MERGE

t1, n1 = gen_k1()
t2, n2 = gen_k2()
t3, n3 = gen_k3()
hdr = open("gated_mix__mha_block__dense_activation_mish__prompt.s.ref").read().split("; Override")[0]
out = hdr
out += f"; @launch kernel=gm_k1_kernel grid=(256,1,1) block=(256,1,1) lds={K1_LDS}\n"
out += f"; @launch kernel=gm_k2_kernel grid=(256,1,1) block=(768,1,1) lds={K2_LDS}\n"
if not MERGE:
    out += f"; @launch kernel=gm_k3_kernel grid=(256,1,1) block=(256,1,1) lds={K3_LDS}\n"
out += '.amdgcn_target "amdgcn-amd-amdhsa--gfx950"\n.text\n'
out += kernel_header("gm_k1_kernel") + t1
out += kernel_header("gm_k2_kernel") + t2
if not MERGE:
    out += kernel_header("gm_k3_kernel") + t3
out += '.section .rodata,"a"\n.p2align 6\n'
out += kernel_desc("gm_k1_kernel", n1)
out += ".p2align 6\n" + kernel_desc("gm_k2_kernel", n2)
if not MERGE:
    out += ".p2align 6\n" + kernel_desc("gm_k3_kernel", n3)
dst = sys.argv[1] if len(sys.argv) > 1 else "gated_mix__mha_block__dense_activation_mish__prompt.s"
open(dst, "w").write(out)
print("vgprs", n1, n2, n3, "bytes", len(out))
```

```python
from asmlib import *
from layout import *
import struct, os
STAMP = os.environ.get('STAMP') == '1'

XB = 16384
WB = 12288
PREF = int(os.environ.get('PREF', '0'))
NPF = 4 if PREF else 0
NBUF = int(os.environ.get('NBUF', '3'))
WQ0 = NBUF * XB
WF0 = WQ0 + NBUF * WB
K1_LDS = WF0 + NBUF * WB
WSTR = 192
QSCALE = 0.25 * 1.4426950408889634

def f2u(f):
    return struct.unpack("<I", struct.pack("<f", f))[0]

def acc_(i, n=1):
    return f"a{i}" if n == 1 else f"a[{i}:{i+n-1}]"

def gen_k1():
    a = Asm()
    R = RegAlloc(4)
    vXg = R.alloc(4)
    vWq = R.alloc(3); vWf = R.alloc(3)
    vXr = R.alloc(4)
    vWrQ = R.alloc(); vWrF = R.alloc()
    vTok = R.alloc()
    vPF = R.alloc(5)
    vSideA = R.alloc(); vSideB = R.alloc(); vBias = R.alloc()
    vt = [R.alloc() for _ in range(6)]
    stg = [R.alloc(20, 4), R.alloc(24, 4)]
    frag = [R.alloc(28, 4), R.alloc(28, 4)]
    ACC = R.alloc(96, 4)
    nvgpr = R.next
    sideT = stg[0]; sideX = stg[0] + 8; sideW = stg[0] + 16
    biasR = stg[1]
    NACC = 0

    a("s_cmp_ge_u32 s2, 256")
    a("s_cbranch_scc1 K1_END2")
    if STAMP:
        a("s_memtime s[72:73]")
        a("s_load_dwordx2 s[84:85], s[0:1], 72")
    a("s_load_dwordx16 s[36:51], s[0:1], 0")
    a("s_load_dwordx2 s[52:53], s[0:1], 80")
    a("s_and_b32 s3, s2, 15")
    a("s_lshr_b32 s4, s2, 4")
    a("v_lshrrev_b32 v1, 6, v0")
    a("s_nop 0")
    a("v_readfirstlane_b32 s5, v1")
    a("v_and_b32 v1, 63, v0")
    a("v_and_b32 v2, 31, v0")
    a("v_bfe_u32 v3, v0, 5, 1")
    t = vt
    a(f"v_lshrrev_b32 v{t[0]}, 3, v1")
    a(f"v_and_b32 v{t[1]}, 7, v1")
    a(f"v_lshrrev_b32 v{t[2]}, 1, v{t[0]}")
    a("s_lshl_b32 s60, s3, 7")
    a("s_lshl_b32 s61, s5, 5")
    a("s_add_u32 s60, s60, s61")
    a(f"v_add_u32 v{t[3]}, s60, v{t[0]}")
    a(f"v_lshlrev_b32 v{t[3]}, 10, v{t[3]}")
    for i in range(4):
        a(f"v_xor_b32 v{t[4]}, {4*(i&1)}, v{t[2]}")
        a(f"v_xor_b32 v{t[4]}, v{t[4]}, v{t[1]}")
        a(f"v_lshl_add_u32 v{t[4]}, v{t[4]}, 4, v{t[3]}")
        a(f"v_add_u32 v{vXg+i}, {8192*i}, v{t[4]}")
    a("s_mul_i32 s60, s5, 192")
    a("s_mul_i32 s61, s4, 192")
    for i in range(3):
        a(f"v_add_u32 v{t[0]}, s60, v1")
        a(f"v_add_u32 v{t[0]}, {64*i}, v{t[0]}")
        a(f"v_mul_u32_u24 v{t[1]}, 43691, v{t[0]}")
        a(f"v_lshrrev_b32 v{t[1]}, 19, v{t[1]}")
        a(f"v_mul_u32_u24 v{t[2]}, 12, v{t[1]}")
        a(f"v_sub_u32 v{t[2]}, v{t[0]}, v{t[2]}")
        a(f"v_lshlrev_b32 v{t[2]}, 4, v{t[2]}")
        a(f"v_add_u32 v{t[2]}, s61, v{t[2]}")
        a(f"v_mul_u32_u24 v{t[3]}, 3072, v{t[1]}")
        a(f"v_add_u32 v{vWq+i}, v{t[3]}, v{t[2]}")
        a(f"v_mul_u32_u24 v{t[3]}, 2752, v{t[1]}")
        a(f"v_add_u32 v{vWf+i}, v{t[3]}, v{t[2]}")
    a("s_lshl_b32 s67, s5, 12")
    a("s_mul_i32 s65, s5, 3072")
    a("s_waitcnt lgkmcnt(0)")
    srd(a, 8, 36, 2097152)
    srd(a, 12, 38, 1572864)
    srd(a, 16, 44, 1409024)

    def issue_loads(st):
        b = st % NBUF
        a(f"s_mov_b32 s60, {st*64*3072}")
        a(f"s_mov_b32 s61, {st*64*2752}")
        a(f"s_mov_b32 s62, {st*128}")
        for i in range(4):
            a(f"s_add_u32 m0, s67, {b*XB + i*1024}")
            a("s_nop 0")
            a(f"buffer_load_dwordx4 v{vXg+i}, s[8:11], s62 offen lds")
        for i in range(3):
            a(f"s_add_u32 m0, s65, {WQ0 + b*WB + i*1024}")
            a("s_nop 0")
            a(f"buffer_load_dwordx4 v{vWq+i}, s[12:15], s60 offen lds")
        for i in range(3):
            a(f"s_add_u32 m0, s65, {WF0 + b*WB + i*1024}")
            a("s_nop 0")
            a(f"buffer_load_dwordx4 v{vWf+i}, s[16:19], s61 offen lds")
    for st0 in range(NBUF - 1):
        issue_loads(st0)
    if PREF:
        a("s_lshr_b32 s60, s2, 3")
        a(f"v_lshlrev_b32 v{t[0]}, 7, v0")
        a("s_mul_i32 s61, s60, 49152")
        a(f"buffer_load_dword v{vPF}, v{t[0]}, s[12:15], s61 offen")
        a("s_add_u32 s61, s61, 16384")
        a(f"buffer_load_dword v{vPF+1}, v{t[0]}, s[12:15], s61 offen")
        a("s_mul_i32 s61, s60, 44032")
        a(f"buffer_load_dword v{vPF+2}, v{t[0]}, s[16:19], s61 offen")
        a("s_add_u32 s61, s61, 11264")
        a(f"buffer_load_dword v{vPF+3}, v{t[0]}, s[16:19], s61 offen")

    srd(a, 20, 52, WS_SIZE)
    srd(a, 24, 46, 2752)
    srd(a, 32, 50, 1024)
    a("s_sub_u32 s54, s2, 172")
    a("s_mov_b32 s70, 524288")
    a("s_cmp_lt_u32 s2, 172")
    a("s_cselect_b32 s28, s48, s40")
    a("s_cselect_b32 s29, s49, s41")
    a("s_cselect_b32 s30, 1409024, s70")
    a("s_cselect_b32 s54, s2, s54")
    a("s_and_b32 s29, s29, 0xffff")
    a("s_mov_b32 s31, 0x00020000")
    a("s_lshr_b32 s55, s54, 2")
    a("s_and_b32 s56, s54, 3")
    a(f"v_lshrrev_b32 v{t[0]}, 4, v0")
    a(f"v_and_b32 v{t[1]}, 15, v0")
    a(f"v_lshlrev_b32 v{t[0]}, 10, v{t[0]}")
    a(f"v_lshl_add_u32 v{vSideA}, v{t[1]}, 4, v{t[0]}")
    a("s_lshl_b32 s57, s55, 15")
    a("s_lshl_b32 s58, s56, 8")
    a("s_add_u32 s57, s57, s58")
    a("s_add_u32 s58, s57, 16384")
    a(f"v_lshlrev_b32 v{vSideB}, 4, v1")
    a("s_lshl_b32 s59, s2, 3")
    a("s_lshl_b32 s60, s5, 1")
    a("s_add_u32 s59, s59, s60")
    a("s_lshl_b32 s68, s59, 10")
    a("s_add_u32 s69, s68, 1024")
    a(f"v_lshlrev_b32 v{vBias}, 3, v3")
    a("s_mul_i32 s71, s4, 192")
    a("s_lshl_b32 s60, s5, 5")
    a(f"v_add_u32 v{t[0]}, s60, v2")
    a(f"v_lshlrev_b32 v{t[0]}, 7, v{t[0]}")
    a(f"v_bfe_u32 v{t[1]}, v2, 1, 3")
    for ks in range(4):
        a(f"v_add_u32 v{t[2]}, {2*ks}, v3")
        a(f"v_xor_b32 v{t[2]}, v{t[2]}, v{t[1]}")
        a(f"v_lshl_add_u32 v{vXr+ks}, v{t[2]}, 4, v{t[0]}")
    a(f"v_bfe_u32 v{t[0]}, v0, 2, 2")
    a(f"v_lshl_add_u32 v{t[0]}, v3, 3, v{t[0]}")
    a(f"v_mul_u32_u24 v{t[0]}, {WSTR}, v{t[0]}")
    a(f"v_and_b32 v{t[1]}, 3, v0")
    a(f"v_lshlrev_b32 v{t[1]}, 3, v{t[1]}")
    a(f"v_bfe_u32 v{t[2]}, v0, 4, 1")
    a(f"v_lshl_add_u32 v{t[1]}, v{t[2]}, 5, v{t[1]}")
    a(f"v_add_u32 v{t[0]}, v{t[0]}, v{t[1]}")
    a(f"v_add_u32 v{vWrQ}, {WQ0}, v{t[0]}")
    a(f"v_add_u32 v{vWrF}, {WF0}, v{t[0]}")
    a("s_lshl_b32 s60, s3, 7")
    a("s_lshl_b32 s61, s5, 5")
    a("s_add_u32 s66, s60, s61")
    a(f"v_add_u32 v{vTok}, s66, v2")
    a("s_mov_b32 s80, 2.0")
    a("s_mov_b32 s81, 2.0")
    a("s_mov_b32 s82, 0x3fb8aa3b")
    a("s_mov_b32 s83, 0x3fb8aa3b")

    def read_ops(j):
        st, ks = j // 4, j % 4
        b = st % NBUF; f = frag[j % 2]
        ops = [f"ds_read_b128 {v(f+24,4)}, v{vXr+ks} offset:{b*XB}"]
        for ft in range(6):
            base = vWrQ if ft < 3 else vWrF
            for half in range(2):
                ops.append(f"ds_read_b64_tr_b16 {v(f+4*ft+2*half,2)}, v{base} offset:{b*WB + ks*16*WSTR + half*4*WSTR + (ft%3)*64}")
        return ops
    def mfma_ops(j):
        f = frag[j % 2]
        ops = []
        for ft in range(6):
            d = ACC + 16 * ft
            c = "0" if j == 0 else v(d, 16)
            ops.append(f"v_mfma_f32_32x32x16_bf16 {v(d,16)}, {v(f+4*ft,4)}, {v(f+24,4)}, {c}")
        return ops

    a(f"s_waitcnt vmcnt({10*(NBUF-2) + NPF})")
    a("s_barrier")
    if STAMP: a("s_memtime s[74:75]")
    for o in read_ops(0): a(o)
    for j in range(32):
        st, ks = j // 4, j % 4
        a("s_waitcnt lgkmcnt(0)")
        other = []
        if ks == 3 and st < 7:
            a(f"s_waitcnt vmcnt({10 * max(0, min(st + NBUF - 1, 7) - (st + 1)) + (NPF if st + 1 <= NBUF - 2 else 0)})")
            a("s_barrier")
        if j < 31:
            other += read_ops(j + 1)
        if ks == 0 and st + NBUF - 1 <= 7:
            issue_loads(st + NBUF - 1)
        if j == 28:
            a(f"buffer_load_dwordx4 {v(sideT,4)}, v{vSideA}, s[28:31], s57 offen")
            a(f"buffer_load_dwordx4 {v(sideT+4,4)}, v{vSideA}, s[28:31], s58 offen")
            a(f"buffer_load_dwordx4 {v(sideX,4)}, v{vSideB}, s[8:11], s68 offen")
            a(f"buffer_load_dwordx4 {v(sideX+4,4)}, v{vSideB}, s[8:11], s69 offen")
            a(f"buffer_load_dwordx4 {v(sideW,4)}, v{vSideB}, s[32:35], 0 offen")
            for jf in range(3):
                for q in range(4):
                    a(f"buffer_load_dwordx2 {v(biasR+8*jf+2*q,2)}, v{vBias}, s[24:27], s71 offen offset:{64*jf+16*q}")
        m = mfma_ops(j)
        per = (len(other) + 5) // 6
        oi = 0
        for k in range(6):
            a(m[k])
            for _ in range(per):
                if oi < len(other):
                    a(other[oi]); oi += 1
    if STAMP: a("s_memtime s[76:77]")
    TS = 320
    a("s_barrier")
    a(f"v_lshrrev_b32 v{t[0]}, 4, v0")
    a(f"v_and_b32 v{t[1]}, 15, v0")
    a(f"v_mul_u32_u24 v{t[0]}, {TS}, v{t[0]}")
    a(f"v_lshl_add_u32 v{t[0]}, v{t[1]}, 4, v{t[0]}")
    a("s_waitcnt vmcnt(15)")
    a(f"ds_write_b128 v{t[0]}, {v(sideT,4)}")
    a(f"ds_write_b128 v{t[0]}, {v(sideT+4,4)} offset:{16*TS}")
    a("s_nop 15")
    tmp = frag[0]
    P = tmp; T = tmp + 8; U = tmp + 24; BU = tmp + 40
    vA = vt[0]

    def qkv_tile(ft):
        a(f"s_mul_i32 s60, s4, 3")
        a(f"s_add_u32 s60, s60, {ft}")
        a("s_lshr_b32 s61, s60, 4")
        a("s_and_b32 s62, s60, 15")
        a("s_lshl_b32 s63, s61, 21")
        a("s_lshl_b32 s62, s62, 17")
        a("s_add_u32 s63, s63, s62")
        a("s_add_u32 s64, s63, 65536")
        a("s_cmp_eq_u32 s61, 0")
        a(f"s_cselect_b32 s86, {f2u(QSCALE)}, 1.0")
        a(f"s_cselect_b32 s87, {f2u(QSCALE)}, 1.0")
        D = ACC + 16 * ft
        for i in range(8):
            a(f"v_pk_mul_f32 {v(D+2*i,2)}, {v(D+2*i,2)}, s[86:87]")
        for i in range(8):
            a(f"v_cvt_pk_bf16_f32 v{P+i}, v{D+2*i}, v{D+2*i+1}")
        a(f"v_lshlrev_b32 v{vA}, 5, v{vTok}")
        a(f"v_lshl_add_u32 v{vA}, v3, 4, v{vA}")
        a(f"v_permlane32_swap_b32 v{P+0}, v{P+2}")
        a(f"v_permlane32_swap_b32 v{P+1}, v{P+3}")
        a(f"v_permlane32_swap_b32 v{P+4}, v{P+6}")
        a("s_nop 0")
        a(f"v_permlane32_swap_b32 v{P+5}, v{P+7}")
        a("s_nop 1")
        a(f"buffer_store_dwordx4 {v(P,4)}, v{vA}, s[20:23], s63 offen")
        a(f"buffer_store_dwordx4 {v(P+4,4)}, v{vA}, s[20:23], s64 offen")
        a("s_nop 1")

    def ffn_tile(jf):
        ft = 3 + jf
        lab = a.newlabel("K1_SKIPF")
        a(f"s_mul_i32 s60, s4, 3")
        a(f"s_add_u32 s60, s60, {jf}")
        a("s_cmp_ge_u32 s60, 43")
        a(f"s_cbranch_scc1 {lab}")
        a("s_lshl_b32 s62, s60, 11")
        a(f"s_add_u32 s61, s62, {WS_ACT}")
        for q in range(8):
            a(f"v_lshlrev_b32 v{BU+2*q}, 16, v{biasR+8*jf+q}")
            a(f"v_and_b32 v{BU+2*q+1}, 0xffff0000, v{biasR+8*jf+q}")
        D = ACC + 16 * ft
        for i in range(8):
            a(f"v_pk_add_f32 {v(D+2*i,2)}, {v(D+2*i,2)}, {v(BU+2*i,2)}")
        for i in range(16):
            a(f"v_min_f32 v{T+i}, 0x41a00000, v{D+i}")
        for i in range(8):
            a(f"v_pk_mul_f32 {v(T+2*i,2)}, {v(T+2*i,2)}, s[82:83]")
        for i in range(16):
            a(f"v_exp_f32 v{T+i}, v{T+i}")
        for i in range(8):
            a(f"v_pk_add_f32 {v(U+2*i,2)}, {v(T+2*i,2)}, s[80:81]")
        for i in range(8):
            a(f"v_pk_mul_f32 {v(T+2*i,2)}, {v(T+2*i,2)}, {v(U+2*i,2)}")
        for i in range(8):
            a(f"v_pk_add_f32 {v(U+2*i,2)}, {v(T+2*i,2)}, s[80:81]")
        for i in range(16):
            a(f"v_rcp_f32 v{U+i}, v{U+i}")
        for i in range(8):
            a(f"v_pk_mul_f32 {v(T+2*i,2)}, {v(T+2*i,2)}, {v(U+2*i,2)}")
        for i in range(8):
            a(f"v_pk_mul_f32 {v(D+2*i,2)}, {v(D+2*i,2)}, {v(T+2*i,2)}")
        for i in range(8):
            a(f"v_cvt_pk_bf16_f32 v{P+i}, v{D+2*i}, v{D+2*i+1}")
        a(f"s_lshr_b32 s62, s66, 5")
        a(f"s_mul_i32 s62, s62, {86*1024}")
        a("s_add_u32 s61, s61, s62")
        a(f"v_permlane32_swap_b32 v{P+0}, v{P+2}")
        a(f"v_permlane32_swap_b32 v{P+1}, v{P+3}")
        a(f"v_permlane32_swap_b32 v{P+4}, v{P+6}")
        a(f"v_permlane32_swap_b32 v{P+5}, v{P+7}")
        a("s_nop 1")
        a(f"buffer_store_dwordx4 {v(P,4)}, v{vSideB}, s[20:23], s61 offen")
        a(f"buffer_store_dwordx4 {v(P+4,4)}, v{vSideB}, s[20:23], s61 offen offset:1024")
        a("s_nop 1")
        a.label(lab)

    for ft in range(3):
        qkv_tile(ft)
    a("s_waitcnt vmcnt(6)")
    for jf in range(3):
        ffn_tile(jf)
    if STAMP: a("s_memtime s[78:79]")

    G = tmp
    for i in range(4):
        a(f"v_lshlrev_b32 v{G+2*i}, 16, v{sideW+i}")
        a(f"v_and_b32 v{G+2*i+1}, 0xffff0000, v{sideW+i}")
    S = [vt[2], vt[3]]
    for tk in range(2):
        X = G + 8
        for i in range(4):
            a(f"v_lshlrev_b32 v{X+2*i}, 16, v{sideX+4*tk+i}")
            a(f"v_and_b32 v{X+2*i+1}, 0xffff0000, v{sideX+4*tk+i}")
        for i in range(8):
            a(f"v_mul_f32 v{X+i}, v{X+i}, v{G+i}")
        for i in range(4):
            a(f"v_cvt_pk_bf16_f32 v{X+8+i}, v{X+2*i}, v{X+2*i+1}")
        for i in range(4):
            a(f"v_lshlrev_b32 v{X+2*i}, 16, v{X+8+i}")
            a(f"v_and_b32 v{X+2*i+1}, 0xffff0000, v{X+8+i}")
        a(f"v_add_f32 v{X}, v{X}, v{X+1}")
        a(f"v_add_f32 v{X+2}, v{X+2}, v{X+3}")
        a(f"v_add_f32 v{X+4}, v{X+4}, v{X+5}")
        a(f"v_add_f32 v{X+6}, v{X+6}, v{X+7}")
        a(f"v_add_f32 v{X}, v{X}, v{X+2}")
        a(f"v_add_f32 v{X+4}, v{X+4}, v{X+6}")
        a(f"v_add_f32 v{S[tk]}, v{X}, v{X+4}")
    for ctl in ("row_shr:1 row_mask:0xf bank_mask:0xf bound_ctrl:0", "row_shr:2 row_mask:0xf bank_mask:0xf bound_ctrl:0",
                "row_shr:4 row_mask:0xf bank_mask:0xf bound_ctrl:0", "row_shr:8 row_mask:0xf bank_mask:0xf bound_ctrl:0",
                "row_bcast:15 row_mask:0xa bank_mask:0xf", "row_bcast:31 row_mask:0xc bank_mask:0xf"):
        a("s_nop 1")
        a(f"v_add_f32_dpp v{S[0]}, v{S[0]}, v{S[0]} {ctl}")
        a(f"v_add_f32_dpp v{S[1]}, v{S[1]}, v{S[1]} {ctl}")
    a(f"v_cvt_pk_bf16_f32 v{G}, v{S[0]}, v{S[1]}")
    a(f"v_lshlrev_b32 v{G+1}, 16, v{G}")
    a(f"v_and_b32 v{G+2}, 0xffff0000, v{G}")
    for i in (1, 2):
        a(f"v_mul_f32 v{G+i}, 0xbfb8aa3b, v{G+i}")
    for i in (1, 2):
        a(f"v_exp_f32 v{G+i}, v{G+i}")
    a("s_nop 0")
    for i in (1, 2):
        a(f"v_add_f32 v{G+i}, 1.0, v{G+i}")
    for i in (1, 2):
        a(f"v_rcp_f32 v{G+i}, v{G+i}")
    a("s_nop 0")
    a(f"v_cvt_pk_bf16_f32 v{G}, v{G+1}, v{G+2}")
    a(f"v_lshlrev_b32 v{G+4}, 16, v{G}")
    a(f"v_and_b32 v{G+5}, 0xffff0000, v{G}")
    a(f"v_sub_f32 v{G+6}, 1.0, v{G+4}")
    a(f"v_sub_f32 v{G+7}, 1.0, v{G+5}")
    a(f"v_cvt_pk_bf16_f32 v{G}, v{G+6}, v{G+7}")
    a(f"v_lshlrev_b32 v{G+6}, 16, v{G}")
    a(f"v_and_b32 v{G+7}, 0xffff0000, v{G}")
    a("s_lshl_b32 s60, s59, 2")
    a(f"s_add_u32 s61, s60, {WS_OMG}")
    a(f"s_add_u32 s60, s60, {WS_G}")
    a(f"v_mov_b32 v{vt[4]}, 0")
    a("v_cmp_eq_u32 vcc, 63, v1")
    a("s_and_saveexec_b64 s[88:89], vcc")
    a(f"buffer_store_dwordx2 {v(G+4,2)}, v{vt[4]}, s[20:23], s60 offen")
    a(f"buffer_store_dwordx2 {v(G+6,2)}, v{vt[4]}, s[20:23], s61 offen")
    a("s_lshl_b32 s60, s2, 2")
    a(f"s_add_u32 s60, s60, {WS_FLAG}")
    a(f"buffer_store_dword v{vt[4]}, v{vt[4]}, s[20:23], s60 offen")
    a("s_mov_b64 exec, s[88:89]")

    a("s_waitcnt lgkmcnt(0)")
    a("s_barrier")
    a("s_cmp_ge_u32 s2, 236")
    a("s_cbranch_scc1 K1_END")
    TT = tmp + 16
    a(f"v_bfe_u32 v{t[0]}, v0, 2, 2")
    a(f"v_lshl_add_u32 v{t[0]}, v3, 3, v{t[0]}")
    a(f"v_mul_u32_u24 v{t[0]}, {TS}, v{t[0]}")
    a(f"v_and_b32 v{t[1]}, 3, v0")
    a(f"v_lshlrev_b32 v{t[1]}, 3, v{t[1]}")
    a(f"v_bfe_u32 v{t[2]}, v0, 4, 1")
    a(f"v_lshl_add_u32 v{t[1]}, v{t[2]}, 5, v{t[1]}")
    a(f"v_add_u32 v{t[0]}, v{t[0]}, v{t[1]}")
    a("s_lshl_b32 s60, s5, 6")
    a(f"v_add_u32 v{t[0]}, s60, v{t[0]}")
    for i in range(2):
        for half in range(2):
            a(f"ds_read_b64_tr_b16 {v(TT+4*i+2*half,2)}, v{t[0]} offset:{i*16*TS + half*4*TS}")
    a(f"s_mov_b32 s71, {WS_WOT}")
    a("s_cmp_lt_u32 s2, 172")
    a("s_cselect_b32 s61, 86, 32")
    a(f"s_cselect_b32 s62, {WS_W2T}, s71")
    a("s_lshl_b32 s63, s56, 2")
    a("s_add_u32 s63, s63, s5")
    a("s_mul_i32 s63, s63, s61")
    a("s_lshl_b32 s64, s55, 1")
    a("s_add_u32 s63, s63, s64")
    a("s_lshl_b32 s63, s63, 10")
    a("s_add_u32 s62, s62, s63")
    a("s_waitcnt lgkmcnt(0)")
    a(f"buffer_store_dwordx4 {v(TT,4)}, v{vSideB}, s[20:23], s62 offen")
    a(f"buffer_store_dwordx4 {v(TT+4,4)}, v{vSideB}, s[20:23], s62 offen offset:1024")
    a.label("K1_END")
    if STAMP:
        a("s_waitcnt vmcnt(0)")
        a("s_memtime s[90:91]")
        a("s_waitcnt lgkmcnt(0)")
        a("s_and_b32 s86, s2, 0x7f")
        a("s_cmp_lg_u32 s86, 5")
        a("s_cbranch_scc1 K1_END2")
        a("s_sub_u32 s74, s74, s72")
        a("s_sub_u32 s76, s76, s72")
        a("s_sub_u32 s78, s78, s72")
        a("s_sub_u32 s90, s90, s72")
        a("v_mov_b32 v4, s74")
        a("v_mov_b32 v5, s76")
        a("v_mov_b32 v6, s78")
        a("v_mov_b32 v7, s90")
        a("s_lshr_b32 s86, s2, 7")
        a("s_lshl_b32 s86, s86, 6")
        a("s_lshl_b32 s87, s5, 4")
        a("s_add_u32 s86, s86, s87")
        a("v_mov_b32 v8, s86")
        a("global_store_dwordx4 v8, v[4:7], s[84:85]")
    a.label("K1_END2")
    a("s_endpgm")
    return a.text(), (nvgpr, NACC)
```

```python
from asmlib import *
from layout import *
import os
STAMP = os.environ.get('STAMP') == '1'
PRIO_SWITCH = int(os.environ.get('PRIO_SWITCH', '5'))
VARIANT = int(os.environ.get('VARIANT', '0'))
MERGE = int(os.environ.get('MERGE', '0'))
ONEROW = int(os.environ.get('ONEROW', '0'))
KMAX_ADDR = 131072 + 8192
K2_LDS = KMAX_ADDR + 256

def direct_gemm(a, vA, vB, nsteps, D, base, acc, srd_="s[8:11]", nv_slots=None, flagB=""):
    def reg(sl, off):
        if nv_slots is not None and sl >= nv_slots:
            b = 8 * (sl - nv_slots) + off
            return f"a[{b}:{b+3}]"
        return v(base + 8 * sl + off, 4)
    def issue(j):
        sl = j % D
        if j % 4 == 0:
            a(f"s_mov_b32 s40, {(j//4)*4096}")
        a(f"buffer_load_dwordx4 {reg(sl,0)}, v{vA}, {srd_}, s40 offen offset:{(j%4)*1024}")
        a(f"buffer_load_dwordx4 {reg(sl,4)}, v{vB}, {srd_}, s40 offen offset:{(j%4)*1024}{flagB}")
    for j in range(min(D, nsteps)):
        issue(j)
    for j in range(nsteps):
        out = min(D, nsteps - j) - 1
        a(f"s_waitcnt vmcnt({min(63, 2*out)})")
        sl = j % D
        c = "0" if j == 0 else v(acc, 16)
        a(f"v_mfma_f32_32x32x16_bf16 {v(acc,16)}, {reg(sl,0)}, {reg(sl,4)}, {c}")
        if j + D < nsteps:
            issue(j + D)

def stamp_end(a):
    if not STAMP: return
    a("s_waitcnt vmcnt(0)")
    a("s_memtime s[78:79]")
    a("s_memrealtime s[92:93]")
    a("s_waitcnt lgkmcnt(0)")
    a("v_mov_b32 v4, s90")
    a("v_mov_b32 v5, s92")
    a("s_lshl_b32 s87, s2, 4")
    a("s_add_u32 s87, s87, s88")
    a("s_lshl_b32 s87, s87, 3")
    a("s_add_u32 s87, s87, 0x1400000")
    a("v_mov_b32 v8, 0")
    a("buffer_store_dwordx2 v[4:5], v8, s[8:11], s87 offen")
    a("s_sub_u32 s74, s74, s72")
    a("s_sub_u32 s76, s76, s72")
    a("s_sub_u32 s78, s78, s72")
    a("v_mov_b32 v4, s74")
    a("v_mov_b32 v5, s76")
    a("v_mov_b32 v6, s78")
    a("v_mov_b32 v7, 0")
    a("s_lshl_b32 s87, s2, 4")
    a("s_add_u32 s87, s87, s88")
    a("s_lshl_b32 s87, s87, 4")
    a("s_add_u32 s87, s87, 0x1600000")
    a("buffer_store_dwordx4 v[4:7], v8, s[8:11], s87 offen")

def gen_k2():
    a = Asm()
    R = RegAlloc(4)
    vQ = R.alloc(4, 4)
    vKa = R.alloc(); vVa = R.alloc(); vVinc = R.alloc()
    vKa0 = R.alloc(); vVa0 = R.alloc()
    vt = [R.alloc() for _ in range(6)]
    mA = R.alloc(); mB = R.alloc()
    KF = [R.alloc(4, 4) for _ in range(4)]
    S = [R.alloc(16, 4) for _ in range(4)]
    C = R.alloc(16, 4)
    P = [R.alloc(8, 4) for _ in range(2)]
    VF = [R.alloc(8, 4) for _ in range(2)]
    O = R.alloc(16, 4)
    nv_att = R.next

    a("s_cmp_ge_u32 s2, 256")
    a("s_cbranch_scc1 K2_END")
    if STAMP:
        a("s_memtime s[72:73]")
        a("s_memrealtime s[90:91]")
        a("s_load_dwordx2 s[84:85], s[0:1], 72")
    a("s_load_dwordx2 s[52:53], s[0:1], 80")
    a("s_load_dwordx4 s[56:59], s[0:1], 64")
    a("v_lshrrev_b32 v1, 6, v0")
    a("s_nop 0")
    a("v_readfirstlane_b32 s5, v1")
    a("v_and_b32 v1, 63, v0")
    a("v_and_b32 v2, 31, v0")
    a("v_bfe_u32 v3, v0, 5, 1")
    a("s_waitcnt lgkmcnt(0)")
    srd(a, 8, 52, WS_SIZE)
    srd(a, 44, 56, 2097152)
    if STAMP: a("s_mov_b32 s88, s5")
    a("s_cmp_ge_u32 s5, 8")
    a("s_cbranch_scc1 K2_FFN")
    a("s_and_b32 s3, s2, 7")
    a("s_lshl_b32 s3, s3, 2")
    a("s_lshr_b32 s4, s2, 6")
    a("s_add_u32 s3, s3, s4")
    a("s_lshr_b32 s4, s2, 3")
    a("s_and_b32 s4, s4, 7")
    a("s_lshl_b32 s6, s3, 16")
    t = vt
    a(f"v_lshlrev_b32 v{t[0]}, 4, v0")
    stgK = S[0]; stgV = S[2]
    for i in range(8):
        a(f"s_add_u32 s7, s6, {WS_K + i*8192}")
        a(f"buffer_load_dwordx4 {v(stgK+4*i,4)}, v{t[0]}, s[8:11], s7 offen")
    a("s_lshl_b32 s12, s4, 8")
    a("s_lshl_b32 s13, s5, 5")
    a("s_add_u32 s12, s12, s13")
    a(f"v_add_u32 v{t[1]}, s12, v2")
    a(f"v_lshlrev_b32 v{t[2]}, 5, v{t[1]}")
    a(f"v_lshl_add_u32 v{t[2]}, v3, 4, v{t[2]}")
    a(f"s_add_u32 s7, s6, {WS_Q}")
    a(f"buffer_load_dwordx4 {v(vQ,4)}, v{t[2]}, s[8:11], s7 offen")
    a(f"v_lshlrev_b32 v{t[5]}, 4, v1")
    a("s_lshl_b32 s13, s5, 10")
    for i in range(8):
        a(f"s_add_u32 m0, s13, {65536 + i*8192}")
        a(f"s_add_u32 s7, s6, {WS_V + i*8192}")
        a("s_add_u32 s7, s7, s13")
        a(f"buffer_load_dwordx4 v{t[5]}, s[8:11], s7 offen lds")
    if ONEROW:
        a(f"v_and_b32 v{C+1}, 1, v0")
        a(f"v_cmp_eq_u32 vcc, 0, v{C+1}")
        a(f"v_mov_b32 v{C+2}, 0x3f80")
        a(f"v_mov_b32 v{C+1}, 0")
        a(f"v_mov_b32 v{C+3}, 0")
        a(f"v_cndmask_b32 v{C}, v{C+1}, v{C+2}, vcc")
        a(f"v_mov_b32 v{C+2}, 0")
    else:
        for i in range(4):
            a(f"v_mov_b32 v{C+i}, 0x3f803f80")
    a(f"v_add_u32 v{t[3]}, 131072, v{t[0]}")
    a(f"ds_write_b128 v{t[3]}, {v(C,4)}")
    a("s_lshl_b32 s13, s5, 2")
    a(f"s_add_u32 s13, s13, {KMAX_ADDR}")
    a(f"v_mov_b32 v{t[4]}, s13")
    if MERGE:
        a(f"v_mov_b32 v{t[5]}, 0")
        a(f"v_mov_b32 v{t[3]}, {KMAX_ADDR}")
        a(f"ds_write_b32 v{t[3]}, v{t[5]} offset:64")
    a("s_waitcnt vmcnt(9)")
    for i in range(8):
        a(f"ds_write_b128 v{t[0]}, {v(stgK+4*i,4)} offset:{i*8192}")
    N = P[0]
    N2 = P[1]
    for i in range(8):
        a(f"v_dot2_f32_bf16 v{N+i}, v{stgK+4*i}, v{stgK+4*i}, 0")
    for r in range(1, 4):
        for i in range(8):
            a(f"v_dot2_f32_bf16 v{N+i}, v{stgK+4*i+r}, v{stgK+4*i+r}, v{N+i}")
    a("s_nop 3")
    for i in range(8):
        a(f"v_add_f32_dpp v{N2+i}, v{N+i}, v{N+i} quad_perm:[1,0,3,2] row_mask:0xf bank_mask:0xf")
    a(f"v_max3_f32 v{N}, v{N2}, v{N2+1}, v{N2+2}")
    a(f"v_max3_f32 v{N+1}, v{N2+3}, v{N2+4}, v{N2+5}")
    a(f"v_max3_f32 v{N}, v{N}, v{N2+6}, v{N2+7}")
    a(f"v_max_f32 v{N}, v{N}, v{N+1}")
    for ctl in ("row_shr:1 row_mask:0xf", "row_shr:2 row_mask:0xf", "row_shr:4 row_mask:0xf", "row_shr:8 row_mask:0xf",
                "row_bcast:15 row_mask:0xa", "row_bcast:31 row_mask:0xc"):
        a("s_nop 1")
        a(f"v_max_f32_dpp v{N}, v{N}, v{N} {ctl} bank_mask:0xf")
    a("v_cmp_eq_u32 vcc, 63, v1")
    a("s_and_saveexec_b64 s[14:15], vcc")
    a(f"ds_write_b32 v{t[4]}, v{N}")
    a("s_mov_b64 exec, s[14:15]")
    a(f"v_lshlrev_b32 v{vKa0}, 5, v2")
    a(f"v_lshl_add_u32 v{vKa0}, v3, 4, v{vKa0}")
    a(f"v_bfe_u32 v{t[1]}, v0, 2, 2")
    a(f"v_lshl_add_u32 v{t[1]}, v3, 2, v{t[1]}")
    a(f"v_lshlrev_b32 v{t[1]}, 5, v{t[1]}")
    a(f"v_and_b32 v{t[2]}, 3, v0")
    a(f"v_lshl_add_u32 v{t[1]}, v{t[2]}, 3, v{t[1]}")
    a(f"v_add_u32 v{t[1]}, 65536, v{t[1]}")
    a(f"v_and_b32 v{t[2]}, 15, v0")
    a(f"v_lshlrev_b32 v{t[2]}, 3, v{t[2]}")
    a(f"v_add_u32 v{t[2]}, 131072, v{t[2]}")
    a(f"v_bfe_u32 v{t[3]}, v0, 4, 1")
    a(f"v_cmp_eq_u32 vcc, 1, v{t[3]}")
    a(f"v_mov_b32 v{mA}, 4096")
    a(f"v_mov_b32 v{mB}, 0")
    a("s_nop 1")
    a(f"v_cndmask_b32 v{vVa0}, v{t[1]}, v{t[2]}, vcc")
    a(f"v_cndmask_b32 v{vVinc}, v{mA}, v{mB}, vcc")
    a("s_waitcnt vmcnt(8)")
    a(f"v_dot2_f32_bf16 v{mA}, v{vQ}, v{vQ}, 0")
    for r in range(1, 4):
        a(f"v_dot2_f32_bf16 v{mA}, v{vQ+r}, v{vQ+r}, v{mA}")
    a("s_nop 3")
    a(f"v_mov_b32 v{mB}, v{mA}")
    a("s_nop 1")
    a(f"v_permlane32_swap_b32 v{mA}, v{mB}")
    a("s_nop 1")
    a(f"v_add_f32 v{mA}, v{mA}, v{mB}")
    a("s_waitcnt vmcnt(0) lgkmcnt(0)")
    a("s_barrier")
    if STAMP: a("s_memtime s[74:75]")
    a(f"v_mov_b32 v{t[4]}, {KMAX_ADDR}")
    a(f"ds_read_b128 {v(P[0],4)}, v{t[4]}")
    a(f"ds_read_b128 {v(P[0]+4,4)}, v{t[4]} offset:16")
    a("s_cmp_lt_u32 s5, 4")
    a("s_cbranch_scc1 K2_NOPRIO")
    a("s_setprio 1")
    a.label("K2_NOPRIO")
    a("s_waitcnt lgkmcnt(0)")
    a(f"v_max3_f32 v{mB}, v{P[0]}, v{P[0]+1}, v{P[0]+2}")
    a(f"v_max3_f32 v{mB}, v{mB}, v{P[0]+3}, v{P[0]+4}")
    a(f"v_max3_f32 v{mB}, v{mB}, v{P[0]+5}, v{P[0]+6}")
    a(f"v_max_f32 v{mB}, v{mB}, v{P[0]+7}")
    a(f"v_mul_f32 v{mA}, v{mA}, v{mB}")
    a(f"v_sqrt_f32 v{mA}, v{mA}")
    a("s_nop 0")
    a(f"v_mul_f32 v{mA}, 0xbf802000, v{mA}")
    for i in range(16):
        a(f"v_mov_b32 v{C+i}, v{mA}")
    a("s_mov_b32 s17, 0")
    if STAMP: a("s_memtime s[76:77]")
    def kread(slot, tile_off):
        return f"ds_read_b128 {v(KF[slot],4)}, v{vKa} offset:{tile_off*1024}"
    def vreads(slot, tile_off):
        return [f"ds_read_b64_tr_b16 {v(VF[slot]+2*q,2)}, v{vVa} offset:{tile_off*1024 + (q//2)*512 + (q%2)*256}" for q in range(4)]
    a.label("K2_P2_ENTRY")
    a(f"v_mov_b32 v{vKa}, v{vKa0}")
    a(f"v_mov_b32 v{vVa}, v{vVa0}")
    for T in range(3):
        a(kread(T, T))
    for o in vreads(0, 0): a(o)
    a("s_waitcnt lgkmcnt(5)")
    a(f"v_mfma_f32_32x32x16_bf16 {v(S[0],16)}, {v(KF[0],4)}, {v(vQ,4)}, {v(C,16)}")
    a(f"v_mfma_f32_32x32x16_bf16 {v(S[1],16)}, {v(KF[1],4)}, {v(vQ,4)}, {v(C,16)}")
    for i in range(16):
        a(f"v_mov_b32 v{O+i}, 0")
    a("s_mov_b32 s16, 16")
    a.label("K2_P2")
    for u in range(4):
        if VARIANT == 0:
            a(kread((u + 3) % 4, u + 3))
            for o in vreads((u + 1) % 2, u + 1): a(o)
            a("s_waitcnt lgkmcnt(5)")
            a(f"v_mfma_f32_32x32x16_bf16 {v(S[(u+2)%4],16)}, {v(KF[(u+2)%4],4)}, {v(vQ,4)}, {v(C,16)}")
            for i in range(16):
                a(f"v_exp_f32 v{S[u]+i}, v{S[u]+i}")
            for i in range(8):
                a(f"v_cvt_pk_bf16_f32 v{P[u%2]+i}, v{S[u]+2*i}, v{S[u]+2*i+1}")
            a("s_nop 1")
            a(f"v_mfma_f32_32x32x16_bf16 {v(O,16)}, {v(VF[u%2],4)}, {v(P[u%2],4)}, {v(O,16)}")
            a(f"v_mfma_f32_32x32x16_bf16 {v(O,16)}, {v(VF[u%2]+4,4)}, {v(P[u%2]+4,4)}, {v(O,16)}")
        elif VARIANT == 1:
            for i in range(16):
                a(f"v_exp_f32 v{S[u]+i}, v{S[u]+i}")
            for i in range(8):
                a(f"v_cvt_pk_bf16_f32 v{P[u%2]+i}, v{S[u]+2*i}, v{S[u]+2*i+1}")
            a(kread((u + 3) % 4, u + 3))
            for o in vreads((u + 1) % 2, u + 1): a(o)
            a("s_waitcnt lgkmcnt(5)")
            a(f"v_mfma_f32_32x32x16_bf16 {v(S[(u+2)%4],16)}, {v(KF[(u+2)%4],4)}, {v(vQ,4)}, {v(C,16)}")
            a(f"v_mfma_f32_32x32x16_bf16 {v(O,16)}, {v(VF[u%2],4)}, {v(P[u%2],4)}, {v(O,16)}")
            a(f"v_mfma_f32_32x32x16_bf16 {v(O,16)}, {v(VF[u%2]+4,4)}, {v(P[u%2]+4,4)}, {v(O,16)}")
        elif VARIANT == 2:
            a(kread((u + 3) % 4, u + 3))
            for o in vreads((u + 1) % 2, u + 1): a(o)
            a("s_waitcnt lgkmcnt(5)")
            a(f"v_mfma_f32_32x32x16_bf16 {v(S[(u+2)%4],16)}, {v(KF[(u+2)%4],4)}, {v(vQ,4)}, {v(C,16)}")
            for i in range(8):
                a(f"v_exp_f32 v{S[u]+i}, v{S[u]+i}")
            for i in range(4):
                a(f"v_cvt_pk_bf16_f32 v{P[u%2]+i}, v{S[u]+2*i}, v{S[u]+2*i+1}")
            for i in range(8, 10):
                a(f"v_exp_f32 v{S[u]+i}, v{S[u]+i}")
            a(f"v_mfma_f32_32x32x16_bf16 {v(O,16)}, {v(VF[u%2],4)}, {v(P[u%2],4)}, {v(O,16)}")
            for i in range(10, 16):
                a(f"v_exp_f32 v{S[u]+i}, v{S[u]+i}")
            for i in range(4, 8):
                a(f"v_cvt_pk_bf16_f32 v{P[u%2]+i}, v{S[u]+2*i}, v{S[u]+2*i+1}")
            a("s_nop 1")
            a(f"v_mfma_f32_32x32x16_bf16 {v(O,16)}, {v(VF[u%2]+4,4)}, {v(P[u%2]+4,4)}, {v(O,16)}")
    a(f"v_add_u32 v{vKa}, 4096, v{vKa}")
    a(f"v_add_u32 v{vVa}, v{vVinc}, v{vVa}")
    a("s_sub_u32 s16, s16, 1")
    a(f"s_cmp_lg_u32 s16, {PRIO_SWITCH}")
    a("s_cbranch_scc1 K2_P2B")
    a("s_setprio 0")
    a.label("K2_P2B")
    a("s_cmp_lg_u32 s16, 0")
    a("s_cbranch_scc1 K2_P2")
    a("s_waitcnt lgkmcnt(0)")
    a("s_nop 15")
    a("s_nop 7")
    if ONEROW:
        a(f"v_mov_b32 v{t[1]}, v{O+8}")
        a("s_nop 1")
        a(f"v_permlane32_swap_b32 v{O+8}, v{t[1]}")
        a("s_nop 1")
    a("s_cmp_lg_u32 s17, 0")
    a("s_cbranch_scc1 K2_FIN")
    a(f"v_mov_b32 v{t[0]}, 0x12800000")
    a(f"v_cmp_nge_f32 vcc, v{O+8}, v{t[0]}")
    a("s_nop 4")
    a("s_cmp_eq_u64 vcc, 0")
    a("s_cbranch_scc1 K2_FIN")
    a("s_mov_b32 s17, 1")
    a(f"v_mov_b32 v{vKa}, v{vKa0}")
    a(f"v_mov_b32 v{mA}, 0xff800000")
    a(f"v_mov_b32 v{mB}, 0xff800000")
    for T in range(3):
        a(kread(T, T))
    a("s_waitcnt lgkmcnt(1)")
    a(f"v_mfma_f32_32x32x16_bf16 {v(S[0],16)}, {v(KF[0],4)}, {v(vQ,4)}, 0")
    a(f"v_mfma_f32_32x32x16_bf16 {v(S[1],16)}, {v(KF[1],4)}, {v(vQ,4)}, 0")
    a("s_mov_b32 s16, 16")
    a.label("K2_P1")
    for u in range(4):
        a(kread((u + 3) % 4, u + 3))
        a("s_waitcnt lgkmcnt(1)")
        a(f"v_mfma_f32_32x32x16_bf16 {v(S[(u+2)%4],16)}, {v(KF[(u+2)%4],4)}, {v(vQ,4)}, 0")
        for i in range(8):
            m = mA if i % 2 == 0 else mB
            a(f"v_max3_f32 v{m}, v{S[u]+2*i}, v{S[u]+2*i+1}, v{m}")
    a(f"v_add_u32 v{vKa}, 4096, v{vKa}")
    a("s_sub_u32 s16, s16, 1")
    a("s_cmp_lg_u32 s16, 0")
    a("s_cbranch_scc1 K2_P1")
    a(f"v_max_f32 v{mA}, v{mA}, v{mB}")
    a("s_nop 1")
    a(f"v_mov_b32 v{mB}, v{mA}")
    a("s_nop 1")
    a(f"v_permlane32_swap_b32 v{mA}, v{mB}")
    a("s_nop 1")
    a(f"v_max_f32 v{mA}, v{mA}, v{mB}")
    a("s_waitcnt lgkmcnt(0)")
    a("s_nop 15")
    for i in range(16):
        a(f"v_sub_f32 v{C+i}, 0, v{mA}")
    a("s_nop 7")
    a("s_branch K2_P2_ENTRY")
    a.label("K2_FIN")
    a(f"v_rcp_f32 v{t[0]}, v{O+8}")
    a("s_nop 1")
    for i in range(8):
        a(f"v_mul_f32 v{O+i}, v{O+i}, v{t[0]}")
    Pp = P[0]
    for i in range(4):
        a(f"v_cvt_pk_bf16_f32 v{Pp+i}, v{O+2*i}, v{O+2*i+1}")
    a(f"v_lshlrev_b32 v{t[1]}, 4, v1")
    a("s_lshr_b32 s7, s12, 5")
    a("s_lshl_b32 s7, s7, 5")
    a("s_add_u32 s7, s7, s3")
    a("s_lshl_b32 s7, s7, 10")
    a(f"s_add_u32 s7, s7, {WS_O}")
    a(f"v_permlane32_swap_b32 v{Pp+0}, v{Pp+2}")
    a(f"v_permlane32_swap_b32 v{Pp+1}, v{Pp+3}")
    a("s_nop 1")
    if not MERGE:
        a(f"buffer_store_dwordx4 {v(Pp,4)}, v{t[1]}, s[8:11], s7 offen")
    else:
        a(f"buffer_store_dwordx4 {v(Pp,4)}, v{t[1]}, s[8:11], s7 offen sc1")
        a(f"v_mov_b32 v{t[2]}, {KMAX_ADDR}")
        a(f"v_mov_b32 v{t[3]}, 1")
        a("s_waitcnt vmcnt(0)")
        a("v_cmp_eq_u32 vcc, 0, v1")
        a("s_and_saveexec_b64 s[14:15], vcc")
        a(f"ds_add_rtn_u32 v{t[4]}, v{t[2]}, v{t[3]} offset:64")
        a("s_waitcnt lgkmcnt(0)")
        a(f"v_readfirstlane_b32 s7, v{t[4]}")
        a("s_cmp_lg_u32 s7, 7")
        a("s_cbranch_scc1 K2_NOFLAG")
        a("s_lshl_b32 s7, s4, 7")
        a("s_lshl_b32 s13, s3, 2")
        a("s_add_u32 s7, s7, s13")
        a(f"s_add_u32 s7, s7, {WS_FLAG}")
        a(f"v_mov_b32 v{t[2]}, 0")
        a(f"buffer_store_dword v{t[3]}, v{t[2]}, s[8:11], s7 offen sc1")
        a.label("K2_NOFLAG")
        a("s_mov_b64 exec, s[14:15]")
    stamp_end(a)
    a("s_endpgm")

    a.label("K2_FFN")
    R2 = RegAlloc(4)
    vA = R2.alloc(); vB = R2.alloc(); vG = R2.alloc(); vS = R2.alloc(); vG2 = R2.alloc()
    facc = R2.alloc(16, 4)
    Pf = R2.alloc(8, 4)
    BBr = R2.alloc(16, 4)
    D = 8; D2 = 12
    slots = R2.alloc(8 * D2, 4)
    a("s_barrier")
    if STAMP:
        a("s_memtime s[74:75]")
        a("s_memtime s[76:77]")
    a("s_sub_u32 s5, s5, 8")
    a("s_and_b32 s3, s2, 7")
    a("s_lshl_b32 s3, s3, 2")
    a("s_lshr_b32 s4, s2, 6")
    a("s_add_u32 s3, s3, s4")
    a("s_lshr_b32 s4, s2, 3")
    a("s_and_b32 s4, s4, 7")
    a("s_lshl_b32 s3, s3, 6")
    a("s_and_b32 s6, s5, 1")
    a("s_lshl_b32 s6, s6, 5")
    a("s_add_u32 s3, s3, s6")
    a("s_lshl_b32 s4, s4, 6")
    a("s_lshr_b32 s6, s5, 1")
    a("s_lshl_b32 s6, s6, 5")
    a("s_add_u32 s4, s4, s6")
    a("s_lshr_b32 s6, s4, 5")
    a(f"s_mul_i32 s6, s6, {86*1024}")
    a(f"s_add_u32 s6, s6, {WS_W2T}")
    a(f"v_lshlrev_b32 v{vA}, 4, v1")
    a(f"v_add_u32 v{vA}, s6, v{vA}")
    a(f"v_add_u32 v{vS}, s3, v2")
    a("s_lshr_b32 s6, s3, 5")
    a(f"s_mul_i32 s6, s6, {86*1024}")
    a(f"s_add_u32 s6, s6, {WS_ACT}")
    a(f"v_lshlrev_b32 v{vB}, 4, v1")
    a(f"v_add_u32 v{vB}, s6, v{vB}")
    a(f"v_lshlrev_b32 v{vG}, 2, v{vS}")
    a(f"s_mov_b32 s7, {WS_G}")
    a(f"buffer_load_dword v{vG2}, v{vG}, s[8:11], s7 offen")
    a(f"s_mov_b32 s7, {WS_OMG}")
    a(f"buffer_load_dword v{vG}, v{vG}, s[8:11], s7 offen")
    direct_gemm(a, vA, vB, 86, D, slots, facc)
    a("s_nop 15")
    a("s_nop 7")
    for i in range(8):
        a(f"v_cvt_pk_bf16_f32 v{Pf+i}, v{facc+2*i}, v{facc+2*i+1}")
    for i in range(8):
        a(f"v_lshlrev_b32 v{facc+2*i}, 16, v{Pf+i}")
        a(f"v_and_b32 v{facc+2*i+1}, 0xffff0000, v{Pf+i}")
    for i in range(16):
        a(f"v_mul_f32 v{facc+i}, v{facc+i}, v{vG}")
    for i in range(8):
        a(f"v_cvt_pk_bf16_f32 v{Pf+i}, v{facc+2*i}, v{facc+2*i+1}")
    if not MERGE:
        a(f"v_lshlrev_b32 v{vS}, 10, v{vS}")
        a(f"v_lshl_add_u32 v{vS}, v3, 4, v{vS}")
        a("s_lshl_b32 s7, s4, 1")
        a(f"s_add_u32 s7, s7, {WS_BB}")
        a(f"v_permlane32_swap_b32 v{Pf+0}, v{Pf+2}")
        a(f"v_permlane32_swap_b32 v{Pf+1}, v{Pf+3}")
        a(f"v_permlane32_swap_b32 v{Pf+4}, v{Pf+6}")
        a(f"v_permlane32_swap_b32 v{Pf+5}, v{Pf+7}")
        a("s_nop 1")
        a(f"buffer_store_dwordx4 {v(Pf,4)}, v{vS}, s[8:11], s7 offen")
        a(f"buffer_store_dwordx4 {v(Pf+4,4)}, v{vS}, s[8:11], s7 offen offset:32")
    else:
        for i in range(8):
            a(f"v_lshlrev_b32 v{BBr+2*i}, 16, v{Pf+i}")
            a(f"v_and_b32 v{BBr+2*i+1}, 0xffff0000, v{Pf+i}")
        a("s_lshr_b32 s6, s3, 8")
        a("s_lshl_b32 s6, s6, 7")
        a(f"s_add_u32 s6, s6, {WS_FLAG}")
        a(f"v_lshlrev_b32 v{vA}, 2, v2")
        a("s_barrier")
        a.label("K2_POLL")
        a(f"buffer_load_dword v{vB}, v{vA}, s[8:11], s6 offen sc1")
        a("s_waitcnt vmcnt(0)")
        a(f"v_cmp_ne_u32 vcc, 1, v{vB}")
        a("s_nop 4")
        a("s_cmp_eq_u64 vcc, 0")
        a("s_cbranch_scc1 K2_POLLDONE")
        a("s_sleep 2")
        a("s_branch K2_POLL")
        a.label("K2_POLLDONE")
        if STAMP: a("s_memtime s[74:75]")
        if STAMP: a("s_memtime s[76:77]")
        a("s_lshr_b32 s6, s4, 5")
        a(f"s_lshl_b32 s6, s6, 15")
        a(f"s_add_u32 s6, s6, {WS_WOT}")
        a(f"v_lshlrev_b32 v{vA}, 4, v1")
        a(f"v_add_u32 v{vA}, s6, v{vA}")
        a("s_lshr_b32 s6, s3, 5")
        a(f"s_lshl_b32 s6, s6, 15")
        a(f"s_add_u32 s6, s6, {WS_O}")
        a(f"v_lshlrev_b32 v{vB}, 4, v1")
        a(f"v_add_u32 v{vB}, s6, v{vB}")
        direct_gemm(a, vA, vB, 32, D2, slots, facc)
        a("s_nop 15")
        a("s_nop 7")
        for i in range(8):
            a(f"v_cvt_pk_bf16_f32 v{Pf+i}, v{facc+2*i}, v{facc+2*i+1}")
        for i in range(8):
            a(f"v_lshlrev_b32 v{facc+2*i}, 16, v{Pf+i}")
            a(f"v_and_b32 v{facc+2*i+1}, 0xffff0000, v{Pf+i}")
        for i in range(16):
            a(f"v_mul_f32 v{facc+i}, v{facc+i}, v{vG2}")
        for i in range(8):
            a(f"v_cvt_pk_bf16_f32 v{Pf+i}, v{facc+2*i}, v{facc+2*i+1}")
        for i in range(8):
            a(f"v_lshlrev_b32 v{facc+2*i}, 16, v{Pf+i}")
            a(f"v_and_b32 v{facc+2*i+1}, 0xffff0000, v{Pf+i}")
        for i in range(16):
            a(f"v_add_f32 v{facc+i}, v{facc+i}, v{BBr+i}")
        for i in range(8):
            a(f"v_cvt_pk_bf16_f32 v{Pf+i}, v{facc+2*i}, v{facc+2*i+1}")
        a(f"v_lshlrev_b32 v{vS}, 10, v{vS}")
        a(f"v_lshl_add_u32 v{vS}, v3, 4, v{vS}")
        a("s_lshl_b32 s7, s4, 1")
        a(f"v_permlane32_swap_b32 v{Pf+0}, v{Pf+2}")
        a(f"v_permlane32_swap_b32 v{Pf+1}, v{Pf+3}")
        a(f"v_permlane32_swap_b32 v{Pf+4}, v{Pf+6}")
        a(f"v_permlane32_swap_b32 v{Pf+5}, v{Pf+7}")
        a("s_nop 1")
        a(f"buffer_store_dwordx4 {v(Pf,4)}, v{vS}, s[44:47], s7 offen")
        a(f"buffer_store_dwordx4 {v(Pf+4,4)}, v{vS}, s[44:47], s7 offen offset:32")
    stamp_end(a)
    a.label("K2_END")
    a("s_endpgm")
    return a.text(), max(nv_att, R2.next)

K3_LDS = 131072
def gen_k3():
    a = Asm()
    R2 = RegAlloc(4)
    vL = R2.alloc(); vRA = R2.alloc(); vRB = R2.alloc(); vG = R2.alloc(); vS = R2.alloc()
    facc = R2.alloc(16, 4)
    Pf = R2.alloc(8, 4)
    BB = R2.alloc(8, 4)
    T = R2.alloc(16, 4)
    FR = [R2.alloc(8, 4) for _ in range(4)]
    a("s_cmp_ge_u32 s2, 256")
    a("s_cbranch_scc1 K3_END")
    if STAMP:
        a("s_memtime s[72:73]")
        a("s_memrealtime s[90:91]")
    a("s_load_dwordx2 s[52:53], s[0:1], 80")
    a("s_load_dwordx2 s[54:55], s[0:1], 64")
    a("v_lshrrev_b32 v1, 6, v0")
    a("s_nop 0")
    a("v_readfirstlane_b32 s5, v1")
    a("v_and_b32 v1, 63, v0")
    a("v_and_b32 v2, 31, v0")
    a("v_bfe_u32 v3, v0, 5, 1")
    a(f"v_lshlrev_b32 v{vL}, 4, v1")
    a("s_and_b32 s3, s2, 7")
    a("s_lshl_b32 s3, s3, 2")
    a("s_lshr_b32 s4, s2, 6")
    a("s_add_u32 s3, s3, s4")
    a("s_lshr_b32 s4, s2, 3")
    a("s_and_b32 s4, s4, 7")
    a("s_lshl_b32 s6, s4, 1")
    a("s_add_u32 s6, s6, s5")
    a("s_lshl_b32 s6, s6, 15")
    a(f"s_add_u32 s6, s6, {WS_WOT}")
    a("s_lshl_b32 s7, s3, 1")
    a("s_add_u32 s7, s7, s5")
    a("s_sub_u32 s7, s7, 2")
    a("s_lshl_b32 s7, s7, 15")
    a(f"s_add_u32 s7, s7, {WS_O}")
    a("s_cmp_lt_u32 s5, 2")
    a("s_cselect_b32 s18, s6, s7")
    a("s_lshl_b32 s19, s5, 15")
    a("s_waitcnt lgkmcnt(0)")
    srd(a, 8, 52, WS_SIZE)
    srd(a, 12, 54, 2097152)
    for ks in range(32):
        a(f"s_add_u32 m0, s19, {ks*1024}")
        a(f"s_add_u32 s20, s18, {ks*1024}")
        a(f"buffer_load_dwordx4 v{vL}, s[8:11], s20 offen lds")
    a("s_lshl_b32 s3, s3, 6")
    a("s_and_b32 s6, s5, 1")
    a("s_lshl_b32 s6, s6, 5")
    a("s_add_u32 s3, s3, s6")
    a("s_lshl_b32 s4, s4, 6")
    a("s_lshr_b32 s6, s5, 1")
    a("s_lshl_b32 s6, s6, 5")
    a("s_add_u32 s4, s4, s6")
    a(f"v_add_u32 v{vS}, s3, v2")
    a(f"v_lshlrev_b32 v{vG}, 2, v{vS}")
    a(f"s_mov_b32 s7, {WS_G}")
    a(f"buffer_load_dword v{vG}, v{vG}, s[8:11], s7 offen")
    a(f"v_lshlrev_b32 v{vS}, 10, v{vS}")
    a(f"v_lshl_add_u32 v{vS}, v3, 4, v{vS}")
    a("s_lshl_b32 s16, s4, 1")
    a(f"s_add_u32 s17, s16, {WS_BB}")
    a(f"buffer_load_dwordx4 {v(BB,4)}, v{vS}, s[8:11], s17 offen")
    a(f"buffer_load_dwordx4 {v(BB+4,4)}, v{vS}, s[8:11], s17 offen offset:32")
    a("s_lshr_b32 s6, s5, 1")
    a("s_lshl_b32 s6, s6, 15")
    a(f"v_add_u32 v{vRA}, s6, v{vL}")
    a("s_and_b32 s6, s5, 1")
    a("s_add_u32 s6, s6, 2")
    a("s_lshl_b32 s6, s6, 15")
    a(f"v_add_u32 v{vRB}, s6, v{vL}")
    if STAMP: a("s_memtime s[74:75]")
    def rd(ks):
        f = FR[ks % 4]
        a(f"ds_read_b128 {v(f,4)}, v{vRA} offset:{ks*1024}")
        a(f"ds_read_b128 {v(f+4,4)}, v{vRB} offset:{ks*1024}")
    for c in range(4):
        a(f"s_waitcnt vmcnt({3 + 32 - 8*(c+1)})")
        a("s_barrier")
        rd(8*c); rd(8*c+1); rd(8*c+2)
        for k in range(8):
            ks = 8*c + k
            if k + 3 < 8:
                rd(ks + 3)
                a("s_waitcnt lgkmcnt(6)")
            else:
                a(f"s_waitcnt lgkmcnt({2*(7-k)})")
            f = FR[ks % 4]
            cc = "0" if ks == 0 else v(facc, 16)
            a(f"v_mfma_f32_32x32x16_bf16 {v(facc,16)}, {v(f,4)}, {v(f+4,4)}, {cc}")
    if STAMP: a("s_memtime s[76:77]")
    a("s_waitcnt vmcnt(0)")
    a("s_nop 15")
    a("s_nop 7")
    for i in range(8):
        a(f"v_cvt_pk_bf16_f32 v{Pf+i}, v{facc+2*i}, v{facc+2*i+1}")
    for i in range(8):
        a(f"v_lshlrev_b32 v{facc+2*i}, 16, v{Pf+i}")
        a(f"v_and_b32 v{facc+2*i+1}, 0xffff0000, v{Pf+i}")
    for i in range(16):
        a(f"v_mul_f32 v{facc+i}, v{facc+i}, v{vG}")
    for i in range(8):
        a(f"v_cvt_pk_bf16_f32 v{Pf+i}, v{facc+2*i}, v{facc+2*i+1}")
    a("s_nop 1")
    a(f"v_permlane32_swap_b32 v{Pf+0}, v{Pf+2}")
    a(f"v_permlane32_swap_b32 v{Pf+1}, v{Pf+3}")
    a(f"v_permlane32_swap_b32 v{Pf+4}, v{Pf+6}")
    a(f"v_permlane32_swap_b32 v{Pf+5}, v{Pf+7}")
    a("s_nop 1")
    for i in range(8):
        a(f"v_lshlrev_b32 v{facc+2*i}, 16, v{Pf+i}")
        a(f"v_and_b32 v{facc+2*i+1}, 0xffff0000, v{Pf+i}")
        a(f"v_lshlrev_b32 v{T+2*i}, 16, v{BB+i}")
        a(f"v_and_b32 v{T+2*i+1}, 0xffff0000, v{BB+i}")
    for i in range(16):
        a(f"v_add_f32 v{facc+i}, v{facc+i}, v{T+i}")
    for i in range(8):
        a(f"v_cvt_pk_bf16_f32 v{Pf+i}, v{facc+2*i}, v{facc+2*i+1}")
    a(f"buffer_store_dwordx4 {v(Pf,4)}, v{vS}, s[12:15], s16 offen")
    a(f"buffer_store_dwordx4 {v(Pf+4,4)}, v{vS}, s[12:15], s16 offen offset:32")
    if STAMP:
        a("s_waitcnt vmcnt(0)")
        a("s_memtime s[78:79]")
        a("s_memrealtime s[92:93]")
        a("s_waitcnt lgkmcnt(0)")
        a("s_sub_u32 s74, s74, s72")
        a("s_sub_u32 s76, s76, s72")
        a("s_sub_u32 s78, s78, s72")
        a("v_mov_b32 v4, s90")
        a("v_mov_b32 v5, s92")
        a("v_mov_b32 v6, s74")
        a("v_mov_b32 v7, s76")
        a("v_mov_b32 v8, s78")
        a("s_lshl_b32 s87, s2, 2")
        a("s_add_u32 s87, s87, s5")
        a("s_lshl_b32 s87, s87, 5")
        a("s_add_u32 s87, s87, 0x1500000")
        a("v_mov_b32 v9, 0")
        a("buffer_store_dwordx4 v[4:7], v9, s[8:11], s87 offen")
        a("buffer_store_dword v8, v9, s[8:11], s87 offen offset:16")
    a.label("K3_END")
    a("s_endpgm")
    return a.text(), R2.next
```

```python
from asmlib import *
from layout import *
import os
STAMP = os.environ.get('STAMP') == '1'
PRIO_SWITCH = int(os.environ.get('PRIO_SWITCH', '5'))
VARIANT = int(os.environ.get('VARIANT', '0'))
MERGE = int(os.environ.get('MERGE', '0'))
ONEROW = int(os.environ.get('ONEROW', '0'))
KMAX_ADDR = 131072 + 8192
K2_LDS = KMAX_ADDR + 256

def direct_gemm(a, vA, vB, nsteps, D, base, acc, srd_="s[8:11]", nv_slots=None, flagB=""):
    def reg(sl, off):
        if nv_slots is not None and sl >= nv_slots:
            b = 8 * (sl - nv_slots) + off
            return f"a[{b}:{b+3}]"
        return v(base + 8 * sl + off, 4)
    def issue(j):
        sl = j % D
        if j % 4 == 0:
            a(f"s_mov_b32 s40, {(j//4)*4096}")
        a(f"buffer_load_dwordx4 {reg(sl,0)}, v{vA}, {srd_}, s40 offen offset:{(j%4)*1024}")
        a(f"buffer_load_dwordx4 {reg(sl,4)}, v{vB}, {srd_}, s40 offen offset:{(j%4)*1024}{flagB}")
    for j in range(min(D, nsteps)):
        issue(j)
    for j in range(nsteps):
        out = min(D, nsteps - j) - 1
        a(f"s_waitcnt vmcnt({min(63, 2*out)})")
        sl = j % D
        c = "0" if j == 0 else v(acc, 16)
        a(f"v_mfma_f32_32x32x16_bf16 {v(acc,16)}, {reg(sl,0)}, {reg(sl,4)}, {c}")
        if j + D < nsteps:
            issue(j + D)

def stamp_end(a):
    if not STAMP: return
    a("s_waitcnt vmcnt(0)")
    a("s_memtime s[78:79]")
    a("s_memrealtime s[92:93]")
    a("s_waitcnt lgkmcnt(0)")
    a("v_mov_b32 v4, s90")
    a("v_mov_b32 v5, s92")
    a("s_lshl_b32 s87, s2, 4")
    a("s_add_u32 s87, s87, s88")
    a("s_lshl_b32 s87, s87, 3")
    a("s_add_u32 s87, s87, 0x1400000")
    a("v_mov_b32 v8, 0")
    a("buffer_store_dwordx2 v[4:5], v8, s[8:11], s87 offen")
    a("s_sub_u32 s74, s74, s72")
    a("s_sub_u32 s76, s76, s72")
    a("s_sub_u32 s78, s78, s72")
    a("v_mov_b32 v4, s74")
    a("v_mov_b32 v5, s76")
    a("v_mov_b32 v6, s78")
    a("v_mov_b32 v7, 0")
    a("s_lshl_b32 s87, s2, 4")
    a("s_add_u32 s87, s87, s88")
    a("s_lshl_b32 s87, s87, 4")
    a("s_add_u32 s87, s87, 0x1600000")
    a("buffer_store_dwordx4 v[4:7], v8, s[8:11], s87 offen")

def gen_k2():
    a = Asm()
    R = RegAlloc(4)
    vQ = R.alloc(4, 4)
    vKa = R.alloc(); vVa = R.alloc(); vVinc = R.alloc()
    vKa0 = R.alloc(); vVa0 = R.alloc()
    vt = [R.alloc() for _ in range(6)]
    mA = R.alloc(); mB = R.alloc()
    KF = [R.alloc(4, 4) for _ in range(4)]
    S = [R.alloc(16, 4) for _ in range(4)]
    C = R.alloc(16, 4)
    P = [R.alloc(8, 4) for _ in range(2)]
    VF = [R.alloc(8, 4) for _ in range(2)]
    O = R.alloc(16, 4)
    nv_att = R.next

    a("s_cmp_ge_u32 s2, 256")
    a("s_cbranch_scc1 K2_END")
    if STAMP:
        a("s_memtime s[72:73]")
        a("s_memrealtime s[90:91]")
        a("s_load_dwordx2 s[84:85], s[0:1], 72")
    a("s_load_dwordx2 s[52:53], s[0:1], 80")
    a("s_load_dwordx4 s[56:59], s[0:1], 64")
    a("v_lshrrev_b32 v1, 6, v0")
    a("s_nop 0")
    a("v_readfirstlane_b32 s5, v1")
    a("v_and_b32 v1, 63, v0")
    a("v_and_b32 v2, 31, v0")
    a("v_bfe_u32 v3, v0, 5, 1")
    a("s_waitcnt lgkmcnt(0)")
    srd(a, 8, 52, WS_SIZE)
    srd(a, 44, 56, 2097152)
    if STAMP: a("s_mov_b32 s88, s5")
    a("s_cmp_ge_u32 s5, 8")
    a("s_cbranch_scc1 K2_FFN")
    a("s_and_b32 s3, s2, 7")
    a("s_lshl_b32 s3, s3, 2")
    a("s_lshr_b32 s4, s2, 6")
    a("s_add_u32 s3, s3, s4")
    a("s_lshr_b32 s4, s2, 3")
    a("s_and_b32 s4, s4, 7")
    a("s_lshl_b32 s6, s3, 16")
    t = vt
    a(f"v_lshlrev_b32 v{t[0]}, 4, v0")
    stgK = S[0]; stgV = S[2]
    for i in range(8):
        a(f"s_add_u32 s7, s6, {WS_K + i*8192}")
        a(f"buffer_load_dwordx4 {v(stgK+4*i,4)}, v{t[0]}, s[8:11], s7 offen")
    a("s_lshl_b32 s12, s4, 8")
    a("s_lshl_b32 s13, s5, 5")
    a("s_add_u32 s12, s12, s13")
    a(f"v_add_u32 v{t[1]}, s12, v2")
    a(f"v_lshlrev_b32 v{t[2]}, 5, v{t[1]}")
    a(f"v_lshl_add_u32 v{t[2]}, v3, 4, v{t[2]}")
    a(f"s_add_u32 s7, s6, {WS_Q}")
    a(f"buffer_load_dwordx4 {v(vQ,4)}, v{t[2]}, s[8:11], s7 offen")
    a(f"v_lshlrev_b32 v{t[5]}, 4, v1")
    a("s_lshl_b32 s13, s5, 10")
    for i in range(8):
        a(f"s_add_u32 m0, s13, {65536 + i*8192}")
        a(f"s_add_u32 s7, s6, {WS_V + i*8192}")
        a("s_add_u32 s7, s7, s13")
        a(f"buffer_load_dwordx4 v{t[5]}, s[8:11], s7 offen lds")
    if ONEROW:
        a(f"v_and_b32 v{C+1}, 1, v0")
        a(f"v_cmp_eq_u32 vcc, 0, v{C+1}")
        a(f"v_mov_b32 v{C+2}, 0x3f80")
        a(f"v_mov_b32 v{C+1}, 0")
        a(f"v_mov_b32 v{C+3}, 0")
        a(f"v_cndmask_b32 v{C}, v{C+1}, v{C+2}, vcc")
        a(f"v_mov_b32 v{C+2}, 0")
    else:
        for i in range(4):
            a(f"v_mov_b32 v{C+i}, 0x3f803f80")
    a(f"v_add_u32 v{t[3]}, 131072, v{t[0]}")
    a(f"ds_write_b128 v{t[3]}, {v(C,4)}")
    a("s_lshl_b32 s13, s5, 2")
    a(f"s_add_u32 s13, s13, {KMAX_ADDR}")
    a(f"v_mov_b32 v{t[4]}, s13")
    if MERGE:
        a(f"v_mov_b32 v{t[5]}, 0")
        a(f"v_mov_b32 v{t[3]}, {KMAX_ADDR}")
        a(f"ds_write_b32 v{t[3]}, v{t[5]} offset:64")
    a("s_waitcnt vmcnt(9)")
    for i in range(8):
        a(f"ds_write_b128 v{t[0]}, {v(stgK+4*i,4)} offset:{i*8192}")
    N = P[0]
    N2 = P[1]
    for i in range(8):
        a(f"v_dot2_f32_bf16 v{N+i}, v{stgK+4*i}, v{stgK+4*i}, 0")
    for r in range(1, 4):
        for i in range(8):
            a(f"v_dot2_f32_bf16 v{N+i}, v{stgK+4*i+r}, v{stgK+4*i+r}, v{N+i}")
    a("s_nop 3")
    for i in range(8):
        a(f"v_add_f32_dpp v{N2+i}, v{N+i}, v{N+i} quad_perm:[1,0,3,2] row_mask:0xf bank_mask:0xf")
    a(f"v_max3_f32 v{N}, v{N2}, v{N2+1}, v{N2+2}")
    a(f"v_max3_f32 v{N+1}, v{N2+3}, v{N2+4}, v{N2+5}")
    a(f"v_max3_f32 v{N}, v{N}, v{N2+6}, v{N2+7}")
    a(f"v_max_f32 v{N}, v{N}, v{N+1}")
    for ctl in ("row_shr:1 row_mask:0xf", "row_shr:2 row_mask:0xf", "row_shr:4 row_mask:0xf", "row_shr:8 row_mask:0xf",
                "row_bcast:15 row_mask:0xa", "row_bcast:31 row_mask:0xc"):
        a("s_nop 1")
        a(f"v_max_f32_dpp v{N}, v{N}, v{N} {ctl} bank_mask:0xf")
    a("v_cmp_eq_u32 vcc, 63, v1")
    a("s_and_saveexec_b64 s[14:15], vcc")
    a(f"ds_write_b32 v{t[4]}, v{N}")
    a("s_mov_b64 exec, s[14:15]")
    a(f"v_lshlrev_b32 v{vKa0}, 5, v2")
    a(f"v_lshl_add_u32 v{vKa0}, v3, 4, v{vKa0}")
    a(f"v_bfe_u32 v{t[1]}, v0, 2, 2")
    a(f"v_lshl_add_u32 v{t[1]}, v3, 2, v{t[1]}")
    a(f"v_lshlrev_b32 v{t[1]}, 5, v{t[1]}")
    a(f"v_and_b32 v{t[2]}, 3, v0")
    a(f"v_lshl_add_u32 v{t[1]}, v{t[2]}, 3, v{t[1]}")
    a(f"v_add_u32 v{t[1]}, 65536, v{t[1]}")
    a(f"v_and_b32 v{t[2]}, 15, v0")
    a(f"v_lshlrev_b32 v{t[2]}, 3, v{t[2]}")
    a(f"v_add_u32 v{t[2]}, 131072, v{t[2]}")
    a(f"v_bfe_u32 v{t[3]}, v0, 4, 1")
    a(f"v_cmp_eq_u32 vcc, 1, v{t[3]}")
    a(f"v_mov_b32 v{mA}, 4096")
    a(f"v_mov_b32 v{mB}, 0")
    a("s_nop 1")
    a(f"v_cndmask_b32 v{vVa0}, v{t[1]}, v{t[2]}, vcc")
    a(f"v_cndmask_b32 v{vVinc}, v{mA}, v{mB}, vcc")
    a("s_waitcnt vmcnt(8)")
    a(f"v_dot2_f32_bf16 v{mA}, v{vQ}, v{vQ}, 0")
    for r in range(1, 4):
        a(f"v_dot2_f32_bf16 v{mA}, v{vQ+r}, v{vQ+r}, v{mA}")
    a("s_nop 3")
    a(f"v_mov_b32 v{mB}, v{mA}")
    a("s_nop 1")
    a(f"v_permlane32_swap_b32 v{mA}, v{mB}")
    a("s_nop 1")
    a(f"v_add_f32 v{mA}, v{mA}, v{mB}")
    a("s_waitcnt vmcnt(0) lgkmcnt(0)")
    a("s_barrier")
    if STAMP: a("s_memtime s[74:75]")
    a(f"v_mov_b32 v{t[4]}, {KMAX_ADDR}")
    a(f"ds_read_b128 {v(P[0],4)}, v{t[4]}")
    a(f"ds_read_b128 {v(P[0]+4,4)}, v{t[4]} offset:16")
    a("s_cmp_lt_u32 s5, 4")
    a("s_cbranch_scc1 K2_NOPRIO")
    a("s_setprio 1")
    a.label("K2_NOPRIO")
    a("s_waitcnt lgkmcnt(0)")
    a(f"v_max3_f32 v{mB}, v{P[0]}, v{P[0]+1}, v{P[0]+2}")
    a(f"v_max3_f32 v{mB}, v{mB}, v{P[0]+3}, v{P[0]+4}")
    a(f"v_max3_f32 v{mB}, v{mB}, v{P[0]+5}, v{P[0]+6}")
    a(f"v_max_f32 v{mB}, v{mB}, v{P[0]+7}")
    a(f"v_mul_f32 v{mA}, v{mA}, v{mB}")
    a(f"v_sqrt_f32 v{mA}, v{mA}")
    a("s_nop 0")
    a(f"v_mul_f32 v{mA}, 0xbf802000, v{mA}")
    for i in range(16):
        a(f"v_mov_b32 v{C+i}, v{mA}")
    a("s_mov_b32 s17, 0")
    if STAMP: a("s_memtime s[76:77]")
    def kread(slot, tile_off):
        return f"ds_read_b128 {v(KF[slot],4)}, v{vKa} offset:{tile_off*1024}"
    def vreads(slot, tile_off):
        return [f"ds_read_b64_tr_b16 {v(VF[slot]+2*q,2)}, v{vVa} offset:{tile_off*1024 + (q//2)*512 + (q%2)*256}" for q in range(4)]
    a.label("K2_P2_ENTRY")
    a(f"v_mov_b32 v{vKa}, v{vKa0}")
    a(f"v_mov_b32 v{vVa}, v{vVa0}")
    for T in range(3):
        a(kread(T, T))
    for o in vreads(0, 0): a(o)
    a("s_waitcnt lgkmcnt(5)")
    a(f"v_mfma_f32_32x32x16_bf16 {v(S[0],16)}, {v(KF[0],4)}, {v(vQ,4)}, {v(C,16)}")
    a(f"v_mfma_f32_32x32x16_bf16 {v(S[1],16)}, {v(KF[1],4)}, {v(vQ,4)}, {v(C,16)}")
    for i in range(16):
        a(f"v_mov_b32 v{O+i}, 0")
    a("s_mov_b32 s16, 16")
    a.label("K2_P2")
    for u in range(4):
        if VARIANT == 0:
            a(kread((u + 3) % 4, u + 3))
            for o in vreads((u + 1) % 2, u + 1): a(o)
            a("s_waitcnt lgkmcnt(5)")
            a(f"v_mfma_f32_32x32x16_bf16 {v(S[(u+2)%4],16)}, {v(KF[(u+2)%4],4)}, {v(vQ,4)}, {v(C,16)}")
            for i in range(16):
                a(f"v_exp_f32 v{S[u]+i}, v{S[u]+i}")
            for i in range(8):
                a(f"v_cvt_pk_bf16_f32 v{P[u%2]+i}, v{S[u]+2*i}, v{S[u]+2*i+1}")
            a("s_nop 1")
            a(f"v_mfma_f32_32x32x16_bf16 {v(O,16)}, {v(VF[u%2],4)}, {v(P[u%2],4)}, {v(O,16)}")
            a(f"v_mfma_f32_32x32x16_bf16 {v(O,16)}, {v(VF[u%2]+4,4)}, {v(P[u%2]+4,4)}, {v(O,16)}")
        elif VARIANT == 1:
            for i in range(16):
                a(f"v_exp_f32 v{S[u]+i}, v{S[u]+i}")
            for i in range(8):
                a(f"v_cvt_pk_bf16_f32 v{P[u%2]+i}, v{S[u]+2*i}, v{S[u]+2*i+1}")
            a(kread((u + 3) % 4, u + 3))
            for o in vreads((u + 1) % 2, u + 1): a(o)
            a("s_waitcnt lgkmcnt(5)")
            a(f"v_mfma_f32_32x32x16_bf16 {v(S[(u+2)%4],16)}, {v(KF[(u+2)%4],4)}, {v(vQ,4)}, {v(C,16)}")
            a(f"v_mfma_f32_32x32x16_bf16 {v(O,16)}, {v(VF[u%2],4)}, {v(P[u%2],4)}, {v(O,16)}")
            a(f"v_mfma_f32_32x32x16_bf16 {v(O,16)}, {v(VF[u%2]+4,4)}, {v(P[u%2]+4,4)}, {v(O,16)}")
        elif VARIANT == 2:
            a(kread((u + 3) % 4, u + 3))
            for o in vreads((u + 1) % 2, u + 1): a(o)
            a("s_waitcnt lgkmcnt(5)")
            a(f"v_mfma_f32_32x32x16_bf16 {v(S[(u+2)%4],16)}, {v(KF[(u+2)%4],4)}, {v(vQ,4)}, {v(C,16)}")
            for i in range(8):
                a(f"v_exp_f32 v{S[u]+i}, v{S[u]+i}")
            for i in range(4):
                a(f"v_cvt_pk_bf16_f32 v{P[u%2]+i}, v{S[u]+2*i}, v{S[u]+2*i+1}")
            for i in range(8, 10):
                a(f"v_exp_f32 v{S[u]+i}, v{S[u]+i}")
            a(f"v_mfma_f32_32x32x16_bf16 {v(O,16)}, {v(VF[u%2],4)}, {v(P[u%2],4)}, {v(O,16)}")
            for i in range(10, 16):
                a(f"v_exp_f32 v{S[u]+i}, v{S[u]+i}")
            for i in range(4, 8):
                a(f"v_cvt_pk_bf16_f32 v{P[u%2]+i}, v{S[u]+2*i}, v{S[u]+2*i+1}")
            a("s_nop 1")
            a(f"v_mfma_f32_32x32x16_bf16 {v(O,16)}, {v(VF[u%2]+4,4)}, {v(P[u%2]+4,4)}, {v(O,16)}")
    a(f"v_add_u32 v{vKa}, 4096, v{vKa}")
    a(f"v_add_u32 v{vVa}, v{vVinc}, v{vVa}")
    a("s_sub_u32 s16, s16, 1")
    a(f"s_cmp_lg_u32 s16, {PRIO_SWITCH}")
    a("s_cbranch_scc1 K2_P2B")
    a("s_setprio 0")
    a.label("K2_P2B")
    a("s_cmp_lg_u32 s16, 0")
    a("s_cbranch_scc1 K2_P2")
    a("s_waitcnt lgkmcnt(0)")
    a("s_nop 15")
    a("s_nop 7")
    if ONEROW:
        a(f"v_mov_b32 v{t[1]}, v{O+8}")
        a("s_nop 1")
        a(f"v_permlane32_swap_b32 v{O+8}, v{t[1]}")
        a("s_nop 1")
    a("s_cmp_lg_u32 s17, 0")
    a("s_cbranch_scc1 K2_FIN")
    a(f"v_mov_b32 v{t[0]}, 0x12800000")
    a(f"v_cmp_nge_f32 vcc, v{O+8}, v{t[0]}")
    a("s_nop 4")
    a("s_cmp_eq_u64 vcc, 0")
    a("s_cbranch_scc1 K2_FIN")
    a("s_mov_b32 s17, 1")
    a(f"v_mov_b32 v{vKa}, v{vKa0}")
    a(f"v_mov_b32 v{mA}, 0xff800000")
    a(f"v_mov_b32 v{mB}, 0xff800000")
    for T in range(3):
        a(kread(T, T))
    a("s_waitcnt lgkmcnt(1)")
    a(f"v_mfma_f32_32x32x16_bf16 {v(S[0],16)}, {v(KF[0],4)}, {v(vQ,4)}, 0")
    a(f"v_mfma_f32_32x32x16_bf16 {v(S[1],16)}, {v(KF[1],4)}, {v(vQ,4)}, 0")
    a("s_mov_b32 s16, 16")
    a.label("K2_P1")
    for u in range(4):
        a(kread((u + 3) % 4, u + 3))
        a("s_waitcnt lgkmcnt(1)")
        a(f"v_mfma_f32_32x32x16_bf16 {v(S[(u+2)%4],16)}, {v(KF[(u+2)%4],4)}, {v(vQ,4)}, 0")
        for i in range(8):
            m = mA if i % 2 == 0 else mB
            a(f"v_max3_f32 v{m}, v{S[u]+2*i}, v{S[u]+2*i+1}, v{m}")
    a(f"v_add_u32 v{vKa}, 4096, v{vKa}")
    a("s_sub_u32 s16, s16, 1")
    a("s_cmp_lg_u32 s16, 0")
    a("s_cbranch_scc1 K2_P1")
    a(f"v_max_f32 v{mA}, v{mA}, v{mB}")
    a("s_nop 1")
    a(f"v_mov_b32 v{mB}, v{mA}")
    a("s_nop 1")
    a(f"v_permlane32_swap_b32 v{mA}, v{mB}")
    a("s_nop 1")
    a(f"v_max_f32 v{mA}, v{mA}, v{mB}")
    a("s_waitcnt lgkmcnt(0)")
    a("s_nop 15")
    for i in range(16):
        a(f"v_sub_f32 v{C+i}, 0, v{mA}")
    a("s_nop 7")
    a("s_branch K2_P2_ENTRY")
    a.label("K2_FIN")
    a(f"v_rcp_f32 v{t[0]}, v{O+8}")
    a("s_nop 1")
    for i in range(8):
        a(f"v_mul_f32 v{O+i}, v{O+i}, v{t[0]}")
    Pp = P[0]
    for i in range(4):
        a(f"v_cvt_pk_bf16_f32 v{Pp+i}, v{O+2*i}, v{O+2*i+1}")
    a(f"v_lshlrev_b32 v{t[1]}, 4, v1")
    a("s_lshr_b32 s7, s12, 5")
    a("s_lshl_b32 s7, s7, 5")
    a("s_add_u32 s7, s7, s3")
    a("s_lshl_b32 s7, s7, 10")
    a(f"s_add_u32 s7, s7, {WS_O}")
    a(f"v_permlane32_swap_b32 v{Pp+0}, v{Pp+2}")
    a(f"v_permlane32_swap_b32 v{Pp+1}, v{Pp+3}")
    a("s_nop 1")
    if not MERGE:
        a(f"buffer_store_dwordx4 {v(Pp,4)}, v{t[1]}, s[8:11], s7 offen")
    else:
        a(f"buffer_store_dwordx4 {v(Pp,4)}, v{t[1]}, s[8:11], s7 offen sc1")
        a(f"v_mov_b32 v{t[2]}, {KMAX_ADDR}")
        a(f"v_mov_b32 v{t[3]}, 1")
        a("s_waitcnt vmcnt(0)")
        a("v_cmp_eq_u32 vcc, 0, v1")
        a("s_and_saveexec_b64 s[14:15], vcc")
        a(f"ds_add_rtn_u32 v{t[4]}, v{t[2]}, v{t[3]} offset:64")
        a("s_waitcnt lgkmcnt(0)")
        a(f"v_readfirstlane_b32 s7, v{t[4]}")
        a("s_cmp_lg_u32 s7, 7")
        a("s_cbranch_scc1 K2_NOFLAG")
        a("s_lshl_b32 s7, s4, 7")
        a("s_lshl_b32 s13, s3, 2")
        a("s_add_u32 s7, s7, s13")
        a(f"s_add_u32 s7, s7, {WS_FLAG}")
        a(f"v_mov_b32 v{t[2]}, 0")
        a(f"buffer_store_dword v{t[3]}, v{t[2]}, s[8:11], s7 offen sc1")
        a.label("K2_NOFLAG")
        a("s_mov_b64 exec, s[14:15]")
    stamp_end(a)
    a("s_endpgm")

    a.label("K2_FFN")
    R2 = RegAlloc(4)
    vA = R2.alloc(); vB = R2.alloc(); vG = R2.alloc(); vS = R2.alloc(); vG2 = R2.alloc(); vL = R2.alloc()
    facc = R2.alloc(16, 4)
    Pf = R2.alloc(8, 4)
    BBr = R2.alloc(16, 4)
    D = 8; D2 = 12
    slots = R2.alloc(8 * D2, 4)
    a("s_barrier")
    if STAMP:
        a("s_memtime s[74:75]")
        a("s_memtime s[76:77]")
    a("s_sub_u32 s5, s5, 8")
    a("s_and_b32 s3, s2, 7")
    a("s_lshl_b32 s3, s3, 2")
    a("s_lshr_b32 s4, s2, 6")
    a("s_add_u32 s3, s3, s4")
    a("s_lshr_b32 s4, s2, 3")
    a("s_and_b32 s4, s4, 7")
    a("s_lshl_b32 s3, s3, 6")
    a("s_and_b32 s6, s5, 1")
    a("s_lshl_b32 s6, s6, 5")
    a("s_add_u32 s3, s3, s6")
    a("s_lshl_b32 s4, s4, 6")
    a("s_lshr_b32 s6, s5, 1")
    a("s_lshl_b32 s6, s6, 5")
    a("s_add_u32 s4, s4, s6")
    a("s_lshr_b32 s6, s4, 5")
    a(f"s_mul_i32 s6, s6, {86*1024}")
    a(f"s_add_u32 s6, s6, {WS_W2T}")
    a(f"v_lshlrev_b32 v{vA}, 4, v1")
    a(f"v_add_u32 v{vA}, s6, v{vA}")
    a(f"v_add_u32 v{vS}, s3, v2")
    a("s_lshr_b32 s6, s3, 5")
    a(f"s_mul_i32 s6, s6, {86*1024}")
    a(f"s_add_u32 s6, s6, {WS_ACT}")
    a(f"v_lshlrev_b32 v{vB}, 4, v1")
    a(f"v_add_u32 v{vB}, s6, v{vB}")
    a(f"v_lshlrev_b32 v{vG}, 2, v{vS}")
    a(f"s_mov_b32 s7, {WS_G}")
    a(f"buffer_load_dword v{vG2}, v{vG}, s[8:11], s7 offen")
    a(f"s_mov_b32 s7, {WS_OMG}")
    a(f"buffer_load_dword v{vG}, v{vG}, s[8:11], s7 offen")
    direct_gemm(a, vA, vB, 86, D, slots, facc)
    a("s_nop 15")
    a("s_nop 7")
    for i in range(8):
        a(f"v_cvt_pk_bf16_f32 v{Pf+i}, v{facc+2*i}, v{facc+2*i+1}")
    for i in range(8):
        a(f"v_lshlrev_b32 v{facc+2*i}, 16, v{Pf+i}")
        a(f"v_and_b32 v{facc+2*i+1}, 0xffff0000, v{Pf+i}")
    for i in range(16):
        a(f"v_mul_f32 v{facc+i}, v{facc+i}, v{vG}")
    for i in range(8):
        a(f"v_cvt_pk_bf16_f32 v{Pf+i}, v{facc+2*i}, v{facc+2*i+1}")
    if not MERGE:
        a(f"v_lshlrev_b32 v{vS}, 10, v{vS}")
        a(f"v_lshl_add_u32 v{vS}, v3, 4, v{vS}")
        a("s_lshl_b32 s7, s4, 1")
        a(f"s_add_u32 s7, s7, {WS_BB}")
        a(f"v_permlane32_swap_b32 v{Pf+0}, v{Pf+2}")
        a(f"v_permlane32_swap_b32 v{Pf+1}, v{Pf+3}")
        a(f"v_permlane32_swap_b32 v{Pf+4}, v{Pf+6}")
        a(f"v_permlane32_swap_b32 v{Pf+5}, v{Pf+7}")
        a("s_nop 1")
        a(f"buffer_store_dwordx4 {v(Pf,4)}, v{vS}, s[8:11], s7 offen")
        a(f"buffer_store_dwordx4 {v(Pf+4,4)}, v{vS}, s[8:11], s7 offen offset:32")
    else:
        for i in range(8):
            a(f"v_lshlrev_b32 v{BBr+2*i}, 16, v{Pf+i}")
            a(f"v_and_b32 v{BBr+2*i+1}, 0xffff0000, v{Pf+i}")
        a("s_lshr_b32 s6, s3, 8")
        a("s_lshl_b32 s6, s6, 7")
        a(f"s_add_u32 s6, s6, {WS_FLAG}")
        a(f"v_lshlrev_b32 v{vA}, 2, v2")
        a("s_barrier")
        a(f"v_lshlrev_b32 v{vL}, 4, v1")
        a("s_lshr_b32 s20, s5, 1")
        a("s_and_b32 s21, s5, 1")
        a("s_lshr_b32 s22, s4, 6")
        a("s_lshl_b32 s22, s22, 1")
        a("s_add_u32 s22, s22, s20")
        a("s_lshl_b32 s22, s22, 15")
        a("s_lshl_b32 s23, s21, 14")
        a("s_add_u32 s22, s22, s23")
        a(f"s_add_u32 s22, s22, {WS_WOT}")
        a("s_lshl_b32 s24, s20, 15")
        a("s_add_u32 s24, s24, s23")
        for ks in range(16):
            a(f"s_add_u32 m0, s24, {ks*1024}")
            a(f"s_add_u32 s25, s22, {ks*1024}")
            a(f"buffer_load_dwordx4 v{vL}, s[8:11], s25 offen lds")
        a("s_lshr_b32 s22, s3, 6")
        a("s_lshl_b32 s22, s22, 1")
        a("s_add_u32 s22, s22, s20")
        a("s_lshl_b32 s22, s22, 15")
        a("s_add_u32 s22, s22, s23")
        a(f"s_add_u32 s22, s22, {WS_O}")
        a("s_add_u32 s24, s24, 65536")
        a.label("K2_POLL")
        a(f"buffer_load_dword v{vB}, v{vA}, s[8:11], s6 offen sc1")
        a("s_waitcnt vmcnt(0)")
        a(f"v_cmp_ne_u32 vcc, 1, v{vB}")
        a("s_nop 4")
        a("s_cmp_eq_u64 vcc, 0")
        a("s_cbranch_scc1 K2_POLLDONE")
        a("s_sleep 2")
        a("s_branch K2_POLL")
        a.label("K2_POLLDONE")
        if STAMP: a("s_memtime s[74:75]")
        if STAMP: a("s_memtime s[76:77]")
        for ks in range(16):
            a(f"s_add_u32 m0, s24, {ks*1024}")
            a(f"s_add_u32 s25, s22, {ks*1024}")
            a(f"buffer_load_dwordx4 v{vL}, s[8:11], s25 offen lds")
        a("s_lshl_b32 s6, s20, 15")
        a(f"v_add_u32 v{vA}, s6, v{vL}")
        a("s_lshl_b32 s6, s21, 15")
        a("s_add_u32 s6, s6, 65536")
        a(f"v_add_u32 v{vB}, s6, v{vL}")
        a("s_waitcnt vmcnt(0)")
        a("s_barrier")
        FR = [slots + 8*i for i in range(4)]
        def rd(ks):
            f = FR[ks % 4]
            a(f"ds_read_b128 {v(f,4)}, v{vA} offset:{ks*1024}")
            a(f"ds_read_b128 {v(f+4,4)}, v{vB} offset:{ks*1024}")
        rd(0); rd(1); rd(2)
        for ks in range(32):
            if ks + 3 < 32:
                rd(ks + 3)
                a("s_waitcnt lgkmcnt(6)")
            else:
                a(f"s_waitcnt lgkmcnt({2*(31-ks)})")
            f = FR[ks % 4]
            cc = "0" if ks == 0 else v(facc, 16)
            a(f"v_mfma_f32_32x32x16_bf16 {v(facc,16)}, {v(f,4)}, {v(f+4,4)}, {cc}")
        a("s_nop 15")
        a("s_nop 7")
        for i in range(8):
            a(f"v_cvt_pk_bf16_f32 v{Pf+i}, v{facc+2*i}, v{facc+2*i+1}")
        for i in range(8):
            a(f"v_lshlrev_b32 v{facc+2*i}, 16, v{Pf+i}")
            a(f"v_and_b32 v{facc+2*i+1}, 0xffff0000, v{Pf+i}")
        for i in range(16):
            a(f"v_mul_f32 v{facc+i}, v{facc+i}, v{vG2}")
        for i in range(8):
            a(f"v_cvt_pk_bf16_f32 v{Pf+i}, v{facc+2*i}, v{facc+2*i+1}")
        for i in range(8):
            a(f"v_lshlrev_b32 v{facc+2*i}, 16, v{Pf+i}")
            a(f"v_and_b32 v{facc+2*i+1}, 0xffff0000, v{Pf+i}")
        for i in range(16):
            a(f"v_add_f32 v{facc+i}, v{facc+i}, v{BBr+i}")
        for i in range(8):
            a(f"v_cvt_pk_bf16_f32 v{Pf+i}, v{facc+2*i}, v{facc+2*i+1}")
        a(f"v_lshlrev_b32 v{vS}, 10, v{vS}")
        a(f"v_lshl_add_u32 v{vS}, v3, 4, v{vS}")
        a("s_lshl_b32 s7, s4, 1")
        a(f"v_permlane32_swap_b32 v{Pf+0}, v{Pf+2}")
        a(f"v_permlane32_swap_b32 v{Pf+1}, v{Pf+3}")
        a(f"v_permlane32_swap_b32 v{Pf+4}, v{Pf+6}")
        a(f"v_permlane32_swap_b32 v{Pf+5}, v{Pf+7}")
        a("s_nop 1")
        a(f"buffer_store_dwordx4 {v(Pf,4)}, v{vS}, s[44:47], s7 offen")
        a(f"buffer_store_dwordx4 {v(Pf+4,4)}, v{vS}, s[44:47], s7 offen offset:32")
    stamp_end(a)
    a.label("K2_END")
    a("s_endpgm")
    return a.text(), max(nv_att, R2.next)

K3_LDS = 131072
def gen_k3():
    a = Asm()
    R2 = RegAlloc(4)
    vL = R2.alloc(); vRA = R2.alloc(); vRB = R2.alloc(); vG = R2.alloc(); vS = R2.alloc()
    facc = R2.alloc(16, 4)
    Pf = R2.alloc(8, 4)
    BB = R2.alloc(8, 4)
    T = R2.alloc(16, 4)
    FR = [R2.alloc(8, 4) for _ in range(4)]
    a("s_cmp_ge_u32 s2, 256")
    a("s_cbranch_scc1 K3_END")
    if STAMP:
        a("s_memtime s[72:73]")
        a("s_memrealtime s[90:91]")
    a("s_load_dwordx2 s[52:53], s[0:1], 80")
    a("s_load_dwordx2 s[54:55], s[0:1], 64")
    a("v_lshrrev_b32 v1, 6, v0")
    a("s_nop 0")
    a("v_readfirstlane_b32 s5, v1")
    a("v_and_b32 v1, 63, v0")
    a("v_and_b32 v2, 31, v0")
    a("v_bfe_u32 v3, v0, 5, 1")
    a(f"v_lshlrev_b32 v{vL}, 4, v1")
    a("s_and_b32 s3, s2, 7")
    a("s_lshl_b32 s3, s3, 2")
    a("s_lshr_b32 s4, s2, 6")
    a("s_add_u32 s3, s3, s4")
    a("s_lshr_b32 s4, s2, 3")
    a("s_and_b32 s4, s4, 7")
    a("s_lshl_b32 s6, s4, 1")
    a("s_add_u32 s6, s6, s5")
    a("s_lshl_b32 s6, s6, 15")
    a(f"s_add_u32 s6, s6, {WS_WOT}")
    a("s_lshl_b32 s7, s3, 1")
    a("s_add_u32 s7, s7, s5")
    a("s_sub_u32 s7, s7, 2")
    a("s_lshl_b32 s7, s7, 15")
    a(f"s_add_u32 s7, s7, {WS_O}")
    a("s_cmp_lt_u32 s5, 2")
    a("s_cselect_b32 s18, s6, s7")
    a("s_lshl_b32 s19, s5, 15")
    a("s_waitcnt lgkmcnt(0)")
    srd(a, 8, 52, WS_SIZE)
    srd(a, 12, 54, 2097152)
    for ks in range(32):
        a(f"s_add_u32 m0, s19, {ks*1024}")
        a(f"s_add_u32 s20, s18, {ks*1024}")
        a(f"buffer_load_dwordx4 v{vL}, s[8:11], s20 offen lds")
    a("s_lshl_b32 s3, s3, 6")
    a("s_and_b32 s6, s5, 1")
    a("s_lshl_b32 s6, s6, 5")
    a("s_add_u32 s3, s3, s6")
    a("s_lshl_b32 s4, s4, 6")
    a("s_lshr_b32 s6, s5, 1")
    a("s_lshl_b32 s6, s6, 5")
    a("s_add_u32 s4, s4, s6")
    a(f"v_add_u32 v{vS}, s3, v2")
    a(f"v_lshlrev_b32 v{vG}, 2, v{vS}")
    a(f"s_mov_b32 s7, {WS_G}")
    a(f"buffer_load_dword v{vG}, v{vG}, s[8:11], s7 offen")
    a(f"v_lshlrev_b32 v{vS}, 10, v{vS}")
    a(f"v_lshl_add_u32 v{vS}, v3, 4, v{vS}")
    a("s_lshl_b32 s16, s4, 1")
    a(f"s_add_u32 s17, s16, {WS_BB}")
    a(f"buffer_load_dwordx4 {v(BB,4)}, v{vS}, s[8:11], s17 offen")
    a(f"buffer_load_dwordx4 {v(BB+4,4)}, v{vS}, s[8:11], s17 offen offset:32")
    a("s_lshr_b32 s6, s5, 1")
    a("s_lshl_b32 s6, s6, 15")
    a(f"v_add_u32 v{vRA}, s6, v{vL}")
    a("s_and_b32 s6, s5, 1")
    a("s_add_u32 s6, s6, 2")
    a("s_lshl_b32 s6, s6, 15")
    a(f"v_add_u32 v{vRB}, s6, v{vL}")
    if STAMP: a("s_memtime s[74:75]")
    def rd(ks):
        f = FR[ks % 4]
        a(f"ds_read_b128 {v(f,4)}, v{vRA} offset:{ks*1024}")
        a(f"ds_read_b128 {v(f+4,4)}, v{vRB} offset:{ks*1024}")
    for c in range(4):
        a(f"s_waitcnt vmcnt({3 + 32 - 8*(c+1)})")
        a("s_barrier")
        rd(8*c); rd(8*c+1); rd(8*c+2)
        for k in range(8):
            ks = 8*c + k
            if k + 3 < 8:
                rd(ks + 3)
                a("s_waitcnt lgkmcnt(6)")
            else:
                a(f"s_waitcnt lgkmcnt({2*(7-k)})")
            f = FR[ks % 4]
            cc = "0" if ks == 0 else v(facc, 16)
            a(f"v_mfma_f32_32x32x16_bf16 {v(facc,16)}, {v(f,4)}, {v(f+4,4)}, {cc}")
    if STAMP: a("s_memtime s[76:77]")
    a("s_waitcnt vmcnt(0)")
    a("s_nop 15")
    a("s_nop 7")
    for i in range(8):
        a(f"v_cvt_pk_bf16_f32 v{Pf+i}, v{facc+2*i}, v{facc+2*i+1}")
    for i in range(8):
        a(f"v_lshlrev_b32 v{facc+2*i}, 16, v{Pf+i}")
        a(f"v_and_b32 v{facc+2*i+1}, 0xffff0000, v{Pf+i}")
    for i in range(16):
        a(f"v_mul_f32 v{facc+i}, v{facc+i}, v{vG}")
    for i in range(8):
        a(f"v_cvt_pk_bf16_f32 v{Pf+i}, v{facc+2*i}, v{facc+2*i+1}")
    a("s_nop 1")
    a(f"v_permlane32_swap_b32 v{Pf+0}, v{Pf+2}")
    a(f"v_permlane32_swap_b32 v{Pf+1}, v{Pf+3}")
    a(f"v_permlane32_swap_b32 v{Pf+4}, v{Pf+6}")
    a(f"v_permlane32_swap_b32 v{Pf+5}, v{Pf+7}")
    a("s_nop 1")
    for i in range(8):
        a(f"v_lshlrev_b32 v{facc+2*i}, 16, v{Pf+i}")
        a(f"v_and_b32 v{facc+2*i+1}, 0xffff0000, v{Pf+i}")
        a(f"v_lshlrev_b32 v{T+2*i}, 16, v{BB+i}")
        a(f"v_and_b32 v{T+2*i+1}, 0xffff0000, v{BB+i}")
    for i in range(16):
        a(f"v_add_f32 v{facc+i}, v{facc+i}, v{T+i}")
    for i in range(8):
        a(f"v_cvt_pk_bf16_f32 v{Pf+i}, v{facc+2*i}, v{facc+2*i+1}")
    a(f"buffer_store_dwordx4 {v(Pf,4)}, v{vS}, s[12:15], s16 offen")
    a(f"buffer_store_dwordx4 {v(Pf+4,4)}, v{vS}, s[12:15], s16 offen offset:32")
    if STAMP:
        a("s_waitcnt vmcnt(0)")
        a("s_memtime s[78:79]")
        a("s_memrealtime s[92:93]")
        a("s_waitcnt lgkmcnt(0)")
        a("s_sub_u32 s74, s74, s72")
        a("s_sub_u32 s76, s76, s72")
        a("s_sub_u32 s78, s78, s72")
        a("v_mov_b32 v4, s90")
        a("v_mov_b32 v5, s92")
        a("v_mov_b32 v6, s74")
        a("v_mov_b32 v7, s76")
        a("v_mov_b32 v8, s78")
        a("s_lshl_b32 s87, s2, 2")
        a("s_add_u32 s87, s87, s5")
        a("s_lshl_b32 s87, s87, 5")
        a("s_add_u32 s87, s87, 0x1500000")
        a("v_mov_b32 v9, 0")
        a("buffer_store_dwordx4 v[4:7], v9, s[8:11], s87 offen")
        a("buffer_store_dword v8, v9, s[8:11], s87 offen offset:16")
    a.label("K3_END")
    a("s_endpgm")
    return a.text(), R2.next
```

```python
from asmlib import *
from layout import *
import os
STAMP = os.environ.get('STAMP') == '1'
PRIO_SWITCH = int(os.environ.get('PRIO_SWITCH', '5'))
VARIANT = int(os.environ.get('VARIANT', '0'))
MERGE = int(os.environ.get('MERGE', '1'))
ONEROW = int(os.environ.get('ONEROW', '0'))
KMAX_ADDR = 131072 + 8192
K2_LDS = KMAX_ADDR + 256

def direct_gemm(a, vA, vB, nsteps, D, base, acc, srd_="s[8:11]", nv_slots=None, flagB=""):
    def reg(sl, off):
        if nv_slots is not None and sl >= nv_slots:
            b = 8 * (sl - nv_slots) + off
            return f"a[{b}:{b+3}]"
        return v(base + 8 * sl + off, 4)
    def issue(j):
        sl = j % D
        if j % 4 == 0:
            a(f"s_mov_b32 s40, {(j//4)*4096}")
        a(f"buffer_load_dwordx4 {reg(sl,0)}, v{vA}, {srd_}, s40 offen offset:{(j%4)*1024}")
        a(f"buffer_load_dwordx4 {reg(sl,4)}, v{vB}, {srd_}, s40 offen offset:{(j%4)*1024}{flagB}")
    for j in range(min(D, nsteps)):
        issue(j)
    for j in range(nsteps):
        out = min(D, nsteps - j) - 1
        a(f"s_waitcnt vmcnt({min(63, 2*out)})")
        sl = j % D
        c = "0" if j == 0 else v(acc, 16)
        a(f"v_mfma_f32_32x32x16_bf16 {v(acc,16)}, {reg(sl,0)}, {reg(sl,4)}, {c}")
        if j + D < nsteps:
            issue(j + D)

def stamp_end(a):
    if not STAMP: return
    a("s_waitcnt vmcnt(0)")
    a("s_memtime s[78:79]")
    a("s_memrealtime s[92:93]")
    a("s_waitcnt lgkmcnt(0)")
    a("v_mov_b32 v4, s90")
    a("v_mov_b32 v5, s92")
    a("s_lshl_b32 s87, s2, 4")
    a("s_add_u32 s87, s87, s88")
    a("s_lshl_b32 s87, s87, 3")
    a("s_add_u32 s87, s87, 0x1400000")
    a("v_mov_b32 v8, 0")
    a("buffer_store_dwordx2 v[4:5], v8, s[8:11], s87 offen")
    a("s_sub_u32 s74, s74, s72")
    a("s_sub_u32 s76, s76, s72")
    a("s_sub_u32 s78, s78, s72")
    a("v_mov_b32 v4, s74")
    a("v_mov_b32 v5, s76")
    a("v_mov_b32 v6, s78")
    a("v_mov_b32 v7, 0")
    a("s_lshl_b32 s87, s2, 4")
    a("s_add_u32 s87, s87, s88")
    a("s_lshl_b32 s87, s87, 4")
    a("s_add_u32 s87, s87, 0x1600000")
    a("buffer_store_dwordx4 v[4:7], v8, s[8:11], s87 offen")

def gen_k2():
    a = Asm()
    R = RegAlloc(4)
    vQ = R.alloc(4, 4)
    vKa = R.alloc(); vVa = R.alloc(); vVinc = R.alloc()
    vKa0 = R.alloc(); vVa0 = R.alloc()
    vt = [R.alloc() for _ in range(6)]
    mA = R.alloc(); mB = R.alloc()
    KF = [R.alloc(4, 4) for _ in range(4)]
    S = [R.alloc(16, 4) for _ in range(4)]
    C = R.alloc(16, 4)
    P = [R.alloc(8, 4) for _ in range(2)]
    VF = [R.alloc(8, 4) for _ in range(2)]
    O = R.alloc(16, 4)
    nv_att = R.next

    a("s_cmp_ge_u32 s2, 256")
    a("s_cbranch_scc1 K2_END")
    if STAMP:
        a("s_memtime s[72:73]")
        a("s_memrealtime s[90:91]")
        a("s_load_dwordx2 s[84:85], s[0:1], 72")
    a("s_load_dwordx2 s[52:53], s[0:1], 80")
    a("s_load_dwordx4 s[56:59], s[0:1], 64")
    a("v_lshrrev_b32 v1, 6, v0")
    a("s_nop 0")
    a("v_readfirstlane_b32 s5, v1")
    a("v_and_b32 v1, 63, v0")
    a("v_and_b32 v2, 31, v0")
    a("v_bfe_u32 v3, v0, 5, 1")
    a("s_waitcnt lgkmcnt(0)")
    srd(a, 8, 52, WS_SIZE)
    srd(a, 44, 56, 2097152)
    if STAMP: a("s_mov_b32 s88, s5")
    a("s_cmp_ge_u32 s5, 8")
    a("s_cbranch_scc1 K2_FFN")
    a("s_and_b32 s3, s2, 7")
    a("s_lshl_b32 s3, s3, 2")
    a("s_lshr_b32 s4, s2, 6")
    a("s_add_u32 s3, s3, s4")
    a("s_lshr_b32 s4, s2, 3")
    a("s_and_b32 s4, s4, 7")
    a("s_lshl_b32 s6, s3, 16")
    t = vt
    a(f"v_lshlrev_b32 v{t[0]}, 4, v0")
    stgK = S[0]; stgV = S[2]
    for i in range(8):
        a(f"s_add_u32 s7, s6, {WS_K + i*8192}")
        a(f"buffer_load_dwordx4 {v(stgK+4*i,4)}, v{t[0]}, s[8:11], s7 offen")
    a("s_lshl_b32 s12, s4, 8")
    a("s_lshl_b32 s13, s5, 5")
    a("s_add_u32 s12, s12, s13")
    a(f"v_add_u32 v{t[1]}, s12, v2")
    a(f"v_lshlrev_b32 v{t[2]}, 5, v{t[1]}")
    a(f"v_lshl_add_u32 v{t[2]}, v3, 4, v{t[2]}")
    a(f"s_add_u32 s7, s6, {WS_Q}")
    a(f"buffer_load_dwordx4 {v(vQ,4)}, v{t[2]}, s[8:11], s7 offen")
    a(f"v_lshlrev_b32 v{t[5]}, 4, v1")
    a("s_lshl_b32 s13, s5, 10")
    for i in range(8):
        a(f"s_add_u32 m0, s13, {65536 + i*8192}")
        a(f"s_add_u32 s7, s6, {WS_V + i*8192}")
        a("s_add_u32 s7, s7, s13")
        a(f"buffer_load_dwordx4 v{t[5]}, s[8:11], s7 offen lds")
    if ONEROW:
        a(f"v_and_b32 v{C+1}, 1, v0")
        a(f"v_cmp_eq_u32 vcc, 0, v{C+1}")
        a(f"v_mov_b32 v{C+2}, 0x3f80")
        a(f"v_mov_b32 v{C+1}, 0")
        a(f"v_mov_b32 v{C+3}, 0")
        a(f"v_cndmask_b32 v{C}, v{C+1}, v{C+2}, vcc")
        a(f"v_mov_b32 v{C+2}, 0")
    else:
        for i in range(4):
            a(f"v_mov_b32 v{C+i}, 0x3f803f80")
    a(f"v_add_u32 v{t[3]}, 131072, v{t[0]}")
    a(f"ds_write_b128 v{t[3]}, {v(C,4)}")
    a("s_lshl_b32 s13, s5, 2")
    a(f"s_add_u32 s13, s13, {KMAX_ADDR}")
    a(f"v_mov_b32 v{t[4]}, s13")
    if MERGE:
        a(f"v_mov_b32 v{t[5]}, 0")
        a(f"v_mov_b32 v{t[3]}, {KMAX_ADDR}")
        a(f"ds_write_b32 v{t[3]}, v{t[5]} offset:64")
    a("s_waitcnt vmcnt(9)")
    for i in range(8):
        a(f"ds_write_b128 v{t[0]}, {v(stgK+4*i,4)} offset:{i*8192}")
    N = P[0]
    N2 = P[1]
    for i in range(8):
        a(f"v_dot2_f32_bf16 v{N+i}, v{stgK+4*i}, v{stgK+4*i}, 0")
    for r in range(1, 4):
        for i in range(8):
            a(f"v_dot2_f32_bf16 v{N+i}, v{stgK+4*i+r}, v{stgK+4*i+r}, v{N+i}")
    a("s_nop 3")
    for i in range(8):
        a(f"v_add_f32_dpp v{N2+i}, v{N+i}, v{N+i} quad_perm:[1,0,3,2] row_mask:0xf bank_mask:0xf")
    a(f"v_max3_f32 v{N}, v{N2}, v{N2+1}, v{N2+2}")
    a(f"v_max3_f32 v{N+1}, v{N2+3}, v{N2+4}, v{N2+5}")
    a(f"v_max3_f32 v{N}, v{N}, v{N2+6}, v{N2+7}")
    a(f"v_max_f32 v{N}, v{N}, v{N+1}")
    for ctl in ("row_shr:1 row_mask:0xf", "row_shr:2 row_mask:0xf", "row_shr:4 row_mask:0xf", "row_shr:8 row_mask:0xf",
                "row_bcast:15 row_mask:0xa", "row_bcast:31 row_mask:0xc"):
        a("s_nop 1")
        a(f"v_max_f32_dpp v{N}, v{N}, v{N} {ctl} bank_mask:0xf")
    a("v_cmp_eq_u32 vcc, 63, v1")
    a("s_and_saveexec_b64 s[14:15], vcc")
    a(f"ds_write_b32 v{t[4]}, v{N}")
    a("s_mov_b64 exec, s[14:15]")
    a(f"v_lshlrev_b32 v{vKa0}, 5, v2")
    a(f"v_lshl_add_u32 v{vKa0}, v3, 4, v{vKa0}")
    a(f"v_bfe_u32 v{t[1]}, v0, 2, 2")
    a(f"v_lshl_add_u32 v{t[1]}, v3, 2, v{t[1]}")
    a(f"v_lshlrev_b32 v{t[1]}, 5, v{t[1]}")
    a(f"v_and_b32 v{t[2]}, 3, v0")
    a(f"v_lshl_add_u32 v{t[1]}, v{t[2]}, 3, v{t[1]}")
    a(f"v_add_u32 v{t[1]}, 65536, v{t[1]}")
    a(f"v_and_b32 v{t[2]}, 15, v0")
    a(f"v_lshlrev_b32 v{t[2]}, 3, v{t[2]}")
    a(f"v_add_u32 v{t[2]}, 131072, v{t[2]}")
    a(f"v_bfe_u32 v{t[3]}, v0, 4, 1")
    a(f"v_cmp_eq_u32 vcc, 1, v{t[3]}")
    a(f"v_mov_b32 v{mA}, 4096")
    a(f"v_mov_b32 v{mB}, 0")
    a("s_nop 1")
    a(f"v_cndmask_b32 v{vVa0}, v{t[1]}, v{t[2]}, vcc")
    a(f"v_cndmask_b32 v{vVinc}, v{mA}, v{mB}, vcc")
    a("s_waitcnt vmcnt(8)")
    a(f"v_dot2_f32_bf16 v{mA}, v{vQ}, v{vQ}, 0")
    for r in range(1, 4):
        a(f"v_dot2_f32_bf16 v{mA}, v{vQ+r}, v{vQ+r}, v{mA}")
    a("s_nop 3")
    a(f"v_mov_b32 v{mB}, v{mA}")
    a("s_nop 1")
    a(f"v_permlane32_swap_b32 v{mA}, v{mB}")
    a("s_nop 1")
    a(f"v_add_f32 v{mA}, v{mA}, v{mB}")
    a("s_waitcnt vmcnt(0) lgkmcnt(0)")
    a("s_barrier")
    if STAMP: a("s_memtime s[74:75]")
    a(f"v_mov_b32 v{t[4]}, {KMAX_ADDR}")
    a(f"ds_read_b128 {v(P[0],4)}, v{t[4]}")
    a(f"ds_read_b128 {v(P[0]+4,4)}, v{t[4]} offset:16")
    a("s_cmp_lt_u32 s5, 4")
    a("s_cbranch_scc1 K2_NOPRIO")
    a("s_setprio 1")
    a.label("K2_NOPRIO")
    a("s_waitcnt lgkmcnt(0)")
    a(f"v_max3_f32 v{mB}, v{P[0]}, v{P[0]+1}, v{P[0]+2}")
    a(f"v_max3_f32 v{mB}, v{mB}, v{P[0]+3}, v{P[0]+4}")
    a(f"v_max3_f32 v{mB}, v{mB}, v{P[0]+5}, v{P[0]+6}")
    a(f"v_max_f32 v{mB}, v{mB}, v{P[0]+7}")
    a(f"v_mul_f32 v{mA}, v{mA}, v{mB}")
    a(f"v_sqrt_f32 v{mA}, v{mA}")
    a("s_nop 0")
    a(f"v_mul_f32 v{mA}, 0xbf802000, v{mA}")
    for i in range(16):
        a(f"v_mov_b32 v{C+i}, v{mA}")
    a("s_mov_b32 s17, 0")
    if STAMP: a("s_memtime s[76:77]")
    def kread(slot, tile_off):
        return f"ds_read_b128 {v(KF[slot],4)}, v{vKa} offset:{tile_off*1024}"
    def vreads(slot, tile_off):
        return [f"ds_read_b64_tr_b16 {v(VF[slot]+2*q,2)}, v{vVa} offset:{tile_off*1024 + (q//2)*512 + (q%2)*256}" for q in range(4)]
    a.label("K2_P2_ENTRY")
    a(f"v_mov_b32 v{vKa}, v{vKa0}")
    a(f"v_mov_b32 v{vVa}, v{vVa0}")
    for T in range(3):
        a(kread(T, T))
    for o in vreads(0, 0): a(o)
    a("s_waitcnt lgkmcnt(5)")
    a(f"v_mfma_f32_32x32x16_bf16 {v(S[0],16)}, {v(KF[0],4)}, {v(vQ,4)}, {v(C,16)}")
    a(f"v_mfma_f32_32x32x16_bf16 {v(S[1],16)}, {v(KF[1],4)}, {v(vQ,4)}, {v(C,16)}")
    for i in range(16):
        a(f"v_mov_b32 v{O+i}, 0")
    a("s_mov_b32 s16, 16")
    a.label("K2_P2")
    for u in range(4):
        if VARIANT == 0:
            a(kread((u + 3) % 4, u + 3))
            for o in vreads((u + 1) % 2, u + 1): a(o)
            a("s_waitcnt lgkmcnt(5)")
            a(f"v_mfma_f32_32x32x16_bf16 {v(S[(u+2)%4],16)}, {v(KF[(u+2)%4],4)}, {v(vQ,4)}, {v(C,16)}")
            for i in range(16):
                a(f"v_exp_f32 v{S[u]+i}, v{S[u]+i}")
            for i in range(8):
                a(f"v_cvt_pk_bf16_f32 v{P[u%2]+i}, v{S[u]+2*i}, v{S[u]+2*i+1}")
            a("s_nop 1")
            a(f"v_mfma_f32_32x32x16_bf16 {v(O,16)}, {v(VF[u%2],4)}, {v(P[u%2],4)}, {v(O,16)}")
            a(f"v_mfma_f32_32x32x16_bf16 {v(O,16)}, {v(VF[u%2]+4,4)}, {v(P[u%2]+4,4)}, {v(O,16)}")
        elif VARIANT == 1:
            for i in range(16):
                a(f"v_exp_f32 v{S[u]+i}, v{S[u]+i}")
            for i in range(8):
                a(f"v_cvt_pk_bf16_f32 v{P[u%2]+i}, v{S[u]+2*i}, v{S[u]+2*i+1}")
            a(kread((u + 3) % 4, u + 3))
            for o in vreads((u + 1) % 2, u + 1): a(o)
            a("s_waitcnt lgkmcnt(5)")
            a(f"v_mfma_f32_32x32x16_bf16 {v(S[(u+2)%4],16)}, {v(KF[(u+2)%4],4)}, {v(vQ,4)}, {v(C,16)}")
            a(f"v_mfma_f32_32x32x16_bf16 {v(O,16)}, {v(VF[u%2],4)}, {v(P[u%2],4)}, {v(O,16)}")
            a(f"v_mfma_f32_32x32x16_bf16 {v(O,16)}, {v(VF[u%2]+4,4)}, {v(P[u%2]+4,4)}, {v(O,16)}")
        elif VARIANT == 2:
            a(kread((u + 3) % 4, u + 3))
            for o in vreads((u + 1) % 2, u + 1): a(o)
            a("s_waitcnt lgkmcnt(5)")
            a(f"v_mfma_f32_32x32x16_bf16 {v(S[(u+2)%4],16)}, {v(KF[(u+2)%4],4)}, {v(vQ,4)}, {v(C,16)}")
            for i in range(8):
                a(f"v_exp_f32 v{S[u]+i}, v{S[u]+i}")
            for i in range(4):
                a(f"v_cvt_pk_bf16_f32 v{P[u%2]+i}, v{S[u]+2*i}, v{S[u]+2*i+1}")
            for i in range(8, 10):
                a(f"v_exp_f32 v{S[u]+i}, v{S[u]+i}")
            a(f"v_mfma_f32_32x32x16_bf16 {v(O,16)}, {v(VF[u%2],4)}, {v(P[u%2],4)}, {v(O,16)}")
            for i in range(10, 16):
                a(f"v_exp_f32 v{S[u]+i}, v{S[u]+i}")
            for i in range(4, 8):
                a(f"v_cvt_pk_bf16_f32 v{P[u%2]+i}, v{S[u]+2*i}, v{S[u]+2*i+1}")
            a("s_nop 1")
            a(f"v_mfma_f32_32x32x16_bf16 {v(O,16)}, {v(VF[u%2]+4,4)}, {v(P[u%2]+4,4)}, {v(O,16)}")
    a(f"v_add_u32 v{vKa}, 4096, v{vKa}")
    a(f"v_add_u32 v{vVa}, v{vVinc}, v{vVa}")
    a("s_sub_u32 s16, s16, 1")
    a(f"s_cmp_lg_u32 s16, {PRIO_SWITCH}")
    a("s_cbranch_scc1 K2_P2B")
    a("s_setprio 0")
    a.label("K2_P2B")
    a("s_cmp_lg_u32 s16, 0")
    a("s_cbranch_scc1 K2_P2")
    a("s_waitcnt lgkmcnt(0)")
    a("s_nop 15")
    a("s_nop 7")
    if ONEROW:
        a(f"v_mov_b32 v{t[1]}, v{O+8}")
        a("s_nop 1")
        a(f"v_permlane32_swap_b32 v{O+8}, v{t[1]}")
        a("s_nop 1")
    a("s_cmp_lg_u32 s17, 0")
    a("s_cbranch_scc1 K2_FIN")
    a(f"v_mov_b32 v{t[0]}, 0x12800000")
    a(f"v_cmp_nge_f32 vcc, v{O+8}, v{t[0]}")
    a("s_nop 4")
    a("s_cmp_eq_u64 vcc, 0")
    a("s_cbranch_scc1 K2_FIN")
    a("s_mov_b32 s17, 1")
    a(f"v_mov_b32 v{vKa}, v{vKa0}")
    a(f"v_mov_b32 v{mA}, 0xff800000")
    a(f"v_mov_b32 v{mB}, 0xff800000")
    for T in range(3):
        a(kread(T, T))
    a("s_waitcnt lgkmcnt(1)")
    a(f"v_mfma_f32_32x32x16_bf16 {v(S[0],16)}, {v(KF[0],4)}, {v(vQ,4)}, 0")
    a(f"v_mfma_f32_32x32x16_bf16 {v(S[1],16)}, {v(KF[1],4)}, {v(vQ,4)}, 0")
    a("s_mov_b32 s16, 16")
    a.label("K2_P1")
    for u in range(4):
        a(kread((u + 3) % 4, u + 3))
        a("s_waitcnt lgkmcnt(1)")
        a(f"v_mfma_f32_32x32x16_bf16 {v(S[(u+2)%4],16)}, {v(KF[(u+2)%4],4)}, {v(vQ,4)}, 0")
        for i in range(8):
            m = mA if i % 2 == 0 else mB
            a(f"v_max3_f32 v{m}, v{S[u]+2*i}, v{S[u]+2*i+1}, v{m}")
    a(f"v_add_u32 v{vKa}, 4096, v{vKa}")
    a("s_sub_u32 s16, s16, 1")
    a("s_cmp_lg_u32 s16, 0")
    a("s_cbranch_scc1 K2_P1")
    a(f"v_max_f32 v{mA}, v{mA}, v{mB}")
    a("s_nop 1")
    a(f"v_mov_b32 v{mB}, v{mA}")
    a("s_nop 1")
    a(f"v_permlane32_swap_b32 v{mA}, v{mB}")
    a("s_nop 1")
    a(f"v_max_f32 v{mA}, v{mA}, v{mB}")
    a("s_waitcnt lgkmcnt(0)")
    a("s_nop 15")
    for i in range(16):
        a(f"v_sub_f32 v{C+i}, 0, v{mA}")
    a("s_nop 7")
    a("s_branch K2_P2_ENTRY")
    a.label("K2_FIN")
    a(f"v_rcp_f32 v{t[0]}, v{O+8}")
    a("s_nop 1")
    for i in range(8):
        a(f"v_mul_f32 v{O+i}, v{O+i}, v{t[0]}")
    Pp = P[0]
    for i in range(4):
        a(f"v_cvt_pk_bf16_f32 v{Pp+i}, v{O+2*i}, v{O+2*i+1}")
    a(f"v_lshlrev_b32 v{t[1]}, 4, v1")
    a("s_lshr_b32 s7, s12, 5")
    a("s_lshl_b32 s7, s7, 5")
    a("s_add_u32 s7, s7, s3")
    a("s_lshl_b32 s7, s7, 10")
    a(f"s_add_u32 s7, s7, {WS_O}")
    a(f"v_permlane32_swap_b32 v{Pp+0}, v{Pp+2}")
    a(f"v_permlane32_swap_b32 v{Pp+1}, v{Pp+3}")
    a("s_nop 1")
    if not MERGE:
        a(f"buffer_store_dwordx4 {v(Pp,4)}, v{t[1]}, s[8:11], s7 offen")
    else:
        a(f"buffer_store_dwordx4 {v(Pp,4)}, v{t[1]}, s[8:11], s7 offen sc1")
        a(f"v_mov_b32 v{t[2]}, {KMAX_ADDR}")
        a(f"v_mov_b32 v{t[3]}, 1")
        a("s_waitcnt vmcnt(0)")
        a("v_cmp_eq_u32 vcc, 0, v1")
        a("s_and_saveexec_b64 s[14:15], vcc")
        a(f"ds_add_rtn_u32 v{t[4]}, v{t[2]}, v{t[3]} offset:64")
        a("s_waitcnt lgkmcnt(0)")
        a(f"v_readfirstlane_b32 s7, v{t[4]}")
        a("s_cmp_lg_u32 s7, 7")
        a("s_cbranch_scc1 K2_NOFLAG")
        a("s_lshl_b32 s7, s4, 7")
        a("s_lshl_b32 s13, s3, 2")
        a("s_add_u32 s7, s7, s13")
        a(f"s_add_u32 s7, s7, {WS_FLAG}")
        a(f"v_mov_b32 v{t[2]}, 0")
        a(f"buffer_store_dword v{t[3]}, v{t[2]}, s[8:11], s7 offen sc1")
        a.label("K2_NOFLAG")
        a("s_mov_b64 exec, s[14:15]")
    stamp_end(a)
    a("s_endpgm")

    a.label("K2_FFN")
    R2 = RegAlloc(4)
    vA = R2.alloc(); vB = R2.alloc(); vG = R2.alloc(); vS = R2.alloc(); vG2 = R2.alloc(); vL = R2.alloc()
    facc = R2.alloc(16, 4)
    Pf = R2.alloc(8, 4)
    BBr = R2.alloc(16, 4)
    D = 8; D2 = 12
    slots = R2.alloc(8 * D2, 4)
    a("s_barrier")
    if STAMP:
        a("s_memtime s[74:75]")
        a("s_memtime s[76:77]")
    a("s_sub_u32 s5, s5, 8")
    a("s_and_b32 s3, s2, 7")
    a("s_lshl_b32 s3, s3, 2")
    a("s_lshr_b32 s4, s2, 6")
    a("s_add_u32 s3, s3, s4")
    a("s_lshr_b32 s4, s2, 3")
    a("s_and_b32 s4, s4, 7")
    a("s_lshl_b32 s3, s3, 6")
    a("s_and_b32 s6, s5, 1")
    a("s_lshl_b32 s6, s6, 5")
    a("s_add_u32 s3, s3, s6")
    a("s_lshl_b32 s4, s4, 6")
    a("s_lshr_b32 s6, s5, 1")
    a("s_lshl_b32 s6, s6, 5")
    a("s_add_u32 s4, s4, s6")
    a("s_lshr_b32 s6, s4, 5")
    a(f"s_mul_i32 s6, s6, {86*1024}")
    a(f"s_add_u32 s6, s6, {WS_W2T}")
    a(f"v_lshlrev_b32 v{vA}, 4, v1")
    a(f"v_add_u32 v{vA}, s6, v{vA}")
    a(f"v_add_u32 v{vS}, s3, v2")
    a("s_lshr_b32 s6, s3, 5")
    a(f"s_mul_i32 s6, s6, {86*1024}")
    a(f"s_add_u32 s6, s6, {WS_ACT}")
    a(f"v_lshlrev_b32 v{vB}, 4, v1")
    a(f"v_add_u32 v{vB}, s6, v{vB}")
    a(f"v_lshlrev_b32 v{vG}, 2, v{vS}")
    a(f"s_mov_b32 s7, {WS_G}")
    a(f"buffer_load_dword v{vG2}, v{vG}, s[8:11], s7 offen")
    a(f"s_mov_b32 s7, {WS_OMG}")
    a(f"buffer_load_dword v{vG}, v{vG}, s[8:11], s7 offen")
    direct_gemm(a, vA, vB, 86, D, slots, facc)
    a("s_nop 15")
    a("s_nop 7")
    for i in range(8):
        a(f"v_cvt_pk_bf16_f32 v{Pf+i}, v{facc+2*i}, v{facc+2*i+1}")
    for i in range(8):
        a(f"v_lshlrev_b32 v{facc+2*i}, 16, v{Pf+i}")
        a(f"v_and_b32 v{facc+2*i+1}, 0xffff0000, v{Pf+i}")
    for i in range(16):
        a(f"v_mul_f32 v{facc+i}, v{facc+i}, v{vG}")
    for i in range(8):
        a(f"v_cvt_pk_bf16_f32 v{Pf+i}, v{facc+2*i}, v{facc+2*i+1}")
    if not MERGE:
        a(f"v_lshlrev_b32 v{vS}, 10, v{vS}")
        a(f"v_lshl_add_u32 v{vS}, v3, 4, v{vS}")
        a("s_lshl_b32 s7, s4, 1")
        a(f"s_add_u32 s7, s7, {WS_BB}")
        a(f"v_permlane32_swap_b32 v{Pf+0}, v{Pf+2}")
        a(f"v_permlane32_swap_b32 v{Pf+1}, v{Pf+3}")
        a(f"v_permlane32_swap_b32 v{Pf+4}, v{Pf+6}")
        a(f"v_permlane32_swap_b32 v{Pf+5}, v{Pf+7}")
        a("s_nop 1")
        a(f"buffer_store_dwordx4 {v(Pf,4)}, v{vS}, s[8:11], s7 offen")
        a(f"buffer_store_dwordx4 {v(Pf+4,4)}, v{vS}, s[8:11], s7 offen offset:32")
    else:
        for i in range(8):
            a(f"v_lshlrev_b32 v{BBr+2*i}, 16, v{Pf+i}")
            a(f"v_and_b32 v{BBr+2*i+1}, 0xffff0000, v{Pf+i}")
        a("s_lshr_b32 s6, s3, 8")
        a("s_lshl_b32 s6, s6, 7")
        a(f"s_add_u32 s6, s6, {WS_FLAG}")
        a(f"v_lshlrev_b32 v{vA}, 2, v2")
        a("s_barrier")
        a(f"v_lshlrev_b32 v{vL}, 4, v1")
        a("s_lshr_b32 s20, s5, 1")
        a("s_and_b32 s21, s5, 1")
        a("s_lshr_b32 s22, s4, 6")
        a("s_lshl_b32 s22, s22, 1")
        a("s_add_u32 s22, s22, s20")
        a("s_lshl_b32 s22, s22, 15")
        a("s_lshl_b32 s23, s21, 14")
        a("s_add_u32 s22, s22, s23")
        a(f"s_add_u32 s22, s22, {WS_WOT}")
        a("s_lshl_b32 s24, s20, 15")
        a("s_add_u32 s24, s24, s23")
        for ks in range(16):
            a(f"s_add_u32 m0, s24, {ks*1024}")
            a(f"s_add_u32 s25, s22, {ks*1024}")
            a(f"buffer_load_dwordx4 v{vL}, s[8:11], s25 offen lds")
        a("s_lshr_b32 s22, s3, 6")
        a("s_lshl_b32 s22, s22, 1")
        a("s_add_u32 s22, s22, s20")
        a("s_lshl_b32 s22, s22, 15")
        a("s_add_u32 s22, s22, s23")
        a(f"s_add_u32 s22, s22, {WS_O}")
        a("s_add_u32 s24, s24, 65536")
        a("s_mov_b32 s26, 0x400000")
        a.label("K2_POLL")
        a(f"buffer_load_dword v{vB}, v{vA}, s[8:11], s6 offen sc1")
        a("s_waitcnt vmcnt(0)")
        a(f"v_cmp_ne_u32 vcc, 1, v{vB}")
        a("s_nop 4")
        a("s_cmp_eq_u64 vcc, 0")
        a("s_cbranch_scc1 K2_POLLDONE")
        a("s_sleep 2")
        a("s_sub_u32 s26, s26, 1")
        a("s_cmp_lg_u32 s26, 0")
        a("s_cbranch_scc1 K2_POLL")
        a.label("K2_POLLDONE")
        if STAMP: a("s_memtime s[74:75]")
        if STAMP: a("s_memtime s[76:77]")
        for ks in range(16):
            a(f"s_add_u32 m0, s24, {ks*1024}")
            a(f"s_add_u32 s25, s22, {ks*1024}")
            a(f"buffer_load_dwordx4 v{vL}, s[8:11], s25 offen lds")
        a("s_lshl_b32 s6, s20, 15")
        a(f"v_add_u32 v{vA}, s6, v{vL}")
        a("s_lshl_b32 s6, s21, 15")
        a("s_add_u32 s6, s6, 65536")
        a(f"v_add_u32 v{vB}, s6, v{vL}")
        a("s_waitcnt vmcnt(0)")
        a("s_barrier")
        FR = [slots + 8*i for i in range(4)]
        def rd(ks):
            f = FR[ks % 4]
            a(f"ds_read_b128 {v(f,4)}, v{vA} offset:{ks*1024}")
            a(f"ds_read_b128 {v(f+4,4)}, v{vB} offset:{ks*1024}")
        rd(0); rd(1); rd(2)
        for ks in range(32):
            if ks + 3 < 32:
                rd(ks + 3)
                a("s_waitcnt lgkmcnt(6)")
            else:
                a(f"s_waitcnt lgkmcnt({2*(31-ks)})")
            f = FR[ks % 4]
            cc = "0" if ks == 0 else v(facc, 16)
            a(f"v_mfma_f32_32x32x16_bf16 {v(facc,16)}, {v(f,4)}, {v(f+4,4)}, {cc}")
        a("s_nop 15")
        a("s_nop 7")
        for i in range(8):
            a(f"v_cvt_pk_bf16_f32 v{Pf+i}, v{facc+2*i}, v{facc+2*i+1}")
        for i in range(8):
            a(f"v_lshlrev_b32 v{facc+2*i}, 16, v{Pf+i}")
            a(f"v_and_b32 v{facc+2*i+1}, 0xffff0000, v{Pf+i}")
        for i in range(16):
            a(f"v_mul_f32 v{facc+i}, v{facc+i}, v{vG2}")
        for i in range(8):
            a(f"v_cvt_pk_bf16_f32 v{Pf+i}, v{facc+2*i}, v{facc+2*i+1}")
        for i in range(8):
            a(f"v_lshlrev_b32 v{facc+2*i}, 16, v{Pf+i}")
            a(f"v_and_b32 v{facc+2*i+1}, 0xffff0000, v{Pf+i}")
        for i in range(16):
            a(f"v_add_f32 v{facc+i}, v{facc+i}, v{BBr+i}")
        for i in range(8):
            a(f"v_cvt_pk_bf16_f32 v{Pf+i}, v{facc+2*i}, v{facc+2*i+1}")
        a(f"v_lshlrev_b32 v{vS}, 10, v{vS}")
        a(f"v_lshl_add_u32 v{vS}, v3, 4, v{vS}")
        a("s_lshl_b32 s7, s4, 1")
        a(f"v_permlane32_swap_b32 v{Pf+0}, v{Pf+2}")
        a(f"v_permlane32_swap_b32 v{Pf+1}, v{Pf+3}")
        a(f"v_permlane32_swap_b32 v{Pf+4}, v{Pf+6}")
        a(f"v_permlane32_swap_b32 v{Pf+5}, v{Pf+7}")
        a("s_nop 1")
        a(f"buffer_store_dwordx4 {v(Pf,4)}, v{vS}, s[44:47], s7 offen nt")
        a(f"buffer_store_dwordx4 {v(Pf+4,4)}, v{vS}, s[44:47], s7 offen offset:32 nt")
    stamp_end(a)
    a.label("K2_END")
    a("s_endpgm")
    return a.text(), max(nv_att, R2.next)

K3_LDS = 131072
def gen_k3():
    a = Asm()
    R2 = RegAlloc(4)
    vL = R2.alloc(); vRA = R2.alloc(); vRB = R2.alloc(); vG = R2.alloc(); vS = R2.alloc()
    facc = R2.alloc(16, 4)
    Pf = R2.alloc(8, 4)
    BB = R2.alloc(8, 4)
    T = R2.alloc(16, 4)
    FR = [R2.alloc(8, 4) for _ in range(4)]
    a("s_cmp_ge_u32 s2, 256")
    a("s_cbranch_scc1 K3_END")
    if STAMP:
        a("s_memtime s[72:73]")
        a("s_memrealtime s[90:91]")
    a("s_load_dwordx2 s[52:53], s[0:1], 80")
    a("s_load_dwordx2 s[54:55], s[0:1], 64")
    a("v_lshrrev_b32 v1, 6, v0")
    a("s_nop 0")
    a("v_readfirstlane_b32 s5, v1")
    a("v_and_b32 v1, 63, v0")
    a("v_and_b32 v2, 31, v0")
    a("v_bfe_u32 v3, v0, 5, 1")
    a(f"v_lshlrev_b32 v{vL}, 4, v1")
    a("s_and_b32 s3, s2, 7")
    a("s_lshl_b32 s3, s3, 2")
    a("s_lshr_b32 s4, s2, 6")
    a("s_add_u32 s3, s3, s4")
    a("s_lshr_b32 s4, s2, 3")
    a("s_and_b32 s4, s4, 7")
    a("s_lshl_b32 s6, s4, 1")
    a("s_add_u32 s6, s6, s5")
    a("s_lshl_b32 s6, s6, 15")
    a(f"s_add_u32 s6, s6, {WS_WOT}")
    a("s_lshl_b32 s7, s3, 1")
    a("s_add_u32 s7, s7, s5")
    a("s_sub_u32 s7, s7, 2")
    a("s_lshl_b32 s7, s7, 15")
    a(f"s_add_u32 s7, s7, {WS_O}")
    a("s_cmp_lt_u32 s5, 2")
    a("s_cselect_b32 s18, s6, s7")
    a("s_lshl_b32 s19, s5, 15")
    a("s_waitcnt lgkmcnt(0)")
    srd(a, 8, 52, WS_SIZE)
    srd(a, 12, 54, 2097152)
    for ks in range(32):
        a(f"s_add_u32 m0, s19, {ks*1024}")
        a(f"s_add_u32 s20, s18, {ks*1024}")
        a(f"buffer_load_dwordx4 v{vL}, s[8:11], s20 offen lds")
    a("s_lshl_b32 s3, s3, 6")
    a("s_and_b32 s6, s5, 1")
    a("s_lshl_b32 s6, s6, 5")
    a("s_add_u32 s3, s3, s6")
    a("s_lshl_b32 s4, s4, 6")
    a("s_lshr_b32 s6, s5, 1")
    a("s_lshl_b32 s6, s6, 5")
    a("s_add_u32 s4, s4, s6")
    a(f"v_add_u32 v{vS}, s3, v2")
    a(f"v_lshlrev_b32 v{vG}, 2, v{vS}")
    a(f"s_mov_b32 s7, {WS_G}")
    a(f"buffer_load_dword v{vG}, v{vG}, s[8:11], s7 offen")
    a(f"v_lshlrev_b32 v{vS}, 10, v{vS}")
    a(f"v_lshl_add_u32 v{vS}, v3, 4, v{vS}")
    a("s_lshl_b32 s16, s4, 1")
    a(f"s_add_u32 s17, s16, {WS_BB}")
    a(f"buffer_load_dwordx4 {v(BB,4)}, v{vS}, s[8:11], s17 offen")
    a(f"buffer_load_dwordx4 {v(BB+4,4)}, v{vS}, s[8:11], s17 offen offset:32")
    a("s_lshr_b32 s6, s5, 1")
    a("s_lshl_b32 s6, s6, 15")
    a(f"v_add_u32 v{vRA}, s6, v{vL}")
    a("s_and_b32 s6, s5, 1")
    a("s_add_u32 s6, s6, 2")
    a("s_lshl_b32 s6, s6, 15")
    a(f"v_add_u32 v{vRB}, s6, v{vL}")
    if STAMP: a("s_memtime s[74:75]")
    def rd(ks):
        f = FR[ks % 4]
        a(f"ds_read_b128 {v(f,4)}, v{vRA} offset:{ks*1024}")
        a(f"ds_read_b128 {v(f+4,4)}, v{vRB} offset:{ks*1024}")
    for c in range(4):
        a(f"s_waitcnt vmcnt({3 + 32 - 8*(c+1)})")
        a("s_barrier")
        rd(8*c); rd(8*c+1); rd(8*c+2)
        for k in range(8):
            ks = 8*c + k
            if k + 3 < 8:
                rd(ks + 3)
                a("s_waitcnt lgkmcnt(6)")
            else:
                a(f"s_waitcnt lgkmcnt({2*(7-k)})")
            f = FR[ks % 4]
            cc = "0" if ks == 0 else v(facc, 16)
            a(f"v_mfma_f32_32x32x16_bf16 {v(facc,16)}, {v(f,4)}, {v(f+4,4)}, {cc}")
    if STAMP: a("s_memtime s[76:77]")
    a("s_waitcnt vmcnt(0)")
    a("s_nop 15")
    a("s_nop 7")
    for i in range(8):
        a(f"v_cvt_pk_bf16_f32 v{Pf+i}, v{facc+2*i}, v{facc+2*i+1}")
    for i in range(8):
        a(f"v_lshlrev_b32 v{facc+2*i}, 16, v{Pf+i}")
        a(f"v_and_b32 v{facc+2*i+1}, 0xffff0000, v{Pf+i}")
    for i in range(16):
        a(f"v_mul_f32 v{facc+i}, v{facc+i}, v{vG}")
    for i in range(8):
        a(f"v_cvt_pk_bf16_f32 v{Pf+i}, v{facc+2*i}, v{facc+2*i+1}")
    a("s_nop 1")
    a(f"v_permlane32_swap_b32 v{Pf+0}, v{Pf+2}")
    a(f"v_permlane32_swap_b32 v{Pf+1}, v{Pf+3}")
    a(f"v_permlane32_swap_b32 v{Pf+4}, v{Pf+6}")
    a(f"v_permlane32_swap_b32 v{Pf+5}, v{Pf+7}")
    a("s_nop 1")
    for i in range(8):
        a(f"v_lshlrev_b32 v{facc+2*i}, 16, v{Pf+i}")
        a(f"v_and_b32 v{facc+2*i+1}, 0xffff0000, v{Pf+i}")
        a(f"v_lshlrev_b32 v{T+2*i}, 16, v{BB+i}")
        a(f"v_and_b32 v{T+2*i+1}, 0xffff0000, v{BB+i}")
    for i in range(16):
        a(f"v_add_f32 v{facc+i}, v{facc+i}, v{T+i}")
    for i in range(8):
        a(f"v_cvt_pk_bf16_f32 v{Pf+i}, v{facc+2*i}, v{facc+2*i+1}")
    a(f"buffer_store_dwordx4 {v(Pf,4)}, v{vS}, s[12:15], s16 offen")
    a(f"buffer_store_dwordx4 {v(Pf+4,4)}, v{vS}, s[12:15], s16 offen offset:32")
    if STAMP:
        a("s_waitcnt vmcnt(0)")
        a("s_memtime s[78:79]")
        a("s_memrealtime s[92:93]")
        a("s_waitcnt lgkmcnt(0)")
        a("s_sub_u32 s74, s74, s72")
        a("s_sub_u32 s76, s76, s72")
        a("s_sub_u32 s78, s78, s72")
        a("v_mov_b32 v4, s90")
        a("v_mov_b32 v5, s92")
        a("v_mov_b32 v6, s74")
        a("v_mov_b32 v7, s76")
        a("v_mov_b32 v8, s78")
        a("s_lshl_b32 s87, s2, 2")
        a("s_add_u32 s87, s87, s5")
        a("s_lshl_b32 s87, s87, 5")
        a("s_add_u32 s87, s87, 0x1500000")
        a("v_mov_b32 v9, 0")
        a("buffer_store_dwordx4 v[4:7], v9, s[8:11], s87 offen")
        a("buffer_store_dword v8, v9, s[8:11], s87 offen offset:16")
    a.label("K3_END")
    a("s_endpgm")
    return a.text(), R2.next
```

```python
from asmlib import *
from layout import *
import struct, os
STAMP = os.environ.get('STAMP') == '1'

XB = 16384
WB = 12288
NBUF = 3
WQ0 = NBUF * XB
WF0 = WQ0 + NBUF * WB
K1_LDS = WF0 + NBUF * WB
WSTR = 192
K1_THREADS = 768
QSCALE = 0.25 * 1.4426950408889634

def f2u(f):
    return struct.unpack("<I", struct.pack("<f", f))[0]

def gen_k1():
    a = Asm()
    R = RegAlloc(4)
    vXg = R.alloc(2)
    vWq = R.alloc(); vWf = R.alloc()
    vXr = R.alloc(4)
    vWrQ = R.alloc(); vWrF = R.alloc()
    vTok = R.alloc()
    vSideA = R.alloc(); vSideB = R.alloc(); vBias = R.alloc()
    vt = [R.alloc() for _ in range(6)]
    side = R.alloc(20, 4)
    biasR = R.alloc(8, 4)
    frag = [R.alloc(12, 4), R.alloc(12, 4)]
    ACC = R.alloc(32, 4)
    tmp = R.alloc(56, 4)
    nvgpr = R.next
    sideT = side; sideX = side + 8; sideW = side + 16

    a("s_cmp_ge_u32 s2, 256")
    a("s_cbranch_scc1 K1_END2")
    if STAMP:
        a("s_memtime s[72:73]")
        a("s_load_dwordx2 s[84:85], s[0:1], 72")
    a("s_load_dwordx16 s[36:51], s[0:1], 0")
    a("s_load_dwordx2 s[52:53], s[0:1], 80")
    a("s_and_b32 s3, s2, 15")
    a("s_lshr_b32 s4, s2, 4")
    a("v_lshrrev_b32 v1, 6, v0")
    a("s_nop 0")
    a("v_readfirstlane_b32 s5, v1")
    a("v_and_b32 v1, 63, v0")
    a("v_and_b32 v2, 31, v0")
    a("v_bfe_u32 v3, v0, 5, 1")
    a("s_and_b32 s6, s5, 3")
    a("s_lshr_b32 s7, s5, 2")
    t = vt
    a(f"v_lshrrev_b32 v{t[0]}, 3, v1")
    a(f"v_and_b32 v{t[1]}, 7, v1")
    a(f"v_lshrrev_b32 v{t[2]}, 1, v{t[0]}")
    a("s_lshl_b32 s60, s3, 7")
    a("s_lshl_b32 s61, s5, 3")
    a("s_add_u32 s60, s60, s61")
    a(f"v_add_u32 v{t[3]}, s60, v{t[0]}")
    a(f"v_lshlrev_b32 v{t[3]}, 10, v{t[3]}")
    a("s_and_b32 s61, s5, 1")
    a("s_lshl_b32 s61, s61, 2")
    a(f"v_xor_b32 v{t[4]}, s61, v{t[2]}")
    a(f"v_xor_b32 v{t[4]}, v{t[4]}, v{t[1]}")
    a(f"v_lshl_add_u32 v{vXg}, v{t[4]}, 4, v{t[3]}")
    a(f"v_add_u32 v{vXg+1}, {96*1024}, v{vXg}")
    a("s_lshl_b32 s60, s5, 6")
    a("s_mul_i32 s61, s4, 192")
    a(f"v_add_u32 v{t[0]}, s60, v1")
    a(f"v_mul_u32_u24 v{t[1]}, 43691, v{t[0]}")
    a(f"v_lshrrev_b32 v{t[1]}, 19, v{t[1]}")
    a(f"v_mul_u32_u24 v{t[2]}, 12, v{t[1]}")
    a(f"v_sub_u32 v{t[2]}, v{t[0]}, v{t[2]}")
    a(f"v_lshlrev_b32 v{t[2]}, 4, v{t[2]}")
    a(f"v_add_u32 v{t[2]}, s61, v{t[2]}")
    a(f"v_mul_u32_u24 v{t[3]}, 3072, v{t[1]}")
    a(f"v_add_u32 v{vWq}, v{t[3]}, v{t[2]}")
    a(f"v_mul_u32_u24 v{t[3]}, 2752, v{t[1]}")
    a(f"v_add_u32 v{vWf}, v{t[3]}, v{t[2]}")
    a("s_lshl_b32 s67, s5, 10")
    a("s_waitcnt lgkmcnt(0)")
    srd(a, 8, 36, 2097152)
    srd(a, 12, 38, 1572864)
    srd(a, 16, 44, 1409024)

    def issue_loads(st):
        b = st % NBUF
        lab = a.newlabel("K1_NOX2")
        a(f"s_mov_b32 s60, {st*64*3072}")
        a(f"s_mov_b32 s61, {st*64*2752}")
        a(f"s_mov_b32 s62, {st*128}")
        a(f"s_add_u32 m0, s67, {b*XB}")
        a("s_nop 0")
        a(f"buffer_load_dwordx4 v{vXg}, s[8:11], s62 offen lds")
        a(f"s_add_u32 m0, s67, {WQ0 + b*WB}")
        a("s_nop 0")
        a(f"buffer_load_dwordx4 v{vWq}, s[12:15], s60 offen lds")
        a(f"s_add_u32 m0, s67, {WF0 + b*WB}")
        a("s_nop 0")
        a(f"buffer_load_dwordx4 v{vWf}, s[16:19], s61 offen lds")
        a("s_cmp_ge_u32 s5, 4")
        a(f"s_cbranch_scc1 {lab}")
        a(f"s_add_u32 m0, s67, {b*XB + 12*1024}")
        a("s_nop 0")
        a(f"buffer_load_dwordx4 v{vXg+1}, s[8:11], s62 offen lds")
        a.label(lab)
    def wait_vm(nstages_after, extra=0):
        l1 = a.newlabel("K1_W"); l2 = a.newlabel("K1_W")
        a("s_cmp_ge_u32 s5, 4")
        a(f"s_cbranch_scc1 {l1}")
        a(f"s_waitcnt vmcnt({4*nstages_after + extra})")
        a(f"s_branch {l2}")
        a.label(l1)
        a(f"s_waitcnt vmcnt({3*nstages_after + extra})")
        a.label(l2)
    issue_loads(0)
    issue_loads(1)

    srd(a, 20, 52, WS_SIZE)
    srd(a, 24, 46, 2752)
    srd(a, 32, 50, 1024)
    a("s_sub_u32 s54, s2, 172")
    a("s_mov_b32 s70, 524288")
    a("s_cmp_lt_u32 s2, 172")
    a("s_cselect_b32 s28, s48, s40")
    a("s_cselect_b32 s29, s49, s41")
    a("s_cselect_b32 s30, 1409024, s70")
    a("s_cselect_b32 s54, s2, s54")
    a("s_and_b32 s29, s29, 0xffff")
    a("s_mov_b32 s31, 0x00020000")
    a("s_lshr_b32 s55, s54, 2")
    a("s_and_b32 s56, s54, 3")
    a(f"v_lshrrev_b32 v{t[0]}, 4, v0")
    a(f"v_and_b32 v{t[1]}, 15, v0")
    a(f"v_lshlrev_b32 v{t[0]}, 10, v{t[0]}")
    a(f"v_lshl_add_u32 v{vSideA}, v{t[1]}, 4, v{t[0]}")
    a("s_lshl_b32 s57, s55, 15")
    a("s_lshl_b32 s58, s56, 8")
    a("s_add_u32 s57, s57, s58")
    a("s_add_u32 s58, s57, 16384")
    a(f"v_lshlrev_b32 v{vSideB}, 4, v1")
    a("s_lshl_b32 s59, s2, 3")
    a("s_lshl_b32 s60, s6, 1")
    a("s_add_u32 s59, s59, s60")
    a("s_lshl_b32 s68, s59, 10")
    a("s_add_u32 s69, s68, 1024")
    a(f"v_lshlrev_b32 v{vBias}, 3, v3")
    a("s_mul_i32 s71, s4, 192")
    a("s_lshl_b32 s60, s7, 6")
    a("s_add_u32 s71, s71, s60")
    a("s_lshl_b32 s60, s6, 5")
    a(f"v_add_u32 v{t[0]}, s60, v2")
    a(f"v_lshlrev_b32 v{t[0]}, 7, v{t[0]}")
    a(f"v_bfe_u32 v{t[1]}, v2, 1, 3")
    for ks in range(4):
        a(f"v_add_u32 v{t[2]}, {2*ks}, v3")
        a(f"v_xor_b32 v{t[2]}, v{t[2]}, v{t[1]}")
        a(f"v_lshl_add_u32 v{vXr+ks}, v{t[2]}, 4, v{t[0]}")
    a(f"v_bfe_u32 v{t[0]}, v0, 2, 2")
    a(f"v_lshl_add_u32 v{t[0]}, v3, 3, v{t[0]}")
    a(f"v_mul_u32_u24 v{t[0]}, {WSTR}, v{t[0]}")
    a(f"v_and_b32 v{t[1]}, 3, v0")
    a(f"v_lshlrev_b32 v{t[1]}, 3, v{t[1]}")
    a(f"v_bfe_u32 v{t[2]}, v0, 4, 1")
    a(f"v_lshl_add_u32 v{t[1]}, v{t[2]}, 5, v{t[1]}")
    a(f"v_add_u32 v{t[0]}, v{t[0]}, v{t[1]}")
    a("s_lshl_b32 s60, s7, 6")
    a(f"v_add_u32 v{t[0]}, s60, v{t[0]}")
    a(f"v_add_u32 v{vWrQ}, {WQ0}, v{t[0]}")
    a(f"v_add_u32 v{vWrF}, {WF0}, v{t[0]}")
    a("s_lshl_b32 s60, s3, 7")
    a("s_lshl_b32 s61, s6, 5")
    a("s_add_u32 s66, s60, s61")
    a(f"v_add_u32 v{vTok}, s66, v2")
    a("s_mov_b32 s80, 2.0")
    a("s_mov_b32 s81, 2.0")
    a("s_mov_b32 s82, 0x3fb8aa3b")
    a("s_mov_b32 s83, 0x3fb8aa3b")

    def read_ops(j):
        st, ks = j // 4, j % 4
        b = st % NBUF; f = frag[j % 2]
        ops = [f"ds_read_b128 {v(f+8,4)}, v{vXr+ks} offset:{b*XB}"]
        for ft in range(2):
            base = vWrQ if ft == 0 else vWrF
            for half in range(2):
                ops.append(f"ds_read_b64_tr_b16 {v(f+4*ft+2*half,2)}, v{base} offset:{b*WB + ks*16*WSTR + half*4*WSTR}")
        return ops
    def mfma_ops(j):
        f = frag[j % 2]
        ops = []
        for ft in range(2):
            d = ACC + 16 * ft
            c = "0" if j == 0 else v(d, 16)
            ops.append(f"v_mfma_f32_32x32x16_bf16 {v(d,16)}, {v(f+4*ft,4)}, {v(f+8,4)}, {c}")
        return ops

    wait_vm(1)
    a("s_barrier")
    if STAMP: a("s_memtime s[74:75]")
    for o in read_ops(0): a(o)
    for j in range(32):
        st, ks = j // 4, j % 4
        a("s_waitcnt lgkmcnt(0)")
        if ks == 3 and st < 7:
            wait_vm(1 if st + 2 <= 7 else 0)
            a("s_barrier")
        m = mfma_ops(j)
        a(m[0])
        if j < 31:
            for o in read_ops(j + 1): a(o)
        a(m[1])
        if ks == 0 and st + 2 <= 7:
            issue_loads(st + 2)
        if j == 28:
            for q in range(4):
                a(f"buffer_load_dwordx2 {v(biasR+2*q,2)}, v{vBias}, s[24:27], s71 offen offset:{16*q}")
            lab = a.newlabel("K1_NOSIDE"); lab2 = a.newlabel("K1_NOSIDE")
            a("s_cmp_lg_u32 s7, 0")
            a(f"s_cbranch_scc1 {lab}")
            a(f"buffer_load_dwordx4 {v(sideT,4)}, v{vSideA}, s[28:31], s57 offen")
            a(f"buffer_load_dwordx4 {v(sideT+4,4)}, v{vSideA}, s[28:31], s58 offen")
            a.label(lab)
            a("s_cmp_lg_u32 s7, 1")
            a(f"s_cbranch_scc1 {lab2}")
            a(f"buffer_load_dwordx4 {v(sideX,4)}, v{vSideB}, s[8:11], s68 offen")
            a(f"buffer_load_dwordx4 {v(sideX+4,4)}, v{vSideB}, s[8:11], s69 offen")
            a(f"buffer_load_dwordx4 {v(sideW,4)}, v{vSideB}, s[32:35], 0 offen")
            a.label(lab2)
    if STAMP: a("s_memtime s[76:77]")
    TS = 320
    a("s_barrier")
    a("s_waitcnt vmcnt(0)")
    a("s_cmp_ge_u32 s5, 4")
    a("s_cbranch_scc1 K1_NOT1")
    a(f"v_lshrrev_b32 v{t[0]}, 4, v0")
    a(f"v_and_b32 v{t[1]}, 15, v0")
    a(f"v_mul_u32_u24 v{t[0]}, {TS}, v{t[0]}")
    a(f"v_lshl_add_u32 v{t[0]}, v{t[1]}, 4, v{t[0]}")
    a(f"ds_write_b128 v{t[0]}, {v(sideT,4)}")
    a(f"ds_write_b128 v{t[0]}, {v(sideT+4,4)} offset:{16*TS}")
    a.label("K1_NOT1")
    a("s_nop 15")
    P = tmp; T = tmp + 8; U = tmp + 24; BU = tmp + 40
    vA = vt[0]
    D = ACC
    a("s_mul_i32 s60, s4, 3")
    a("s_add_u32 s60, s60, s7")
    a("s_lshr_b32 s61, s60, 4")
    a("s_and_b32 s62, s60, 15")
    a("s_lshl_b32 s63, s61, 21")
    a("s_lshl_b32 s62, s62, 17")
    a("s_add_u32 s63, s63, s62")
    a("s_add_u32 s64, s63, 65536")
    a("s_cmp_eq_u32 s61, 0")
    a(f"s_cselect_b32 s86, {f2u(QSCALE)}, 1.0")
    a(f"s_cselect_b32 s87, {f2u(QSCALE)}, 1.0")
    for i in range(8):
        a(f"v_pk_mul_f32 {v(D+2*i,2)}, {v(D+2*i,2)}, s[86:87]")
    for i in range(8):
        a(f"v_cvt_pk_bf16_f32 v{P+i}, v{D+2*i}, v{D+2*i+1}")
    a(f"v_lshlrev_b32 v{vA}, 5, v{vTok}")
    a(f"v_lshl_add_u32 v{vA}, v3, 4, v{vA}")
    a(f"v_permlane32_swap_b32 v{P+0}, v{P+2}")
    a(f"v_permlane32_swap_b32 v{P+1}, v{P+3}")
    a(f"v_permlane32_swap_b32 v{P+4}, v{P+6}")
    a("s_nop 0")
    a(f"v_permlane32_swap_b32 v{P+5}, v{P+7}")
    a("s_nop 1")
    a(f"buffer_store_dwordx4 {v(P,4)}, v{vA}, s[20:23], s63 offen")
    a(f"buffer_store_dwordx4 {v(P+4,4)}, v{vA}, s[20:23], s64 offen")
    a("s_nop 1")
    D = ACC + 16
    a("s_cmp_ge_u32 s60, 43")
    a("s_cbranch_scc1 K1_SKIPF")
    a("s_lshl_b32 s62, s60, 11")
    a(f"s_add_u32 s61, s62, {WS_ACT}")
    for q in range(8):
        a(f"v_lshlrev_b32 v{BU+2*q}, 16, v{biasR+q}")
        a(f"v_and_b32 v{BU+2*q+1}, 0xffff0000, v{biasR+q}")
    for i in range(8):
        a(f"v_pk_add_f32 {v(D+2*i,2)}, {v(D+2*i,2)}, {v(BU+2*i,2)}")
    for i in range(16):
        a(f"v_min_f32 v{T+i}, 0x41a00000, v{D+i}")
    for i in range(8):
        a(f"v_pk_mul_f32 {v(T+2*i,2)}, {v(T+2*i,2)}, s[82:83]")
    for i in range(16):
        a(f"v_exp_f32 v{T+i}, v{T+i}")
    for i in range(8):
        a(f"v_pk_add_f32 {v(U+2*i,2)}, {v(T+2*i,2)}, s[80:81]")
    for i in range(8):
        a(f"v_pk_mul_f32 {v(T+2*i,2)}, {v(T+2*i,2)}, {v(U+2*i,2)}")
    for i in range(8):
        a(f"v_pk_add_f32 {v(U+2*i,2)}, {v(T+2*i,2)}, s[80:81]")
    for i in range(16):
        a(f"v_rcp_f32 v{U+i}, v{U+i}")
    for i in range(8):
        a(f"v_pk_mul_f32 {v(T+2*i,2)}, {v(T+2*i,2)}, {v(U+2*i,2)}")
    for i in range(8):
        a(f"v_pk_mul_f32 {v(D+2*i,2)}, {v(D+2*i,2)}, {v(T+2*i,2)}")
    for i in range(8):
        a(f"v_cvt_pk_bf16_f32 v{P+i}, v{D+2*i}, v{D+2*i+1}")
    a(f"s_lshr_b32 s62, s66, 5")
    a(f"s_mul_i32 s62, s62, {86*1024}")
    a("s_add_u32 s61, s61, s62")
    a(f"v_permlane32_swap_b32 v{P+0}, v{P+2}")
    a(f"v_permlane32_swap_b32 v{P+1}, v{P+3}")
    a(f"v_permlane32_swap_b32 v{P+4}, v{P+6}")
    a(f"v_permlane32_swap_b32 v{P+5}, v{P+7}")
    a("s_nop 1")
    a(f"buffer_store_dwordx4 {v(P,4)}, v{vSideB}, s[20:23], s61 offen")
    a(f"buffer_store_dwordx4 {v(P+4,4)}, v{vSideB}, s[20:23], s61 offen offset:1024")
    a("s_nop 1")
    a.label("K1_SKIPF")
    if STAMP: a("s_memtime s[78:79]")
    a("s_waitcnt lgkmcnt(0)")
    a("s_barrier")
    a("s_cmp_eq_u32 s7, 0")
    a("s_cbranch_scc1 K1_TRANS")
    a("s_cmp_lg_u32 s7, 1")
    a("s_cbranch_scc1 K1_END")

    G = tmp
    for i in range(4):
        a(f"v_lshlrev_b32 v{G+2*i}, 16, v{sideW+i}")
        a(f"v_and_b32 v{G+2*i+1}, 0xffff0000, v{sideW+i}")
    S = [vt[2], vt[3]]
    for tk in range(2):
        X = G + 8
        for i in range(4):
            a(f"v_lshlrev_b32 v{X+2*i}, 16, v{sideX+4*tk+i}")
            a(f"v_and_b32 v{X+2*i+1}, 0xffff0000, v{sideX+4*tk+i}")
        for i in range(8):
            a(f"v_mul_f32 v{X+i}, v{X+i}, v{G+i}")
        for i in range(4):
            a(f"v_cvt_pk_bf16_f32 v{X+8+i}, v{X+2*i}, v{X+2*i+1}")
        for i in range(4):
            a(f"v_lshlrev_b32 v{X+2*i}, 16, v{X+8+i}")
            a(f"v_and_b32 v{X+2*i+1}, 0xffff0000, v{X+8+i}")
        a(f"v_add_f32 v{X}, v{X}, v{X+1}")
        a(f"v_add_f32 v{X+2}, v{X+2}, v{X+3}")
        a(f"v_add_f32 v{X+4}, v{X+4}, v{X+5}")
        a(f"v_add_f32 v{X+6}, v{X+6}, v{X+7}")
        a(f"v_add_f32 v{X}, v{X}, v{X+2}")
        a(f"v_add_f32 v{X+4}, v{X+4}, v{X+6}")
        a(f"v_add_f32 v{S[tk]}, v{X}, v{X+4}")
    for ctl in ("row_shr:1 row_mask:0xf bank_mask:0xf bound_ctrl:0", "row_shr:2 row_mask:0xf bank_mask:0xf bound_ctrl:0",
                "row_shr:4 row_mask:0xf bank_mask:0xf bound_ctrl:0", "row_shr:8 row_mask:0xf bank_mask:0xf bound_ctrl:0",
                "row_bcast:15 row_mask:0xa bank_mask:0xf", "row_bcast:31 row_mask:0xc bank_mask:0xf"):
        a("s_nop 1")
        a(f"v_add_f32_dpp v{S[0]}, v{S[0]}, v{S[0]} {ctl}")
        a(f"v_add_f32_dpp v{S[1]}, v{S[1]}, v{S[1]} {ctl}")
    a(f"v_cvt_pk_bf16_f32 v{G}, v{S[0]}, v{S[1]}")
    a(f"v_lshlrev_b32 v{G+1}, 16, v{G}")
    a(f"v_and_b32 v{G+2}, 0xffff0000, v{G}")
    for i in (1, 2):
        a(f"v_mul_f32 v{G+i}, 0xbfb8aa3b, v{G+i}")
    for i in (1, 2):
        a(f"v_exp_f32 v{G+i}, v{G+i}")
    a("s_nop 0")
    for i in (1, 2):
        a(f"v_add_f32 v{G+i}, 1.0, v{G+i}")
    for i in (1, 2):
        a(f"v_rcp_f32 v{G+i}, v{G+i}")
    a("s_nop 0")
    a(f"v_cvt_pk_bf16_f32 v{G}, v{G+1}, v{G+2}")
    a(f"v_lshlrev_b32 v{G+4}, 16, v{G}")
    a(f"v_and_b32 v{G+5}, 0xffff0000, v{G}")
    a(f"v_sub_f32 v{G+6}, 1.0, v{G+4}")
    a(f"v_sub_f32 v{G+7}, 1.0, v{G+5}")
    a(f"v_cvt_pk_bf16_f32 v{G}, v{G+6}, v{G+7}")
    a(f"v_lshlrev_b32 v{G+6}, 16, v{G}")
    a(f"v_and_b32 v{G+7}, 0xffff0000, v{G}")
    a("s_lshl_b32 s60, s59, 2")
    a(f"s_add_u32 s61, s60, {WS_OMG}")
    a(f"s_add_u32 s60, s60, {WS_G}")
    a(f"v_mov_b32 v{vt[4]}, 0")
    a("v_cmp_eq_u32 vcc, 63, v1")
    a("s_and_saveexec_b64 s[88:89], vcc")
    a(f"buffer_store_dwordx2 {v(G+4,2)}, v{vt[4]}, s[20:23], s60 offen")
    a(f"buffer_store_dwordx2 {v(G+6,2)}, v{vt[4]}, s[20:23], s61 offen")
    a("s_lshl_b32 s60, s2, 2")
    a(f"s_add_u32 s60, s60, {WS_FLAG}")
    a(f"buffer_store_dword v{vt[4]}, v{vt[4]}, s[20:23], s60 offen")
    a("s_mov_b64 exec, s[88:89]")
    a("s_branch K1_END")
    a.label("K1_TRANS")
    a("s_cmp_ge_u32 s2, 236")
    a("s_cbranch_scc1 K1_END")
    TT = tmp + 32
    a(f"v_bfe_u32 v{t[0]}, v0, 2, 2")
    a(f"v_lshl_add_u32 v{t[0]}, v3, 3, v{t[0]}")
    a(f"v_mul_u32_u24 v{t[0]}, {TS}, v{t[0]}")
    a(f"v_and_b32 v{t[1]}, 3, v0")
    a(f"v_lshlrev_b32 v{t[1]}, 3, v{t[1]}")
    a(f"v_bfe_u32 v{t[4]}, v0, 4, 1")
    a(f"v_lshl_add_u32 v{t[1]}, v{t[4]}, 5, v{t[1]}")
    a(f"v_add_u32 v{t[0]}, v{t[0]}, v{t[1]}")
    a("s_lshl_b32 s60, s5, 6")
    a(f"v_add_u32 v{t[0]}, s60, v{t[0]}")
    for i in range(2):
        for half in range(2):
            a(f"ds_read_b64_tr_b16 {v(TT+4*i+2*half,2)}, v{t[0]} offset:{i*16*TS + half*4*TS}")
    a(f"s_mov_b32 s71, {WS_WOT}")
    a("s_cmp_lt_u32 s2, 172")
    a("s_cselect_b32 s61, 86, 32")
    a(f"s_cselect_b32 s62, {WS_W2T}, s71")
    a("s_lshl_b32 s63, s56, 2")
    a("s_add_u32 s63, s63, s5")
    a("s_mul_i32 s63, s63, s61")
    a("s_lshl_b32 s64, s55, 1")
    a("s_add_u32 s63, s63, s64")
    a("s_lshl_b32 s63, s63, 10")
    a("s_add_u32 s62, s62, s63")
    a("s_waitcnt lgkmcnt(0)")
    a(f"buffer_store_dwordx4 {v(TT,4)}, v{vSideB}, s[20:23], s62 offen")
    a(f"buffer_store_dwordx4 {v(TT+4,4)}, v{vSideB}, s[20:23], s62 offen offset:1024")
    a.label("K1_END")
    if STAMP:
        a("s_waitcnt vmcnt(0)")
        a("s_memtime s[90:91]")
        a("s_waitcnt lgkmcnt(0)")
        a("s_cmp_lg_u32 s2, 5")
        a("s_cbranch_scc1 K1_END2")
        a("s_cmp_ge_u32 s5, 8")
        a("s_cbranch_scc1 K1_END2")
        a("s_sub_u32 s74, s74, s72")
        a("s_sub_u32 s76, s76, s72")
        a("s_sub_u32 s78, s78, s72")
        a("s_sub_u32 s90, s90, s72")
        a("v_mov_b32 v4, s74")
        a("v_mov_b32 v5, s76")
        a("v_mov_b32 v6, s78")
        a("v_mov_b32 v7, s90")
        a("s_lshl_b32 s87, s5, 4")
        a("v_mov_b32 v8, s87")
        a("global_store_dwordx4 v8, v[4:7], s[84:85]")
    a.label("K1_END2")
    a("s_endpgm")
    return a.text(), nvgpr
```

```python
from asmlib import *
from layout import *
import struct, os
STAMP = os.environ.get('STAMP') == '1'

XB = 16384
WB = 12288
NBUF = 3
WQ0 = NBUF * XB
WF0 = WQ0 + NBUF * WB
K1_LDS = WF0 + NBUF * WB
WSTR = 192
K1_THREADS = 768
STF = os.environ.get('STF', '')
QSCALE = 0.25 * 1.4426950408889634

def f2u(f):
    return struct.unpack("<I", struct.pack("<f", f))[0]

def gen_k1():
    a = Asm()
    R = RegAlloc(4)
    vXg = R.alloc(2)
    vWq = R.alloc(); vWf = R.alloc()
    vXr = R.alloc(4)
    vWrQ = R.alloc(); vWrF = R.alloc()
    vTok = R.alloc()
    vSideA = R.alloc(); vSideB = R.alloc(); vBias = R.alloc()
    vt = [R.alloc() for _ in range(6)]
    side = R.alloc(20, 4)
    biasR = R.alloc(8, 4)
    frag = [R.alloc(12, 4), R.alloc(12, 4)]
    ACC = R.alloc(32, 4)
    tmp = R.alloc(56, 4)
    nvgpr = R.next
    sideT = side; sideX = side + 8; sideW = side + 16

    a("s_cmp_ge_u32 s2, 256")
    a("s_cbranch_scc1 K1_END2")
    if STAMP:
        a("s_memtime s[72:73]")
        a("s_memrealtime s[92:93]")
        a("s_load_dwordx2 s[84:85], s[0:1], 72")
    a("s_load_dwordx16 s[36:51], s[0:1], 0")
    a("s_load_dwordx2 s[52:53], s[0:1], 80")
    a("s_and_b32 s3, s2, 15")
    a("s_lshr_b32 s4, s2, 4")
    a("v_lshrrev_b32 v1, 6, v0")
    a("s_nop 0")
    a("v_readfirstlane_b32 s5, v1")
    a("v_and_b32 v1, 63, v0")
    a("v_and_b32 v2, 31, v0")
    a("v_bfe_u32 v3, v0, 5, 1")
    a("s_and_b32 s6, s5, 3")
    a("s_lshr_b32 s7, s5, 2")
    t = vt
    a(f"v_lshrrev_b32 v{t[0]}, 3, v1")
    a(f"v_and_b32 v{t[1]}, 7, v1")
    a(f"v_lshrrev_b32 v{t[2]}, 1, v{t[0]}")
    a("s_lshl_b32 s60, s3, 7")
    a("s_lshl_b32 s61, s5, 3")
    a("s_add_u32 s60, s60, s61")
    a(f"v_add_u32 v{t[3]}, s60, v{t[0]}")
    a(f"v_lshlrev_b32 v{t[3]}, 10, v{t[3]}")
    a("s_and_b32 s61, s5, 1")
    a("s_lshl_b32 s61, s61, 2")
    a(f"v_xor_b32 v{t[4]}, s61, v{t[2]}")
    a(f"v_xor_b32 v{t[4]}, v{t[4]}, v{t[1]}")
    a(f"v_lshl_add_u32 v{vXg}, v{t[4]}, 4, v{t[3]}")
    a(f"v_add_u32 v{vXg+1}, {96*1024}, v{vXg}")
    a("s_lshl_b32 s60, s5, 6")
    a("s_mul_i32 s61, s4, 192")
    a(f"v_add_u32 v{t[0]}, s60, v1")
    a(f"v_mul_u32_u24 v{t[1]}, 43691, v{t[0]}")
    a(f"v_lshrrev_b32 v{t[1]}, 19, v{t[1]}")
    a(f"v_mul_u32_u24 v{t[2]}, 12, v{t[1]}")
    a(f"v_sub_u32 v{t[2]}, v{t[0]}, v{t[2]}")
    a(f"v_lshlrev_b32 v{t[2]}, 4, v{t[2]}")
    a(f"v_add_u32 v{t[2]}, s61, v{t[2]}")
    a(f"v_mul_u32_u24 v{t[3]}, 3072, v{t[1]}")
    a(f"v_add_u32 v{vWq}, v{t[3]}, v{t[2]}")
    a(f"v_mul_u32_u24 v{t[3]}, 2752, v{t[1]}")
    a(f"v_add_u32 v{vWf}, v{t[3]}, v{t[2]}")
    a("s_lshl_b32 s67, s5, 10")
    a("s_waitcnt lgkmcnt(0)")
    srd(a, 8, 36, 2097152)
    srd(a, 12, 38, 1572864)
    srd(a, 16, 44, 1409024)

    def issue_loads(st):
        b = st % NBUF
        lab = a.newlabel("K1_NOX2")
        a(f"s_mov_b32 s60, {st*64*3072}")
        a(f"s_mov_b32 s61, {st*64*2752}")
        a(f"s_mov_b32 s62, {st*128}")
        a(f"s_add_u32 m0, s67, {b*XB}")
        a("s_nop 0")
        a(f"buffer_load_dwordx4 v{vXg}, s[8:11], s62 offen lds")
        a(f"s_add_u32 m0, s67, {WQ0 + b*WB}")
        a("s_nop 0")
        a(f"buffer_load_dwordx4 v{vWq}, s[12:15], s60 offen lds")
        a(f"s_add_u32 m0, s67, {WF0 + b*WB}")
        a("s_nop 0")
        a(f"buffer_load_dwordx4 v{vWf}, s[16:19], s61 offen lds")
        a("s_cmp_ge_u32 s5, 4")
        a(f"s_cbranch_scc1 {lab}")
        a(f"s_add_u32 m0, s67, {b*XB + 12*1024}")
        a("s_nop 0")
        a(f"buffer_load_dwordx4 v{vXg+1}, s[8:11], s62 offen lds")
        a.label(lab)
    def wait_vm(nstages_after, extra=0):
        l1 = a.newlabel("K1_W"); l2 = a.newlabel("K1_W")
        a("s_cmp_ge_u32 s5, 4")
        a(f"s_cbranch_scc1 {l1}")
        a(f"s_waitcnt vmcnt({4*nstages_after + extra})")
        a(f"s_branch {l2}")
        a.label(l1)
        a(f"s_waitcnt vmcnt({3*nstages_after + extra})")
        a.label(l2)
    issue_loads(0)
    issue_loads(1)

    srd(a, 20, 52, WS_SIZE)
    srd(a, 24, 46, 2752)
    srd(a, 32, 50, 1024)
    a("s_sub_u32 s54, s2, 172")
    a("s_mov_b32 s70, 524288")
    a("s_cmp_lt_u32 s2, 172")
    a("s_cselect_b32 s28, s48, s40")
    a("s_cselect_b32 s29, s49, s41")
    a("s_cselect_b32 s30, 1409024, s70")
    a("s_cselect_b32 s54, s2, s54")
    a("s_and_b32 s29, s29, 0xffff")
    a("s_mov_b32 s31, 0x00020000")
    a("s_lshr_b32 s55, s54, 2")
    a("s_and_b32 s56, s54, 3")
    a(f"v_lshrrev_b32 v{t[0]}, 4, v0")
    a(f"v_and_b32 v{t[1]}, 15, v0")
    a(f"v_lshlrev_b32 v{t[0]}, 10, v{t[0]}")
    a(f"v_lshl_add_u32 v{vSideA}, v{t[1]}, 4, v{t[0]}")
    a("s_lshl_b32 s57, s55, 15")
    a("s_lshl_b32 s58, s56, 8")
    a("s_add_u32 s57, s57, s58")
    a("s_add_u32 s58, s57, 16384")
    a(f"v_lshlrev_b32 v{vSideB}, 4, v1")
    a("s_lshl_b32 s59, s2, 3")
    a("s_lshl_b32 s60, s6, 1")
    a("s_add_u32 s59, s59, s60")
    a("s_lshl_b32 s68, s59, 10")
    a("s_add_u32 s69, s68, 1024")
    a(f"v_lshlrev_b32 v{vBias}, 3, v3")
    a("s_mul_i32 s71, s4, 192")
    a("s_lshl_b32 s60, s7, 6")
    a("s_add_u32 s71, s71, s60")
    a("s_lshl_b32 s60, s6, 5")
    a(f"v_add_u32 v{t[0]}, s60, v2")
    a(f"v_lshlrev_b32 v{t[0]}, 7, v{t[0]}")
    a(f"v_bfe_u32 v{t[1]}, v2, 1, 3")
    for ks in range(4):
        a(f"v_add_u32 v{t[2]}, {2*ks}, v3")
        a(f"v_xor_b32 v{t[2]}, v{t[2]}, v{t[1]}")
        a(f"v_lshl_add_u32 v{vXr+ks}, v{t[2]}, 4, v{t[0]}")
    a(f"v_bfe_u32 v{t[0]}, v0, 2, 2")
    a(f"v_lshl_add_u32 v{t[0]}, v3, 3, v{t[0]}")
    a(f"v_mul_u32_u24 v{t[0]}, {WSTR}, v{t[0]}")
    a(f"v_and_b32 v{t[1]}, 3, v0")
    a(f"v_lshlrev_b32 v{t[1]}, 3, v{t[1]}")
    a(f"v_bfe_u32 v{t[2]}, v0, 4, 1")
    a(f"v_lshl_add_u32 v{t[1]}, v{t[2]}, 5, v{t[1]}")
    a(f"v_add_u32 v{t[0]}, v{t[0]}, v{t[1]}")
    a("s_lshl_b32 s60, s7, 6")
    a(f"v_add_u32 v{t[0]}, s60, v{t[0]}")
    a(f"v_add_u32 v{vWrQ}, {WQ0}, v{t[0]}")
    a(f"v_add_u32 v{vWrF}, {WF0}, v{t[0]}")
    a("s_lshl_b32 s60, s3, 7")
    a("s_lshl_b32 s61, s6, 5")
    a("s_add_u32 s66, s60, s61")
    a(f"v_add_u32 v{vTok}, s66, v2")
    a("s_mov_b32 s80, 2.0")
    a("s_mov_b32 s81, 2.0")
    a("s_mov_b32 s82, 0x3fb8aa3b")
    a("s_mov_b32 s83, 0x3fb8aa3b")

    def read_ops(j):
        st, ks = j // 4, j % 4
        b = st % NBUF; f = frag[j % 2]
        ops = [f"ds_read_b128 {v(f+8,4)}, v{vXr+ks} offset:{b*XB}"]
        for ft in range(2):
            base = vWrQ if ft == 0 else vWrF
            for half in range(2):
                ops.append(f"ds_read_b64_tr_b16 {v(f+4*ft+2*half,2)}, v{base} offset:{b*WB + ks*16*WSTR + half*4*WSTR}")
        return ops
    def mfma_ops(j):
        f = frag[j % 2]
        ops = []
        for ft in range(2):
            d = ACC + 16 * ft
            c = "0" if j == 0 else v(d, 16)
            ops.append(f"v_mfma_f32_32x32x16_bf16 {v(d,16)}, {v(f+4*ft,4)}, {v(f+8,4)}, {c}")
        return ops

    wait_vm(1)
    a("s_barrier")
    if STAMP: a("s_memtime s[74:75]")
    for o in read_ops(0): a(o)
    for j in range(32):
        st, ks = j // 4, j % 4
        a("s_waitcnt lgkmcnt(0)")
        if ks == 3 and st < 7:
            wait_vm(1 if st + 2 <= 7 else 0)
            a("s_barrier")
        m = mfma_ops(j)
        a(m[0])
        if j < 31:
            for o in read_ops(j + 1): a(o)
        a(m[1])
        if ks == 0 and st + 2 <= 7:
            issue_loads(st + 2)
        if j == 28:
            for q in range(4):
                a(f"buffer_load_dwordx2 {v(biasR+2*q,2)}, v{vBias}, s[24:27], s71 offen offset:{16*q}")
            lab = a.newlabel("K1_NOSIDE"); lab2 = a.newlabel("K1_NOSIDE")
            a("s_cmp_lg_u32 s7, 0")
            a(f"s_cbranch_scc1 {lab}")
            a(f"buffer_load_dwordx4 {v(sideT,4)}, v{vSideA}, s[28:31], s57 offen")
            a(f"buffer_load_dwordx4 {v(sideT+4,4)}, v{vSideA}, s[28:31], s58 offen")
            a.label(lab)
            a("s_cmp_lg_u32 s7, 1")
            a(f"s_cbranch_scc1 {lab2}")
            a(f"buffer_load_dwordx4 {v(sideX,4)}, v{vSideB}, s[8:11], s68 offen")
            a(f"buffer_load_dwordx4 {v(sideX+4,4)}, v{vSideB}, s[8:11], s69 offen")
            a(f"buffer_load_dwordx4 {v(sideW,4)}, v{vSideB}, s[32:35], 0 offen")
            a.label(lab2)
    if STAMP: a("s_memtime s[76:77]")
    TS = 320
    a("s_barrier")
    a("s_waitcnt vmcnt(0)")
    a("s_cmp_ge_u32 s5, 4")
    a("s_cbranch_scc1 K1_NOT1")
    a(f"v_lshrrev_b32 v{t[0]}, 4, v0")
    a(f"v_and_b32 v{t[1]}, 15, v0")
    a(f"v_mul_u32_u24 v{t[0]}, {TS}, v{t[0]}")
    a(f"v_lshl_add_u32 v{t[0]}, v{t[1]}, 4, v{t[0]}")
    a(f"ds_write_b128 v{t[0]}, {v(sideT,4)}")
    a(f"ds_write_b128 v{t[0]}, {v(sideT+4,4)} offset:{16*TS}")
    a.label("K1_NOT1")
    a("s_nop 15")
    P = tmp; T = tmp + 8; U = tmp + 24; BU = tmp + 40
    vA = vt[0]
    D = ACC
    a("s_mul_i32 s60, s4, 3")
    a("s_add_u32 s60, s60, s7")
    a("s_lshr_b32 s61, s60, 4")
    a("s_and_b32 s62, s60, 15")
    a("s_lshl_b32 s63, s61, 21")
    a("s_lshl_b32 s62, s62, 17")
    a("s_add_u32 s63, s63, s62")
    a("s_add_u32 s64, s63, 65536")
    a("s_cmp_eq_u32 s61, 0")
    a(f"s_cselect_b32 s86, {f2u(QSCALE)}, 1.0")
    a(f"s_cselect_b32 s87, {f2u(QSCALE)}, 1.0")
    for i in range(8):
        a(f"v_pk_mul_f32 {v(D+2*i,2)}, {v(D+2*i,2)}, s[86:87]")
    for i in range(8):
        a(f"v_cvt_pk_bf16_f32 v{P+i}, v{D+2*i}, v{D+2*i+1}")
    a(f"v_lshlrev_b32 v{vA}, 5, v{vTok}")
    a(f"v_lshl_add_u32 v{vA}, v3, 4, v{vA}")
    a(f"v_permlane32_swap_b32 v{P+0}, v{P+2}")
    a(f"v_permlane32_swap_b32 v{P+1}, v{P+3}")
    a(f"v_permlane32_swap_b32 v{P+4}, v{P+6}")
    a("s_nop 0")
    a(f"v_permlane32_swap_b32 v{P+5}, v{P+7}")
    a("s_nop 1")
    a(f"buffer_store_dwordx4 {v(P,4)}, v{vA}, s[20:23], s63 offen{STF}")
    a(f"buffer_store_dwordx4 {v(P+4,4)}, v{vA}, s[20:23], s64 offen{STF}")
    a("s_nop 1")
    D = ACC + 16
    a("s_cmp_ge_u32 s60, 43")
    a("s_cbranch_scc1 K1_SKIPF")
    a("s_lshl_b32 s62, s60, 11")
    a(f"s_add_u32 s61, s62, {WS_ACT}")
    for q in range(8):
        a(f"v_lshlrev_b32 v{BU+2*q}, 16, v{biasR+q}")
        a(f"v_and_b32 v{BU+2*q+1}, 0xffff0000, v{biasR+q}")
    for i in range(8):
        a(f"v_pk_add_f32 {v(D+2*i,2)}, {v(D+2*i,2)}, {v(BU+2*i,2)}")
    for i in range(16):
        a(f"v_min_f32 v{T+i}, 0x41a00000, v{D+i}")
    for i in range(8):
        a(f"v_pk_mul_f32 {v(T+2*i,2)}, {v(T+2*i,2)}, s[82:83]")
    for i in range(16):
        a(f"v_exp_f32 v{T+i}, v{T+i}")
    for i in range(8):
        a(f"v_pk_add_f32 {v(U+2*i,2)}, {v(T+2*i,2)}, s[80:81]")
    for i in range(8):
        a(f"v_pk_mul_f32 {v(T+2*i,2)}, {v(T+2*i,2)}, {v(U+2*i,2)}")
    for i in range(8):
        a(f"v_pk_add_f32 {v(U+2*i,2)}, {v(T+2*i,2)}, s[80:81]")
    for i in range(16):
        a(f"v_rcp_f32 v{U+i}, v{U+i}")
    for i in range(8):
        a(f"v_pk_mul_f32 {v(T+2*i,2)}, {v(T+2*i,2)}, {v(U+2*i,2)}")
    for i in range(8):
        a(f"v_pk_mul_f32 {v(D+2*i,2)}, {v(D+2*i,2)}, {v(T+2*i,2)}")
    for i in range(8):
        a(f"v_cvt_pk_bf16_f32 v{P+i}, v{D+2*i}, v{D+2*i+1}")
    a(f"s_lshr_b32 s62, s66, 5")
    a(f"s_mul_i32 s62, s62, {86*1024}")
    a("s_add_u32 s61, s61, s62")
    a(f"v_permlane32_swap_b32 v{P+0}, v{P+2}")
    a(f"v_permlane32_swap_b32 v{P+1}, v{P+3}")
    a(f"v_permlane32_swap_b32 v{P+4}, v{P+6}")
    a(f"v_permlane32_swap_b32 v{P+5}, v{P+7}")
    a("s_nop 1")
    a(f"buffer_store_dwordx4 {v(P,4)}, v{vSideB}, s[20:23], s61 offen{STF}")
    a(f"buffer_store_dwordx4 {v(P+4,4)}, v{vSideB}, s[20:23], s61 offen offset:1024{STF}")
    a("s_nop 1")
    a.label("K1_SKIPF")
    if STAMP: a("s_memtime s[78:79]")
    a("s_waitcnt lgkmcnt(0)")
    a("s_barrier")
    a("s_cmp_eq_u32 s7, 0")
    a("s_cbranch_scc1 K1_TRANS")
    a("s_cmp_lg_u32 s7, 1")
    a("s_cbranch_scc1 K1_END")

    G = tmp
    for i in range(4):
        a(f"v_lshlrev_b32 v{G+2*i}, 16, v{sideW+i}")
        a(f"v_and_b32 v{G+2*i+1}, 0xffff0000, v{sideW+i}")
    S = [vt[2], vt[3]]
    for tk in range(2):
        X = G + 8
        for i in range(4):
            a(f"v_lshlrev_b32 v{X+2*i}, 16, v{sideX+4*tk+i}")
            a(f"v_and_b32 v{X+2*i+1}, 0xffff0000, v{sideX+4*tk+i}")
        for i in range(8):
            a(f"v_mul_f32 v{X+i}, v{X+i}, v{G+i}")
        for i in range(4):
            a(f"v_cvt_pk_bf16_f32 v{X+8+i}, v{X+2*i}, v{X+2*i+1}")
        for i in range(4):
            a(f"v_lshlrev_b32 v{X+2*i}, 16, v{X+8+i}")
            a(f"v_and_b32 v{X+2*i+1}, 0xffff0000, v{X+8+i}")
        a(f"v_add_f32 v{X}, v{X}, v{X+1}")
        a(f"v_add_f32 v{X+2}, v{X+2}, v{X+3}")
        a(f"v_add_f32 v{X+4}, v{X+4}, v{X+5}")
        a(f"v_add_f32 v{X+6}, v{X+6}, v{X+7}")
        a(f"v_add_f32 v{X}, v{X}, v{X+2}")
        a(f"v_add_f32 v{X+4}, v{X+4}, v{X+6}")
        a(f"v_add_f32 v{S[tk]}, v{X}, v{X+4}")
    for ctl in ("row_shr:1 row_mask:0xf bank_mask:0xf bound_ctrl:0", "row_shr:2 row_mask:0xf bank_mask:0xf bound_ctrl:0",
                "row_shr:4 row_mask:0xf bank_mask:0xf bound_ctrl:0", "row_shr:8 row_mask:0xf bank_mask:0xf bound_ctrl:0",
                "row_bcast:15 row_mask:0xa bank_mask:0xf", "row_bcast:31 row_mask:0xc bank_mask:0xf"):
        a("s_nop 1")
        a(f"v_add_f32_dpp v{S[0]}, v{S[0]}, v{S[0]} {ctl}")
        a(f"v_add_f32_dpp v{S[1]}, v{S[1]}, v{S[1]} {ctl}")
    a(f"v_cvt_pk_bf16_f32 v{G}, v{S[0]}, v{S[1]}")
    a(f"v_lshlrev_b32 v{G+1}, 16, v{G}")
    a(f"v_and_b32 v{G+2}, 0xffff0000, v{G}")
    for i in (1, 2):
        a(f"v_mul_f32 v{G+i}, 0xbfb8aa3b, v{G+i}")
    for i in (1, 2):
        a(f"v_exp_f32 v{G+i}, v{G+i}")
    a("s_nop 0")
    for i in (1, 2):
        a(f"v_add_f32 v{G+i}, 1.0, v{G+i}")
    for i in (1, 2):
        a(f"v_rcp_f32 v{G+i}, v{G+i}")
    a("s_nop 0")
    a(f"v_cvt_pk_bf16_f32 v{G}, v{G+1}, v{G+2}")
    a(f"v_lshlrev_b32 v{G+4}, 16, v{G}")
    a(f"v_and_b32 v{G+5}, 0xffff0000, v{G}")
    a(f"v_sub_f32 v{G+6}, 1.0, v{G+4}")
    a(f"v_sub_f32 v{G+7}, 1.0, v{G+5}")
    a(f"v_cvt_pk_bf16_f32 v{G}, v{G+6}, v{G+7}")
    a(f"v_lshlrev_b32 v{G+6}, 16, v{G}")
    a(f"v_and_b32 v{G+7}, 0xffff0000, v{G}")
    a("s_lshl_b32 s60, s59, 2")
    a(f"s_add_u32 s61, s60, {WS_OMG}")
    a(f"s_add_u32 s60, s60, {WS_G}")
    a(f"v_mov_b32 v{vt[4]}, 0")
    a("v_cmp_eq_u32 vcc, 63, v1")
    a("s_and_saveexec_b64 s[88:89], vcc")
    a(f"buffer_store_dwordx2 {v(G+4,2)}, v{vt[4]}, s[20:23], s60 offen")
    a(f"buffer_store_dwordx2 {v(G+6,2)}, v{vt[4]}, s[20:23], s61 offen")
    a("s_lshl_b32 s60, s2, 2")
    a(f"s_add_u32 s60, s60, {WS_FLAG}")
    a(f"buffer_store_dword v{vt[4]}, v{vt[4]}, s[20:23], s60 offen")
    a("s_mov_b64 exec, s[88:89]")
    a("s_branch K1_END")
    a.label("K1_TRANS")
    a("s_cmp_ge_u32 s2, 236")
    a("s_cbranch_scc1 K1_END")
    TT = tmp + 32
    a(f"v_bfe_u32 v{t[0]}, v0, 2, 2")
    a(f"v_lshl_add_u32 v{t[0]}, v3, 3, v{t[0]}")
    a(f"v_mul_u32_u24 v{t[0]}, {TS}, v{t[0]}")
    a(f"v_and_b32 v{t[1]}, 3, v0")
    a(f"v_lshlrev_b32 v{t[1]}, 3, v{t[1]}")
    a(f"v_bfe_u32 v{t[4]}, v0, 4, 1")
    a(f"v_lshl_add_u32 v{t[1]}, v{t[4]}, 5, v{t[1]}")
    a(f"v_add_u32 v{t[0]}, v{t[0]}, v{t[1]}")
    a("s_lshl_b32 s60, s5, 6")
    a(f"v_add_u32 v{t[0]}, s60, v{t[0]}")
    for i in range(2):
        for half in range(2):
            a(f"ds_read_b64_tr_b16 {v(TT+4*i+2*half,2)}, v{t[0]} offset:{i*16*TS + half*4*TS}")
    a(f"s_mov_b32 s71, {WS_WOT}")
    a("s_cmp_lt_u32 s2, 172")
    a("s_cselect_b32 s61, 86, 32")
    a(f"s_cselect_b32 s62, {WS_W2T}, s71")
    a("s_lshl_b32 s63, s56, 2")
    a("s_add_u32 s63, s63, s5")
    a("s_mul_i32 s63, s63, s61")
    a("s_lshl_b32 s64, s55, 1")
    a("s_add_u32 s63, s63, s64")
    a("s_lshl_b32 s63, s63, 10")
    a("s_add_u32 s62, s62, s63")
    a("s_waitcnt lgkmcnt(0)")
    a(f"buffer_store_dwordx4 {v(TT,4)}, v{vSideB}, s[20:23], s62 offen{STF}")
    a(f"buffer_store_dwordx4 {v(TT+4,4)}, v{vSideB}, s[20:23], s62 offen offset:1024{STF}")
    a.label("K1_END")
    if STAMP:
        a("s_waitcnt vmcnt(0)")
        a("s_memtime s[90:91]")
        a("s_memrealtime s[94:95]")
        a("s_waitcnt lgkmcnt(0)")
        a("v_mov_b32 v4, s92")
        a("v_mov_b32 v5, s94")
        a("s_lshl_b32 s87, s2, 4")
        a("s_add_u32 s87, s87, s5")
        a("s_lshl_b32 s87, s87, 3")
        a("s_add_u32 s87, s87, 0x1700000")
        a("v_mov_b32 v8, 0")
        a("buffer_store_dwordx2 v[4:5], v8, s[20:23], s87 offen")
        a("s_cmp_lg_u32 s2, 5")
        a("s_cbranch_scc1 K1_END2")
        a("s_cmp_ge_u32 s5, 8")
        a("s_cbranch_scc1 K1_END2")
        a("s_sub_u32 s74, s74, s72")
        a("s_sub_u32 s76, s76, s72")
        a("s_sub_u32 s78, s78, s72")
        a("s_sub_u32 s90, s90, s72")
        a("v_mov_b32 v4, s74")
        a("v_mov_b32 v5, s76")
        a("v_mov_b32 v6, s78")
        a("v_mov_b32 v7, s90")
        a("s_lshl_b32 s87, s5, 4")
        a("v_mov_b32 v8, s87")
        a("global_store_dwordx4 v8, v[4:7], s[84:85]")
    a.label("K1_END2")
    a("s_endpgm")
    return a.text(), nvgpr
```

```python
from asmlib import *
from layout import *
import struct, os
STAMP = os.environ.get('STAMP') == '1'

XB = 16384
WB = 12288
NBUF = int(os.environ.get('NBUF', '3'))
WQ0 = NBUF * XB
WF0 = WQ0 + NBUF * WB
K1_LDS = WF0 + NBUF * WB
WSTR = 192
K1_THREADS = 768
STF = os.environ.get('STF', ' nt')
STQ = os.environ.get('STQ', ' nt')
QSCALE = 0.25 * 1.4426950408889634

def f2u(f):
    return struct.unpack("<I", struct.pack("<f", f))[0]

def gen_k1():
    a = Asm()
    R = RegAlloc(4)
    vXg = R.alloc(2)
    vWq = R.alloc(); vWf = R.alloc()
    vXr = R.alloc(4)
    vWrQ = R.alloc(); vWrF = R.alloc()
    vTok = R.alloc()
    vSideA = R.alloc(); vSideB = R.alloc(); vBias = R.alloc()
    vt = [R.alloc() for _ in range(6)]
    side = R.alloc(20, 4)
    biasR = R.alloc(8, 4)
    frag = [R.alloc(12, 4), R.alloc(12, 4)]
    ACC = R.alloc(32, 4)
    tmp = R.alloc(56, 4)
    nvgpr = R.next
    sideT = side; sideX = side + 8; sideW = side + 16

    a("s_cmp_ge_u32 s2, 256")
    a("s_cbranch_scc1 K1_END2")
    if STAMP:
        a("s_memtime s[72:73]")
        a("s_memrealtime s[92:93]")
        a("s_load_dwordx2 s[84:85], s[0:1], 72")
    a("s_load_dwordx16 s[36:51], s[0:1], 0")
    a("s_load_dwordx2 s[52:53], s[0:1], 80")
    a("s_and_b32 s3, s2, 15")
    a("s_lshr_b32 s4, s2, 4")
    a("v_lshrrev_b32 v1, 6, v0")
    a("s_nop 0")
    a("v_readfirstlane_b32 s5, v1")
    a("v_and_b32 v1, 63, v0")
    a("v_and_b32 v2, 31, v0")
    a("v_bfe_u32 v3, v0, 5, 1")
    a("s_and_b32 s6, s5, 3")
    a("s_lshr_b32 s7, s5, 2")
    t = vt
    a(f"v_lshrrev_b32 v{t[0]}, 3, v1")
    a(f"v_and_b32 v{t[1]}, 7, v1")
    a(f"v_lshrrev_b32 v{t[2]}, 1, v{t[0]}")
    a("s_lshl_b32 s60, s3, 7")
    a("s_lshl_b32 s61, s5, 3")
    a("s_add_u32 s60, s60, s61")
    a(f"v_add_u32 v{t[3]}, s60, v{t[0]}")
    a(f"v_lshlrev_b32 v{t[3]}, 10, v{t[3]}")
    a("s_and_b32 s61, s5, 1")
    a("s_lshl_b32 s61, s61, 2")
    a(f"v_xor_b32 v{t[4]}, s61, v{t[2]}")
    a(f"v_xor_b32 v{t[4]}, v{t[4]}, v{t[1]}")
    a(f"v_lshl_add_u32 v{vXg}, v{t[4]}, 4, v{t[3]}")
    a(f"v_add_u32 v{vXg+1}, {96*1024}, v{vXg}")
    a("s_lshl_b32 s60, s5, 6")
    a("s_mul_i32 s61, s4, 192")
    a(f"v_add_u32 v{t[0]}, s60, v1")
    a(f"v_mul_u32_u24 v{t[1]}, 43691, v{t[0]}")
    a(f"v_lshrrev_b32 v{t[1]}, 19, v{t[1]}")
    a(f"v_mul_u32_u24 v{t[2]}, 12, v{t[1]}")
    a(f"v_sub_u32 v{t[2]}, v{t[0]}, v{t[2]}")
    a(f"v_lshlrev_b32 v{t[2]}, 4, v{t[2]}")
    a(f"v_add_u32 v{t[2]}, s61, v{t[2]}")
    a(f"v_mul_u32_u24 v{t[3]}, 3072, v{t[1]}")
    a(f"v_add_u32 v{vWq}, v{t[3]}, v{t[2]}")
    a(f"v_mul_u32_u24 v{t[3]}, 2752, v{t[1]}")
    a(f"v_add_u32 v{vWf}, v{t[3]}, v{t[2]}")
    a("s_lshl_b32 s67, s5, 10")
    a("s_waitcnt lgkmcnt(0)")
    srd(a, 8, 36, 2097152)
    srd(a, 12, 38, 1572864)
    srd(a, 16, 44, 1409024)

    def issue_loads(st):
        b = st % NBUF
        lab = a.newlabel("K1_NOX2")
        a(f"s_mov_b32 s60, {st*64*3072}")
        a(f"s_mov_b32 s61, {st*64*2752}")
        a(f"s_mov_b32 s62, {st*128}")
        a(f"s_add_u32 m0, s67, {b*XB}")
        a("s_nop 0")
        a(f"buffer_load_dwordx4 v{vXg}, s[8:11], s62 offen lds")
        a(f"s_add_u32 m0, s67, {WQ0 + b*WB}")
        a("s_nop 0")
        a(f"buffer_load_dwordx4 v{vWq}, s[12:15], s60 offen lds")
        a(f"s_add_u32 m0, s67, {WF0 + b*WB}")
        a("s_nop 0")
        a(f"buffer_load_dwordx4 v{vWf}, s[16:19], s61 offen lds")
        a("s_cmp_ge_u32 s5, 4")
        a(f"s_cbranch_scc1 {lab}")
        a(f"s_add_u32 m0, s67, {b*XB + 12*1024}")
        a("s_nop 0")
        a(f"buffer_load_dwordx4 v{vXg+1}, s[8:11], s62 offen lds")
        a.label(lab)
    def wait_vm(nstages_after, extra=0):
        l1 = a.newlabel("K1_W"); l2 = a.newlabel("K1_W")
        a("s_cmp_ge_u32 s5, 4")
        a(f"s_cbranch_scc1 {l1}")
        a(f"s_waitcnt vmcnt({4*nstages_after + extra})")
        a(f"s_branch {l2}")
        a.label(l1)
        a(f"s_waitcnt vmcnt({3*nstages_after + extra})")
        a.label(l2)
    for st0 in range(NBUF - 1):
        issue_loads(st0)

    srd(a, 20, 52, WS_SIZE)
    srd(a, 24, 46, 2752)
    srd(a, 32, 50, 1024)
    a("s_sub_u32 s54, s2, 172")
    a("s_mov_b32 s70, 524288")
    a("s_cmp_lt_u32 s2, 172")
    a("s_cselect_b32 s28, s48, s40")
    a("s_cselect_b32 s29, s49, s41")
    a("s_cselect_b32 s30, 1409024, s70")
    a("s_cselect_b32 s54, s2, s54")
    a("s_and_b32 s29, s29, 0xffff")
    a("s_mov_b32 s31, 0x00020000")
    a("s_lshr_b32 s55, s54, 2")
    a("s_and_b32 s56, s54, 3")
    a(f"v_lshrrev_b32 v{t[0]}, 4, v0")
    a(f"v_and_b32 v{t[1]}, 15, v0")
    a(f"v_lshlrev_b32 v{t[0]}, 10, v{t[0]}")
    a(f"v_lshl_add_u32 v{vSideA}, v{t[1]}, 4, v{t[0]}")
    a("s_lshl_b32 s57, s55, 15")
    a("s_lshl_b32 s58, s56, 8")
    a("s_add_u32 s57, s57, s58")
    a("s_add_u32 s58, s57, 16384")
    a(f"v_lshlrev_b32 v{vSideB}, 4, v1")
    a("s_lshl_b32 s59, s2, 3")
    a("s_lshl_b32 s60, s6, 1")
    a("s_add_u32 s59, s59, s60")
    a("s_lshl_b32 s68, s59, 10")
    a("s_add_u32 s69, s68, 1024")
    a(f"v_lshlrev_b32 v{vBias}, 3, v3")
    a("s_mul_i32 s71, s4, 192")
    a("s_lshl_b32 s60, s7, 6")
    a("s_add_u32 s71, s71, s60")
    a("s_lshl_b32 s60, s6, 5")
    a(f"v_add_u32 v{t[0]}, s60, v2")
    a(f"v_lshlrev_b32 v{t[0]}, 7, v{t[0]}")
    a(f"v_bfe_u32 v{t[1]}, v2, 1, 3")
    for ks in range(4):
        a(f"v_add_u32 v{t[2]}, {2*ks}, v3")
        a(f"v_xor_b32 v{t[2]}, v{t[2]}, v{t[1]}")
        a(f"v_lshl_add_u32 v{vXr+ks}, v{t[2]}, 4, v{t[0]}")
    a(f"v_bfe_u32 v{t[0]}, v0, 2, 2")
    a(f"v_lshl_add_u32 v{t[0]}, v3, 3, v{t[0]}")
    a(f"v_mul_u32_u24 v{t[0]}, {WSTR}, v{t[0]}")
    a(f"v_and_b32 v{t[1]}, 3, v0")
    a(f"v_lshlrev_b32 v{t[1]}, 3, v{t[1]}")
    a(f"v_bfe_u32 v{t[2]}, v0, 4, 1")
    a(f"v_lshl_add_u32 v{t[1]}, v{t[2]}, 5, v{t[1]}")
    a(f"v_add_u32 v{t[0]}, v{t[0]}, v{t[1]}")
    a("s_lshl_b32 s60, s7, 6")
    a(f"v_add_u32 v{t[0]}, s60, v{t[0]}")
    a(f"v_add_u32 v{vWrQ}, {WQ0}, v{t[0]}")
    a(f"v_add_u32 v{vWrF}, {WF0}, v{t[0]}")
    a("s_lshl_b32 s60, s3, 7")
    a("s_lshl_b32 s61, s6, 5")
    a("s_add_u32 s66, s60, s61")
    a(f"v_add_u32 v{vTok}, s66, v2")
    a("s_mov_b32 s80, 2.0")
    a("s_mov_b32 s81, 2.0")
    a("s_mov_b32 s82, 0x3fb8aa3b")
    a("s_mov_b32 s83, 0x3fb8aa3b")

    def read_ops(j):
        st, ks = j // 4, j % 4
        b = st % NBUF; f = frag[j % 2]
        ops = [f"ds_read_b128 {v(f+8,4)}, v{vXr+ks} offset:{b*XB}"]
        for ft in range(2):
            base = vWrQ if ft == 0 else vWrF
            for half in range(2):
                ops.append(f"ds_read_b64_tr_b16 {v(f+4*ft+2*half,2)}, v{base} offset:{b*WB + ks*16*WSTR + half*4*WSTR}")
        return ops
    def mfma_ops(j):
        f = frag[j % 2]
        ops = []
        for ft in range(2):
            d = ACC + 16 * ft
            c = "0" if j == 0 else v(d, 16)
            ops.append(f"v_mfma_f32_32x32x16_bf16 {v(d,16)}, {v(f+4*ft,4)}, {v(f+8,4)}, {c}")
        return ops

    wait_vm(NBUF - 2)
    a("s_barrier")
    if STAMP: a("s_memtime s[74:75]")
    for o in read_ops(0): a(o)
    for j in range(32):
        st, ks = j // 4, j % 4
        a("s_waitcnt lgkmcnt(0)")
        if ks == 3 and st < 7:
            wait_vm(max(0, min(st + NBUF - 1, 7) - (st + 1)))
            a("s_barrier")
        m = mfma_ops(j)
        a(m[0])
        if j < 31:
            for o in read_ops(j + 1): a(o)
        a(m[1])
        if ks == 0 and st + NBUF - 1 <= 7:
            issue_loads(st + NBUF - 1)
        if j == 28:
            for q in range(4):
                a(f"buffer_load_dwordx2 {v(biasR+2*q,2)}, v{vBias}, s[24:27], s71 offen offset:{16*q}")
            lab = a.newlabel("K1_NOSIDE"); lab2 = a.newlabel("K1_NOSIDE")
            a("s_cmp_lg_u32 s7, 0")
            a(f"s_cbranch_scc1 {lab}")
            a(f"buffer_load_dwordx4 {v(sideT,4)}, v{vSideA}, s[28:31], s57 offen")
            a(f"buffer_load_dwordx4 {v(sideT+4,4)}, v{vSideA}, s[28:31], s58 offen")
            a.label(lab)
            a("s_cmp_lg_u32 s7, 1")
            a(f"s_cbranch_scc1 {lab2}")
            a(f"buffer_load_dwordx4 {v(sideX,4)}, v{vSideB}, s[8:11], s68 offen")
            a(f"buffer_load_dwordx4 {v(sideX+4,4)}, v{vSideB}, s[8:11], s69 offen")
            a(f"buffer_load_dwordx4 {v(sideW,4)}, v{vSideB}, s[32:35], 0 offen")
            a.label(lab2)
    if STAMP: a("s_memtime s[76:77]")
    TS = 320
    a("s_barrier")
    a("s_waitcnt vmcnt(0)")
    a("s_cmp_ge_u32 s5, 4")
    a("s_cbranch_scc1 K1_NOT1")
    a(f"v_lshrrev_b32 v{t[0]}, 4, v0")
    a(f"v_and_b32 v{t[1]}, 15, v0")
    a(f"v_mul_u32_u24 v{t[0]}, {TS}, v{t[0]}")
    a(f"v_lshl_add_u32 v{t[0]}, v{t[1]}, 4, v{t[0]}")
    a(f"ds_write_b128 v{t[0]}, {v(sideT,4)}")
    a(f"ds_write_b128 v{t[0]}, {v(sideT+4,4)} offset:{16*TS}")
    a.label("K1_NOT1")
    a("s_nop 15")
    P = tmp; T = tmp + 8; U = tmp + 24; BU = tmp + 40
    vA = vt[0]
    D = ACC
    a("s_mul_i32 s60, s4, 3")
    a("s_add_u32 s60, s60, s7")
    a("s_lshr_b32 s61, s60, 4")
    a("s_and_b32 s62, s60, 15")
    a("s_lshl_b32 s63, s61, 21")
    a("s_lshl_b32 s62, s62, 17")
    a("s_add_u32 s63, s63, s62")
    a("s_add_u32 s64, s63, 65536")
    a("s_cmp_eq_u32 s61, 0")
    a(f"s_cselect_b32 s86, {f2u(QSCALE)}, 1.0")
    a(f"s_cselect_b32 s87, {f2u(QSCALE)}, 1.0")
    for i in range(8):
        a(f"v_pk_mul_f32 {v(D+2*i,2)}, {v(D+2*i,2)}, s[86:87]")
    for i in range(8):
        a(f"v_cvt_pk_bf16_f32 v{P+i}, v{D+2*i}, v{D+2*i+1}")
    a(f"v_lshlrev_b32 v{vA}, 5, v{vTok}")
    a(f"v_lshl_add_u32 v{vA}, v3, 4, v{vA}")
    a(f"v_permlane32_swap_b32 v{P+0}, v{P+2}")
    a(f"v_permlane32_swap_b32 v{P+1}, v{P+3}")
    a(f"v_permlane32_swap_b32 v{P+4}, v{P+6}")
    a("s_nop 0")
    a(f"v_permlane32_swap_b32 v{P+5}, v{P+7}")
    a("s_nop 1")
    a(f"buffer_store_dwordx4 {v(P,4)}, v{vA}, s[20:23], s63 offen{STQ}")
    a(f"buffer_store_dwordx4 {v(P+4,4)}, v{vA}, s[20:23], s64 offen{STQ}")
    a("s_nop 1")
    D = ACC + 16
    a("s_cmp_ge_u32 s60, 43")
    a("s_cbranch_scc1 K1_SKIPF")
    a("s_lshl_b32 s62, s60, 11")
    a(f"s_add_u32 s61, s62, {WS_ACT}")
    for q in range(8):
        a(f"v_lshlrev_b32 v{BU+2*q}, 16, v{biasR+q}")
        a(f"v_and_b32 v{BU+2*q+1}, 0xffff0000, v{biasR+q}")
    for i in range(8):
        a(f"v_pk_add_f32 {v(D+2*i,2)}, {v(D+2*i,2)}, {v(BU+2*i,2)}")
    for i in range(16):
        a(f"v_min_f32 v{T+i}, 0x41a00000, v{D+i}")
    for i in range(8):
        a(f"v_pk_mul_f32 {v(T+2*i,2)}, {v(T+2*i,2)}, s[82:83]")
    for i in range(16):
        a(f"v_exp_f32 v{T+i}, v{T+i}")
    for i in range(8):
        a(f"v_pk_add_f32 {v(U+2*i,2)}, {v(T+2*i,2)}, s[80:81]")
    for i in range(8):
        a(f"v_pk_mul_f32 {v(T+2*i,2)}, {v(T+2*i,2)}, {v(U+2*i,2)}")
    for i in range(8):
        a(f"v_pk_add_f32 {v(U+2*i,2)}, {v(T+2*i,2)}, s[80:81]")
    for i in range(16):
        a(f"v_rcp_f32 v{U+i}, v{U+i}")
    for i in range(8):
        a(f"v_pk_mul_f32 {v(T+2*i,2)}, {v(T+2*i,2)}, {v(U+2*i,2)}")
    for i in range(8):
        a(f"v_pk_mul_f32 {v(D+2*i,2)}, {v(D+2*i,2)}, {v(T+2*i,2)}")
    for i in range(8):
        a(f"v_cvt_pk_bf16_f32 v{P+i}, v{D+2*i}, v{D+2*i+1}")
    a(f"s_lshr_b32 s62, s66, 5")
    a(f"s_mul_i32 s62, s62, {86*1024}")
    a("s_add_u32 s61, s61, s62")
    a(f"v_permlane32_swap_b32 v{P+0}, v{P+2}")
    a(f"v_permlane32_swap_b32 v{P+1}, v{P+3}")
    a(f"v_permlane32_swap_b32 v{P+4}, v{P+6}")
    a(f"v_permlane32_swap_b32 v{P+5}, v{P+7}")
    a("s_nop 1")
    a(f"buffer_store_dwordx4 {v(P,4)}, v{vSideB}, s[20:23], s61 offen{STF}")
    a(f"buffer_store_dwordx4 {v(P+4,4)}, v{vSideB}, s[20:23], s61 offen offset:1024{STF}")
    a("s_nop 1")
    a.label("K1_SKIPF")
    if STAMP: a("s_memtime s[78:79]")
    a("s_waitcnt lgkmcnt(0)")
    a("s_barrier")
    a("s_cmp_eq_u32 s7, 0")
    a("s_cbranch_scc1 K1_TRANS")
    a("s_cmp_lg_u32 s7, 1")
    a("s_cbranch_scc1 K1_END")

    G = tmp
    for i in range(4):
        a(f"v_lshlrev_b32 v{G+2*i}, 16, v{sideW+i}")
        a(f"v_and_b32 v{G+2*i+1}, 0xffff0000, v{sideW+i}")
    S = [vt[2], vt[3]]
    for tk in range(2):
        X = G + 8
        for i in range(4):
            a(f"v_lshlrev_b32 v{X+2*i}, 16, v{sideX+4*tk+i}")
            a(f"v_and_b32 v{X+2*i+1}, 0xffff0000, v{sideX+4*tk+i}")
        for i in range(8):
            a(f"v_mul_f32 v{X+i}, v{X+i}, v{G+i}")
        for i in range(4):
            a(f"v_cvt_pk_bf16_f32 v{X+8+i}, v{X+2*i}, v{X+2*i+1}")
        for i in range(4):
            a(f"v_lshlrev_b32 v{X+2*i}, 16, v{X+8+i}")
            a(f"v_and_b32 v{X+2*i+1}, 0xffff0000, v{X+8+i}")
        a(f"v_add_f32 v{X}, v{X}, v{X+1}")
        a(f"v_add_f32 v{X+2}, v{X+2}, v{X+3}")
        a(f"v_add_f32 v{X+4}, v{X+4}, v{X+5}")
        a(f"v_add_f32 v{X+6}, v{X+6}, v{X+7}")
        a(f"v_add_f32 v{X}, v{X}, v{X+2}")
        a(f"v_add_f32 v{X+4}, v{X+4}, v{X+6}")
        a(f"v_add_f32 v{S[tk]}, v{X}, v{X+4}")
    for ctl in ("row_shr:1 row_mask:0xf bank_mask:0xf bound_ctrl:0", "row_shr:2 row_mask:0xf bank_mask:0xf bound_ctrl:0",
                "row_shr:4 row_mask:0xf bank_mask:0xf bound_ctrl:0", "row_shr:8 row_mask:0xf bank_mask:0xf bound_ctrl:0",
                "row_bcast:15 row_mask:0xa bank_mask:0xf", "row_bcast:31 row_mask:0xc bank_mask:0xf"):
        a("s_nop 1")
        a(f"v_add_f32_dpp v{S[0]}, v{S[0]}, v{S[0]} {ctl}")
        a(f"v_add_f32_dpp v{S[1]}, v{S[1]}, v{S[1]} {ctl}")
    a(f"v_cvt_pk_bf16_f32 v{G}, v{S[0]}, v{S[1]}")
    a(f"v_lshlrev_b32 v{G+1}, 16, v{G}")
    a(f"v_and_b32 v{G+2}, 0xffff0000, v{G}")
    for i in (1, 2):
        a(f"v_mul_f32 v{G+i}, 0xbfb8aa3b, v{G+i}")
    for i in (1, 2):
        a(f"v_exp_f32 v{G+i}, v{G+i}")
    a("s_nop 0")
    for i in (1, 2):
        a(f"v_add_f32 v{G+i}, 1.0, v{G+i}")
    for i in (1, 2):
        a(f"v_rcp_f32 v{G+i}, v{G+i}")
    a("s_nop 0")
    a(f"v_cvt_pk_bf16_f32 v{G}, v{G+1}, v{G+2}")
    a(f"v_lshlrev_b32 v{G+4}, 16, v{G}")
    a(f"v_and_b32 v{G+5}, 0xffff0000, v{G}")
    a(f"v_sub_f32 v{G+6}, 1.0, v{G+4}")
    a(f"v_sub_f32 v{G+7}, 1.0, v{G+5}")
    a(f"v_cvt_pk_bf16_f32 v{G}, v{G+6}, v{G+7}")
    a(f"v_lshlrev_b32 v{G+6}, 16, v{G}")
    a(f"v_and_b32 v{G+7}, 0xffff0000, v{G}")
    a("s_lshl_b32 s60, s59, 2")
    a(f"s_add_u32 s61, s60, {WS_OMG}")
    a(f"s_add_u32 s60, s60, {WS_G}")
    a(f"v_mov_b32 v{vt[4]}, 0")
    a("v_cmp_eq_u32 vcc, 63, v1")
    a("s_and_saveexec_b64 s[88:89], vcc")
    a(f"buffer_store_dwordx2 {v(G+4,2)}, v{vt[4]}, s[20:23], s60 offen")
    a(f"buffer_store_dwordx2 {v(G+6,2)}, v{vt[4]}, s[20:23], s61 offen")
    a("s_lshl_b32 s60, s2, 2")
    a(f"s_add_u32 s60, s60, {WS_FLAG}")
    a(f"buffer_store_dword v{vt[4]}, v{vt[4]}, s[20:23], s60 offen")
    a("s_mov_b64 exec, s[88:89]")
    a("s_branch K1_END")
    a.label("K1_TRANS")
    a("s_cmp_ge_u32 s2, 236")
    a("s_cbranch_scc1 K1_END")
    TT = tmp + 32
    a(f"v_bfe_u32 v{t[0]}, v0, 2, 2")
    a(f"v_lshl_add_u32 v{t[0]}, v3, 3, v{t[0]}")
    a(f"v_mul_u32_u24 v{t[0]}, {TS}, v{t[0]}")
    a(f"v_and_b32 v{t[1]}, 3, v0")
    a(f"v_lshlrev_b32 v{t[1]}, 3, v{t[1]}")
    a(f"v_bfe_u32 v{t[4]}, v0, 4, 1")
    a(f"v_lshl_add_u32 v{t[1]}, v{t[4]}, 5, v{t[1]}")
    a(f"v_add_u32 v{t[0]}, v{t[0]}, v{t[1]}")
    a("s_lshl_b32 s60, s5, 6")
    a(f"v_add_u32 v{t[0]}, s60, v{t[0]}")
    for i in range(2):
        for half in range(2):
            a(f"ds_read_b64_tr_b16 {v(TT+4*i+2*half,2)}, v{t[0]} offset:{i*16*TS + half*4*TS}")
    a(f"s_mov_b32 s71, {WS_WOT}")
    a("s_cmp_lt_u32 s2, 172")
    a("s_cselect_b32 s61, 86, 32")
    a(f"s_cselect_b32 s62, {WS_W2T}, s71")
    a("s_lshl_b32 s63, s56, 2")
    a("s_add_u32 s63, s63, s5")
    a("s_mul_i32 s63, s63, s61")
    a("s_lshl_b32 s64, s55, 1")
    a("s_add_u32 s63, s63, s64")
    a("s_lshl_b32 s63, s63, 10")
    a("s_add_u32 s62, s62, s63")
    a("s_waitcnt lgkmcnt(0)")
    a(f"buffer_store_dwordx4 {v(TT,4)}, v{vSideB}, s[20:23], s62 offen{STF}")
    a(f"buffer_store_dwordx4 {v(TT+4,4)}, v{vSideB}, s[20:23], s62 offen offset:1024{STF}")
    a.label("K1_END")
    if STAMP:
        a("s_waitcnt vmcnt(0)")
        a("s_memtime s[90:91]")
        a("s_memrealtime s[94:95]")
        a("s_waitcnt lgkmcnt(0)")
        a("v_mov_b32 v4, s92")
        a("v_mov_b32 v5, s94")
        a("s_lshl_b32 s87, s2, 4")
        a("s_add_u32 s87, s87, s5")
        a("s_lshl_b32 s87, s87, 3")
        a("s_add_u32 s87, s87, 0x1700000")
        a("v_mov_b32 v8, 0")
        a("buffer_store_dwordx2 v[4:5], v8, s[20:23], s87 offen")
        a("s_cmp_lg_u32 s2, 5")
        a("s_cbranch_scc1 K1_END2")
        a("s_cmp_ge_u32 s5, 8")
        a("s_cbranch_scc1 K1_END2")
        a("s_sub_u32 s74, s74, s72")
        a("s_sub_u32 s76, s76, s72")
        a("s_sub_u32 s78, s78, s72")
        a("s_sub_u32 s90, s90, s72")
        a("v_mov_b32 v4, s74")
        a("v_mov_b32 v5, s76")
        a("v_mov_b32 v6, s78")
        a("v_mov_b32 v7, s90")
        a("s_lshl_b32 s87, s5, 4")
        a("v_mov_b32 v8, s87")
        a("global_store_dwordx4 v8, v[4:7], s[84:85]")
    a.label("K1_END2")
    a("s_endpgm")
    return a.text(), nvgpr
```

```python
from asmlib import *
from layout import *
import os
STAMP = os.environ.get('STAMP') == '1'
PRIO_SWITCH = int(os.environ.get('PRIO_SWITCH', '5'))
VARIANT = int(os.environ.get('VARIANT', '0'))
MERGE = int(os.environ.get('MERGE', '1'))
ONEROW = int(os.environ.get('ONEROW', '0'))
KMAX_ADDR = 131072 + 8192
HELP = int(os.environ.get('HELP', '0'))
HFLAG = KMAX_ADDR + 128
PART = KMAX_ADDR + 256
K2_LDS = PART + (8 * 2304 if HELP else 0)

def direct_gemm(a, vA, vB, nsteps, D, base, acc, srd_="s[8:11]", nv_slots=None, flagB=""):
    def reg(sl, off):
        if nv_slots is not None and sl >= nv_slots:
            b = 8 * (sl - nv_slots) + off
            return f"a[{b}:{b+3}]"
        return v(base + 8 * sl + off, 4)
    def issue(j):
        sl = j % D
        if j % 4 == 0:
            a(f"s_mov_b32 s40, {(j//4)*4096}")
        a(f"buffer_load_dwordx4 {reg(sl,0)}, v{vA}, {srd_}, s40 offen offset:{(j%4)*1024}")
        a(f"buffer_load_dwordx4 {reg(sl,4)}, v{vB}, {srd_}, s40 offen offset:{(j%4)*1024}{flagB}")
    for j in range(min(D, nsteps)):
        issue(j)
    for j in range(nsteps):
        out = min(D, nsteps - j) - 1
        a(f"s_waitcnt vmcnt({min(63, 2*out)})")
        sl = j % D
        c = "0" if j == 0 else v(acc, 16)
        a(f"v_mfma_f32_32x32x16_bf16 {v(acc,16)}, {reg(sl,0)}, {reg(sl,4)}, {c}")
        if j + D < nsteps:
            issue(j + D)

def stamp_end(a):
    if not STAMP: return
    a("s_waitcnt vmcnt(0)")
    a("s_memtime s[78:79]")
    a("s_memrealtime s[92:93]")
    a("s_waitcnt lgkmcnt(0)")
    a("v_mov_b32 v4, s90")
    a("v_mov_b32 v5, s92")
    a("s_lshl_b32 s87, s2, 4")
    a("s_add_u32 s87, s87, s88")
    a("s_lshl_b32 s87, s87, 3")
    a("s_add_u32 s87, s87, 0x1400000")
    a("v_mov_b32 v8, 0")
    a("buffer_store_dwordx2 v[4:5], v8, s[8:11], s87 offen")
    a("s_sub_u32 s74, s74, s72")
    a("s_sub_u32 s76, s76, s72")
    a("s_sub_u32 s78, s78, s72")
    a("v_mov_b32 v4, s74")
    a("v_mov_b32 v5, s76")
    a("v_mov_b32 v6, s78")
    a("v_mov_b32 v7, 0")
    a("s_lshl_b32 s87, s2, 4")
    a("s_add_u32 s87, s87, s88")
    a("s_lshl_b32 s87, s87, 4")
    a("s_add_u32 s87, s87, 0x1600000")
    a("buffer_store_dwordx4 v[4:7], v8, s[8:11], s87 offen")

def gen_k2():
    a = Asm()
    R = RegAlloc(4)
    vQ = R.alloc(4, 4)
    vKa = R.alloc(); vVa = R.alloc(); vVinc = R.alloc()
    vKa0 = R.alloc(); vVa0 = R.alloc()
    vt = [R.alloc() for _ in range(6)]
    mA = R.alloc(); mB = R.alloc()
    KF = [R.alloc(4, 4) for _ in range(4)]
    S = [R.alloc(16, 4) for _ in range(4)]
    C = R.alloc(16, 4)
    P = [R.alloc(8, 4) for _ in range(2)]
    VF = [R.alloc(8, 4) for _ in range(2)]
    O = R.alloc(16, 4)
    nv_att = R.next

    a("s_cmp_ge_u32 s2, 256")
    a("s_cbranch_scc1 K2_END")
    if STAMP:
        a("s_memtime s[72:73]")
        a("s_memrealtime s[90:91]")
        a("s_load_dwordx2 s[84:85], s[0:1], 72")
    a("s_load_dwordx2 s[52:53], s[0:1], 80")
    a("s_load_dwordx4 s[56:59], s[0:1], 64")
    a("v_lshrrev_b32 v1, 6, v0")
    a("s_nop 0")
    a("v_readfirstlane_b32 s5, v1")
    a("v_and_b32 v1, 63, v0")
    a("v_and_b32 v2, 31, v0")
    a("v_bfe_u32 v3, v0, 5, 1")
    a("s_waitcnt lgkmcnt(0)")
    srd(a, 8, 52, WS_SIZE)
    srd(a, 44, 56, 2097152)
    if STAMP: a("s_mov_b32 s88, s5")
    a("s_cmp_ge_u32 s5, 8")
    a("s_cbranch_scc1 K2_FFN")
    a("s_and_b32 s3, s2, 7")
    a("s_lshl_b32 s3, s3, 2")
    a("s_lshr_b32 s4, s2, 6")
    a("s_add_u32 s3, s3, s4")
    a("s_lshr_b32 s4, s2, 3")
    a("s_and_b32 s4, s4, 7")
    a("s_lshl_b32 s6, s3, 16")
    t = vt
    a(f"v_lshlrev_b32 v{t[0]}, 4, v0")
    stgK = S[0]; stgV = S[2]
    for i in range(8):
        a(f"s_add_u32 s7, s6, {WS_K + i*8192}")
        a(f"buffer_load_dwordx4 {v(stgK+4*i,4)}, v{t[0]}, s[8:11], s7 offen")
    a("s_lshl_b32 s12, s4, 8")
    a("s_lshl_b32 s13, s5, 5")
    a("s_add_u32 s12, s12, s13")
    a(f"v_add_u32 v{t[1]}, s12, v2")
    a(f"v_lshlrev_b32 v{t[2]}, 5, v{t[1]}")
    a(f"v_lshl_add_u32 v{t[2]}, v3, 4, v{t[2]}")
    a(f"s_add_u32 s7, s6, {WS_Q}")
    a(f"buffer_load_dwordx4 {v(vQ,4)}, v{t[2]}, s[8:11], s7 offen")
    a(f"v_lshlrev_b32 v{t[5]}, 4, v1")
    a("s_lshl_b32 s13, s5, 10")
    for i in range(8):
        a(f"s_add_u32 m0, s13, {65536 + i*8192}")
        a(f"s_add_u32 s7, s6, {WS_V + i*8192}")
        a("s_add_u32 s7, s7, s13")
        a(f"buffer_load_dwordx4 v{t[5]}, s[8:11], s7 offen lds")
    if ONEROW:
        a(f"v_and_b32 v{C+1}, 1, v0")
        a(f"v_cmp_eq_u32 vcc, 0, v{C+1}")
        a(f"v_mov_b32 v{C+2}, 0x3f80")
        a(f"v_mov_b32 v{C+1}, 0")
        a(f"v_mov_b32 v{C+3}, 0")
        a(f"v_cndmask_b32 v{C}, v{C+1}, v{C+2}, vcc")
        a(f"v_mov_b32 v{C+2}, 0")
    else:
        for i in range(4):
            a(f"v_mov_b32 v{C+i}, 0x3f803f80")
    a(f"v_add_u32 v{t[3]}, 131072, v{t[0]}")
    a(f"ds_write_b128 v{t[3]}, {v(C,4)}")
    a("s_lshl_b32 s13, s5, 2")
    a(f"s_add_u32 s13, s13, {KMAX_ADDR}")
    a(f"v_mov_b32 v{t[4]}, s13")
    if MERGE:
        a(f"v_mov_b32 v{t[5]}, 0")
        a(f"v_mov_b32 v{t[3]}, {KMAX_ADDR}")
        a(f"ds_write_b32 v{t[3]}, v{t[5]} offset:64")
    if HELP:
        a(f"v_mov_b32 v{t[5]}, 0")
        a(f"ds_write_b32 v{t[4]}, v{t[5]} offset:128")
    a("s_waitcnt vmcnt(9)")
    for i in range(8):
        a(f"ds_write_b128 v{t[0]}, {v(stgK+4*i,4)} offset:{i*8192}")
    N = P[0]
    N2 = P[1]
    for i in range(8):
        a(f"v_dot2_f32_bf16 v{N+i}, v{stgK+4*i}, v{stgK+4*i}, 0")
    for r in range(1, 4):
        for i in range(8):
            a(f"v_dot2_f32_bf16 v{N+i}, v{stgK+4*i+r}, v{stgK+4*i+r}, v{N+i}")
    a("s_nop 3")
    for i in range(8):
        a(f"v_add_f32_dpp v{N2+i}, v{N+i}, v{N+i} quad_perm:[1,0,3,2] row_mask:0xf bank_mask:0xf")
    a(f"v_max3_f32 v{N}, v{N2}, v{N2+1}, v{N2+2}")
    a(f"v_max3_f32 v{N+1}, v{N2+3}, v{N2+4}, v{N2+5}")
    a(f"v_max3_f32 v{N}, v{N}, v{N2+6}, v{N2+7}")
    a(f"v_max_f32 v{N}, v{N}, v{N+1}")
    for ctl in ("row_shr:1 row_mask:0xf", "row_shr:2 row_mask:0xf", "row_shr:4 row_mask:0xf", "row_shr:8 row_mask:0xf",
                "row_bcast:15 row_mask:0xa", "row_bcast:31 row_mask:0xc"):
        a("s_nop 1")
        a(f"v_max_f32_dpp v{N}, v{N}, v{N} {ctl} bank_mask:0xf")
    a("v_cmp_eq_u32 vcc, 63, v1")
    a("s_and_saveexec_b64 s[14:15], vcc")
    a(f"ds_write_b32 v{t[4]}, v{N}")
    a("s_mov_b64 exec, s[14:15]")
    a(f"v_lshlrev_b32 v{vKa0}, 5, v2")
    a(f"v_lshl_add_u32 v{vKa0}, v3, 4, v{vKa0}")
    a(f"v_bfe_u32 v{t[1]}, v0, 2, 2")
    a(f"v_lshl_add_u32 v{t[1]}, v3, 2, v{t[1]}")
    a(f"v_lshlrev_b32 v{t[1]}, 5, v{t[1]}")
    a(f"v_and_b32 v{t[2]}, 3, v0")
    a(f"v_lshl_add_u32 v{t[1]}, v{t[2]}, 3, v{t[1]}")
    a(f"v_add_u32 v{t[1]}, 65536, v{t[1]}")
    a(f"v_and_b32 v{t[2]}, 15, v0")
    a(f"v_lshlrev_b32 v{t[2]}, 3, v{t[2]}")
    a(f"v_add_u32 v{t[2]}, 131072, v{t[2]}")
    a(f"v_bfe_u32 v{t[3]}, v0, 4, 1")
    a(f"v_cmp_eq_u32 vcc, 1, v{t[3]}")
    a(f"v_mov_b32 v{mA}, 4096")
    a(f"v_mov_b32 v{mB}, 0")
    a("s_nop 1")
    a(f"v_cndmask_b32 v{vVa0}, v{t[1]}, v{t[2]}, vcc")
    a(f"v_cndmask_b32 v{vVinc}, v{mA}, v{mB}, vcc")
    a("s_waitcnt vmcnt(8)")
    a(f"v_dot2_f32_bf16 v{mA}, v{vQ}, v{vQ}, 0")
    for r in range(1, 4):
        a(f"v_dot2_f32_bf16 v{mA}, v{vQ+r}, v{vQ+r}, v{mA}")
    a("s_nop 3")
    a(f"v_mov_b32 v{mB}, v{mA}")
    a("s_nop 1")
    a(f"v_permlane32_swap_b32 v{mA}, v{mB}")
    a("s_nop 1")
    a(f"v_add_f32 v{mA}, v{mA}, v{mB}")
    a("s_waitcnt vmcnt(0) lgkmcnt(0)")
    a("s_barrier")
    if STAMP: a("s_memtime s[74:75]")
    a(f"v_mov_b32 v{t[4]}, {KMAX_ADDR}")
    a(f"ds_read_b128 {v(P[0],4)}, v{t[4]}")
    a(f"ds_read_b128 {v(P[0]+4,4)}, v{t[4]} offset:16")
    a("s_cmp_lt_u32 s5, 4")
    a("s_cbranch_scc1 K2_NOPRIO")
    a("s_setprio 1")
    a.label("K2_NOPRIO")
    a("s_waitcnt lgkmcnt(0)")
    a(f"v_max3_f32 v{mB}, v{P[0]}, v{P[0]+1}, v{P[0]+2}")
    a(f"v_max3_f32 v{mB}, v{mB}, v{P[0]+3}, v{P[0]+4}")
    a(f"v_max3_f32 v{mB}, v{mB}, v{P[0]+5}, v{P[0]+6}")
    a(f"v_max_f32 v{mB}, v{mB}, v{P[0]+7}")
    a(f"v_mul_f32 v{mA}, v{mA}, v{mB}")
    a(f"v_sqrt_f32 v{mA}, v{mA}")
    a("s_nop 0")
    a(f"v_mul_f32 v{mA}, 0xbf802000, v{mA}")
    for i in range(16):
        a(f"v_mov_b32 v{C+i}, v{mA}")
    a("s_mov_b32 s17, 0")
    a(f"s_mov_b32 s18, {16 - HELP}")
    if STAMP: a("s_memtime s[76:77]")
    def kread(slot, tile_off):
        return f"ds_read_b128 {v(KF[slot],4)}, v{vKa} offset:{tile_off*1024}"
    def vreads(slot, tile_off):
        return [f"ds_read_b64_tr_b16 {v(VF[slot]+2*q,2)}, v{vVa} offset:{tile_off*1024 + (q//2)*512 + (q%2)*256}" for q in range(4)]
    a.label("K2_P2_ENTRY")
    a(f"v_mov_b32 v{vKa}, v{vKa0}")
    a(f"v_mov_b32 v{vVa}, v{vVa0}")
    for T in range(3):
        a(kread(T, T))
    for o in vreads(0, 0): a(o)
    a("s_waitcnt lgkmcnt(5)")
    a(f"v_mfma_f32_32x32x16_bf16 {v(S[0],16)}, {v(KF[0],4)}, {v(vQ,4)}, {v(C,16)}")
    a(f"v_mfma_f32_32x32x16_bf16 {v(S[1],16)}, {v(KF[1],4)}, {v(vQ,4)}, {v(C,16)}")
    for i in range(16):
        a(f"v_mov_b32 v{O+i}, 0")
    a("s_mov_b32 s16, s18")
    a.label("K2_P2")
    for u in range(4):
        if VARIANT == 0:
            a(kread((u + 3) % 4, u + 3))
            for o in vreads((u + 1) % 2, u + 1): a(o)
            a("s_waitcnt lgkmcnt(5)")
            a(f"v_mfma_f32_32x32x16_bf16 {v(S[(u+2)%4],16)}, {v(KF[(u+2)%4],4)}, {v(vQ,4)}, {v(C,16)}")
            for i in range(16):
                a(f"v_exp_f32 v{S[u]+i}, v{S[u]+i}")
            for i in range(8):
                a(f"v_cvt_pk_bf16_f32 v{P[u%2]+i}, v{S[u]+2*i}, v{S[u]+2*i+1}")
            a("s_nop 1")
            a(f"v_mfma_f32_32x32x16_bf16 {v(O,16)}, {v(VF[u%2],4)}, {v(P[u%2],4)}, {v(O,16)}")
            a(f"v_mfma_f32_32x32x16_bf16 {v(O,16)}, {v(VF[u%2]+4,4)}, {v(P[u%2]+4,4)}, {v(O,16)}")
        elif VARIANT == 1:
            for i in range(16):
                a(f"v_exp_f32 v{S[u]+i}, v{S[u]+i}")
            for i in range(8):
                a(f"v_cvt_pk_bf16_f32 v{P[u%2]+i}, v{S[u]+2*i}, v{S[u]+2*i+1}")
            a(kread((u + 3) % 4, u + 3))
            for o in vreads((u + 1) % 2, u + 1): a(o)
            a("s_waitcnt lgkmcnt(5)")
            a(f"v_mfma_f32_32x32x16_bf16 {v(S[(u+2)%4],16)}, {v(KF[(u+2)%4],4)}, {v(vQ,4)}, {v(C,16)}")
            a(f"v_mfma_f32_32x32x16_bf16 {v(O,16)}, {v(VF[u%2],4)}, {v(P[u%2],4)}, {v(O,16)}")
            a(f"v_mfma_f32_32x32x16_bf16 {v(O,16)}, {v(VF[u%2]+4,4)}, {v(P[u%2]+4,4)}, {v(O,16)}")
        elif VARIANT == 2:
            a(kread((u + 3) % 4, u + 3))
            for o in vreads((u + 1) % 2, u + 1): a(o)
            a("s_waitcnt lgkmcnt(5)")
            a(f"v_mfma_f32_32x32x16_bf16 {v(S[(u+2)%4],16)}, {v(KF[(u+2)%4],4)}, {v(vQ,4)}, {v(C,16)}")
            for i in range(8):
                a(f"v_exp_f32 v{S[u]+i}, v{S[u]+i}")
            for i in range(4):
                a(f"v_cvt_pk_bf16_f32 v{P[u%2]+i}, v{S[u]+2*i}, v{S[u]+2*i+1}")
            for i in range(8, 10):
                a(f"v_exp_f32 v{S[u]+i}, v{S[u]+i}")
            a(f"v_mfma_f32_32x32x16_bf16 {v(O,16)}, {v(VF[u%2],4)}, {v(P[u%2],4)}, {v(O,16)}")
            for i in range(10, 16):
                a(f"v_exp_f32 v{S[u]+i}, v{S[u]+i}")
            for i in range(4, 8):
                a(f"v_cvt_pk_bf16_f32 v{P[u%2]+i}, v{S[u]+2*i}, v{S[u]+2*i+1}")
            a("s_nop 1")
            a(f"v_mfma_f32_32x32x16_bf16 {v(O,16)}, {v(VF[u%2]+4,4)}, {v(P[u%2]+4,4)}, {v(O,16)}")
    a(f"v_add_u32 v{vKa}, 4096, v{vKa}")
    a(f"v_add_u32 v{vVa}, v{vVinc}, v{vVa}")
    a("s_sub_u32 s16, s16, 1")
    a(f"s_cmp_lg_u32 s16, {PRIO_SWITCH}")
    a("s_cbranch_scc1 K2_P2B")
    a("s_setprio 0")
    a.label("K2_P2B")
    a("s_cmp_lg_u32 s16, 0")
    a("s_cbranch_scc1 K2_P2")
    a("s_waitcnt lgkmcnt(0)")
    a("s_nop 15")
    a("s_nop 7")
    if ONEROW:
        a(f"v_mov_b32 v{t[1]}, v{O+8}")
        a("s_nop 1")
        a(f"v_permlane32_swap_b32 v{O+8}, v{t[1]}")
        a("s_nop 1")
    a("s_cmp_lg_u32 s17, 0")
    a("s_cbranch_scc1 K2_FIN")
    if HELP:
        a("s_lshl_b32 s13, s5, 2")
        a(f"s_add_u32 s13, s13, {HFLAG}")
        a(f"v_mov_b32 v{t[0]}, s13")
        a.label("K2_HWAIT")
        a(f"ds_read_b32 v{t[1]}, v{t[0]}")
        a("s_waitcnt lgkmcnt(0)")
        a(f"v_readfirstlane_b32 s13, v{t[1]}")
        a("s_cmp_lg_u32 s13, 0")
        a("s_cbranch_scc1 K2_HDONE")
        a("s_sleep 1")
        a("s_branch K2_HWAIT")
        a.label("K2_HDONE")
        a("s_mul_i32 s13, s5, 2304")
        a(f"s_add_u32 s13, s13, {PART}")
        a(f"v_lshlrev_b32 v{t[0]}, 4, v1")
        a(f"v_add_u32 v{t[0]}, s13, v{t[0]}")
        a(f"v_lshlrev_b32 v{t[1]}, 2, v1")
        a(f"v_add_u32 v{t[1]}, s13, v{t[1]}")
        a(f"ds_read_b128 {v(S[0],4)}, v{t[0]}")
        a(f"ds_read_b128 {v(S[0]+4,4)}, v{t[0]} offset:1024")
        a(f"ds_read_b32 v{S[0]+8}, v{t[1]} offset:2048")
        a("s_waitcnt lgkmcnt(0)")
        for i in range(9):
            a(f"v_add_f32 v{O+i}, v{O+i}, v{S[0]+i}")
    a(f"v_mov_b32 v{t[0]}, 0x12800000")
    a(f"v_cmp_nge_f32 vcc, v{O+8}, v{t[0]}")
    a("s_nop 4")
    a("s_cmp_eq_u64 vcc, 0")
    a("s_cbranch_scc1 K2_FIN")
    a("s_mov_b32 s17, 1")
    a("s_mov_b32 s18, 16")
    a(f"v_mov_b32 v{vKa}, v{vKa0}")
    a(f"v_mov_b32 v{mA}, 0xff800000")
    a(f"v_mov_b32 v{mB}, 0xff800000")
    for T in range(3):
        a(kread(T, T))
    a("s_waitcnt lgkmcnt(1)")
    a(f"v_mfma_f32_32x32x16_bf16 {v(S[0],16)}, {v(KF[0],4)}, {v(vQ,4)}, 0")
    a(f"v_mfma_f32_32x32x16_bf16 {v(S[1],16)}, {v(KF[1],4)}, {v(vQ,4)}, 0")
    a("s_mov_b32 s16, 16")
    a.label("K2_P1")
    for u in range(4):
        a(kread((u + 3) % 4, u + 3))
        a("s_waitcnt lgkmcnt(1)")
        a(f"v_mfma_f32_32x32x16_bf16 {v(S[(u+2)%4],16)}, {v(KF[(u+2)%4],4)}, {v(vQ,4)}, 0")
        for i in range(8):
            m = mA if i % 2 == 0 else mB
            a(f"v_max3_f32 v{m}, v{S[u]+2*i}, v{S[u]+2*i+1}, v{m}")
    a(f"v_add_u32 v{vKa}, 4096, v{vKa}")
    a("s_sub_u32 s16, s16, 1")
    a("s_cmp_lg_u32 s16, 0")
    a("s_cbranch_scc1 K2_P1")
    a(f"v_max_f32 v{mA}, v{mA}, v{mB}")
    a("s_nop 1")
    a(f"v_mov_b32 v{mB}, v{mA}")
    a("s_nop 1")
    a(f"v_permlane32_swap_b32 v{mA}, v{mB}")
    a("s_nop 1")
    a(f"v_max_f32 v{mA}, v{mA}, v{mB}")
    a("s_waitcnt lgkmcnt(0)")
    a("s_nop 15")
    for i in range(16):
        a(f"v_sub_f32 v{C+i}, 0, v{mA}")
    a("s_nop 7")
    a("s_branch K2_P2_ENTRY")
    a.label("K2_FIN")
    a(f"v_rcp_f32 v{t[0]}, v{O+8}")
    a("s_nop 1")
    for i in range(8):
        a(f"v_mul_f32 v{O+i}, v{O+i}, v{t[0]}")
    Pp = P[0]
    for i in range(4):
        a(f"v_cvt_pk_bf16_f32 v{Pp+i}, v{O+2*i}, v{O+2*i+1}")
    a(f"v_lshlrev_b32 v{t[1]}, 4, v1")
    a("s_lshr_b32 s7, s12, 5")
    a("s_lshl_b32 s7, s7, 5")
    a("s_add_u32 s7, s7, s3")
    a("s_lshl_b32 s7, s7, 10")
    a(f"s_add_u32 s7, s7, {WS_O}")
    a(f"v_permlane32_swap_b32 v{Pp+0}, v{Pp+2}")
    a(f"v_permlane32_swap_b32 v{Pp+1}, v{Pp+3}")
    a("s_nop 1")
    if not MERGE:
        a(f"buffer_store_dwordx4 {v(Pp,4)}, v{t[1]}, s[8:11], s7 offen")
    else:
        a(f"buffer_store_dwordx4 {v(Pp,4)}, v{t[1]}, s[8:11], s7 offen sc1")
        a(f"v_mov_b32 v{t[2]}, {KMAX_ADDR}")
        a(f"v_mov_b32 v{t[3]}, 1")
        a("s_waitcnt vmcnt(0)")
        a("v_cmp_eq_u32 vcc, 0, v1")
        a("s_and_saveexec_b64 s[14:15], vcc")
        a(f"ds_add_rtn_u32 v{t[4]}, v{t[2]}, v{t[3]} offset:64")
        a("s_waitcnt lgkmcnt(0)")
        a(f"v_readfirstlane_b32 s7, v{t[4]}")
        a("s_cmp_lg_u32 s7, 7")
        a("s_cbranch_scc1 K2_NOFLAG")
        a("s_lshl_b32 s7, s4, 7")
        a("s_lshl_b32 s13, s3, 2")
        a("s_add_u32 s7, s7, s13")
        a(f"s_add_u32 s7, s7, {WS_FLAG}")
        a(f"v_mov_b32 v{t[2]}, 0")
        a(f"buffer_store_dword v{t[3]}, v{t[2]}, s[8:11], s7 offen sc1")
        a.label("K2_NOFLAG")
        a("s_mov_b64 exec, s[14:15]")
    stamp_end(a)
    a("s_endpgm")

    a.label("K2_FFN")
    R2 = RegAlloc(4)
    vA = R2.alloc(); vB = R2.alloc(); vG = R2.alloc(); vS = R2.alloc(); vG2 = R2.alloc(); vL = R2.alloc()
    facc = R2.alloc(16, 4)
    Pf = R2.alloc(8, 4)
    BBr = R2.alloc(16, 4)
    D = 8; D2 = 12
    slots = R2.alloc(8 * D2, 4)
    a("s_barrier")
    if STAMP:
        a("s_memtime s[74:75]")
        a("s_memtime s[76:77]")
    a("s_sub_u32 s5, s5, 8")
    a("s_and_b32 s3, s2, 7")
    a("s_lshl_b32 s3, s3, 2")
    a("s_lshr_b32 s4, s2, 6")
    a("s_add_u32 s3, s3, s4")
    a("s_lshr_b32 s4, s2, 3")
    a("s_and_b32 s4, s4, 7")
    a("s_lshl_b32 s3, s3, 6")
    a("s_and_b32 s6, s5, 1")
    a("s_lshl_b32 s6, s6, 5")
    a("s_add_u32 s3, s3, s6")
    a("s_lshl_b32 s4, s4, 6")
    a("s_lshr_b32 s6, s5, 1")
    a("s_lshl_b32 s6, s6, 5")
    a("s_add_u32 s4, s4, s6")
    a("s_lshr_b32 s6, s4, 5")
    a(f"s_mul_i32 s6, s6, {86*1024}")
    a(f"s_add_u32 s6, s6, {WS_W2T}")
    a(f"v_lshlrev_b32 v{vA}, 4, v1")
    a(f"v_add_u32 v{vA}, s6, v{vA}")
    a(f"v_add_u32 v{vS}, s3, v2")
    a("s_lshr_b32 s6, s3, 5")
    a(f"s_mul_i32 s6, s6, {86*1024}")
    a(f"s_add_u32 s6, s6, {WS_ACT}")
    a(f"v_lshlrev_b32 v{vB}, 4, v1")
    a(f"v_add_u32 v{vB}, s6, v{vB}")
    a(f"v_lshlrev_b32 v{vG}, 2, v{vS}")
    a(f"s_mov_b32 s7, {WS_G}")
    a(f"buffer_load_dword v{vG2}, v{vG}, s[8:11], s7 offen")
    a(f"s_mov_b32 s7, {WS_OMG}")
    a(f"buffer_load_dword v{vG}, v{vG}, s[8:11], s7 offen")
    direct_gemm(a, vA, vB, 86, D, slots, facc)
    a("s_nop 15")
    a("s_nop 7")
    for i in range(8):
        a(f"v_cvt_pk_bf16_f32 v{Pf+i}, v{facc+2*i}, v{facc+2*i+1}")
    for i in range(8):
        a(f"v_lshlrev_b32 v{facc+2*i}, 16, v{Pf+i}")
        a(f"v_and_b32 v{facc+2*i+1}, 0xffff0000, v{Pf+i}")
    for i in range(16):
        a(f"v_mul_f32 v{facc+i}, v{facc+i}, v{vG}")
    for i in range(8):
        a(f"v_cvt_pk_bf16_f32 v{Pf+i}, v{facc+2*i}, v{facc+2*i+1}")
    if not MERGE:
        a(f"v_lshlrev_b32 v{vS}, 10, v{vS}")
        a(f"v_lshl_add_u32 v{vS}, v3, 4, v{vS}")
        a("s_lshl_b32 s7, s4, 1")
        a(f"s_add_u32 s7, s7, {WS_BB}")
        a(f"v_permlane32_swap_b32 v{Pf+0}, v{Pf+2}")
        a(f"v_permlane32_swap_b32 v{Pf+1}, v{Pf+3}")
        a(f"v_permlane32_swap_b32 v{Pf+4}, v{Pf+6}")
        a(f"v_permlane32_swap_b32 v{Pf+5}, v{Pf+7}")
        a("s_nop 1")
        a(f"buffer_store_dwordx4 {v(Pf,4)}, v{vS}, s[8:11], s7 offen")
        a(f"buffer_store_dwordx4 {v(Pf+4,4)}, v{vS}, s[8:11], s7 offen offset:32")
    else:
        for i in range(8):
            a(f"v_lshlrev_b32 v{BBr+2*i}, 16, v{Pf+i}")
            a(f"v_and_b32 v{BBr+2*i+1}, 0xffff0000, v{Pf+i}")
        if HELP:
            H = slots
            hQ = H; hK = [H+4, H+8]; hV = [H+12, H+20]; hS = H+28; hC = H+44; hP = H+60; hO = H+68
            hKa = H+84; hVa = H+85; ht = [H+86, H+87, H+88, H+89]
            a("s_setprio 3")
            a("s_and_b32 s20, s2, 7")
            a("s_lshl_b32 s20, s20, 2")
            a("s_lshr_b32 s21, s2, 6")
            a("s_add_u32 s20, s20, s21")
            a("s_lshr_b32 s21, s2, 3")
            a("s_and_b32 s21, s21, 7")
            a("s_lshl_b32 s22, s20, 16")
            a(f"s_add_u32 s22, s22, {WS_Q}")
            T0 = (16 - HELP) * 4
            a(f"v_lshlrev_b32 v{hKa}, 5, v2")
            a(f"v_lshl_add_u32 v{hKa}, v3, 4, v{hKa}")
            a(f"v_add_u32 v{hKa}, {T0*1024}, v{hKa}")
            a(f"v_bfe_u32 v{ht[0]}, v0, 2, 2")
            a(f"v_lshl_add_u32 v{ht[0]}, v3, 2, v{ht[0]}")
            a(f"v_lshlrev_b32 v{ht[0]}, 5, v{ht[0]}")
            a(f"v_and_b32 v{ht[1]}, 3, v0")
            a(f"v_lshl_add_u32 v{ht[0]}, v{ht[1]}, 3, v{ht[0]}")
            a(f"v_add_u32 v{ht[0]}, {65536 + T0*1024}, v{ht[0]}")
            a(f"v_and_b32 v{ht[1]}, 15, v0")
            a(f"v_lshlrev_b32 v{ht[1]}, 3, v{ht[1]}")
            a(f"v_add_u32 v{ht[1]}, 131072, v{ht[1]}")
            a(f"v_bfe_u32 v{ht[2]}, v0, 4, 1")
            a(f"v_cmp_eq_u32 vcc, 1, v{ht[2]}")
            a("s_nop 1")
            a(f"v_cndmask_b32 v{hVa}, v{ht[0]}, v{ht[1]}, vcc")
            a(f"v_mov_b32 v{ht[3]}, {KMAX_ADDR}")
            a(f"ds_read_b128 {v(hS,4)}, v{ht[3]}")
            a(f"ds_read_b128 {v(hS+4,4)}, v{ht[3]} offset:16")
            a("s_waitcnt lgkmcnt(0)")
            a(f"v_max3_f32 v{ht[3]}, v{hS}, v{hS+1}, v{hS+2}")
            a(f"v_max3_f32 v{ht[3]}, v{ht[3]}, v{hS+3}, v{hS+4}")
            a(f"v_max3_f32 v{ht[3]}, v{ht[3]}, v{hS+5}, v{hS+6}")
            a(f"v_max_f32 v{ht[3]}, v{ht[3]}, v{hS+7}")
            def ones_off(tt):
                return tt
            for qq in range(2):
                a("s_lshl_b32 s23, s5, 1")
                a(f"s_add_u32 s23, s23, {qq}")
                a("s_lshl_b32 s24, s21, 8")
                a("s_lshl_b32 s25, s23, 5")
                a("s_add_u32 s24, s24, s25")
                a(f"v_add_u32 v{ht[0]}, s24, v2")
                a(f"v_lshlrev_b32 v{ht[0]}, 5, v{ht[0]}")
                a(f"v_lshl_add_u32 v{ht[0]}, v3, 4, v{ht[0]}")
                a(f"buffer_load_dwordx4 {v(hQ,4)}, v{ht[0]}, s[8:11], s22 offen")
                def hreads(tt):
                    b = tt % 2
                    a(f"ds_read_b128 {v(hK[b],4)}, v{hKa} offset:{tt*1024}")
                    for q in range(4):
                        a(f"ds_read_b64_tr_b16 {v(hV[b]+2*q,2)}, v{hVa} offset:{tt*1024 + (q//2)*512 + (q%2)*256}")
                hreads(0)
                a("s_waitcnt vmcnt(0)")
                a(f"v_dot2_f32_bf16 v{ht[0]}, v{hQ}, v{hQ}, 0")
                for r in range(1, 4):
                    a(f"v_dot2_f32_bf16 v{ht[0]}, v{hQ+r}, v{hQ+r}, v{ht[0]}")
                a("s_nop 3")
                a(f"v_mov_b32 v{ht[1]}, v{ht[0]}")
                a("s_nop 1")
                a(f"v_permlane32_swap_b32 v{ht[0]}, v{ht[1]}")
                a("s_nop 1")
                a(f"v_add_f32 v{ht[0]}, v{ht[0]}, v{ht[1]}")
                a(f"v_mul_f32 v{ht[0]}, v{ht[0]}, v{ht[3]}")
                a(f"v_sqrt_f32 v{ht[0]}, v{ht[0]}")
                a("s_nop 0")
                a(f"v_mul_f32 v{ht[0]}, 0xbf802000, v{ht[0]}")
                for i in range(16):
                    a(f"v_mov_b32 v{hC+i}, v{ht[0]}")
                for i in range(16):
                    a(f"v_mov_b32 v{hO+i}, 0")
                NT = 4 * HELP
                for tt in range(NT):
                    b = tt % 2
                    if tt + 1 < NT:
                        hreads(tt + 1)
                        a("s_waitcnt lgkmcnt(5)")
                    else:
                        a("s_waitcnt lgkmcnt(0)")
                    a(f"v_mfma_f32_32x32x16_bf16 {v(hS,16)}, {v(hK[b],4)}, {v(hQ,4)}, {v(hC,16)}")
                    a("s_nop 15")
                    a("s_nop 3")
                    for i in range(16):
                        a(f"v_exp_f32 v{hS+i}, v{hS+i}")
                    for i in range(8):
                        a(f"v_cvt_pk_bf16_f32 v{hP+i}, v{hS+2*i}, v{hS+2*i+1}")
                    a("s_nop 1")
                    a(f"v_mfma_f32_32x32x16_bf16 {v(hO,16)}, {v(hV[b],4)}, {v(hP,4)}, {v(hO,16)}")
                    a(f"v_mfma_f32_32x32x16_bf16 {v(hO,16)}, {v(hV[b]+4,4)}, {v(hP+4,4)}, {v(hO,16)}")
                    a("s_nop 7")
                a("s_nop 15")
                a("s_nop 3")
                a("s_mul_i32 s24, s23, 2304")
                a(f"s_add_u32 s24, s24, {PART}")
                a(f"v_lshlrev_b32 v{ht[0]}, 4, v1")
                a(f"v_add_u32 v{ht[0]}, s24, v{ht[0]}")
                a(f"v_lshlrev_b32 v{ht[1]}, 2, v1")
                a(f"v_add_u32 v{ht[1]}, s24, v{ht[1]}")
                a(f"ds_write_b128 v{ht[0]}, {v(hO,4)}")
                a(f"ds_write_b128 v{ht[0]}, {v(hO+4,4)} offset:1024")
                a(f"ds_write_b32 v{ht[1]}, v{hO+8} offset:2048")
                a("s_waitcnt lgkmcnt(0)")
                a("s_lshl_b32 s24, s23, 2")
                a(f"s_add_u32 s24, s24, {HFLAG}")
                a(f"v_mov_b32 v{ht[0]}, s24")
                a(f"v_mov_b32 v{ht[1]}, 1")
                a(f"ds_write_b32 v{ht[0]}, v{ht[1]}")
                a("s_waitcnt lgkmcnt(0)")
        if HELP: a("s_setprio 0")
        a("s_lshr_b32 s6, s3, 8")
        a("s_lshl_b32 s6, s6, 7")
        a(f"s_add_u32 s6, s6, {WS_FLAG}")
        a(f"v_lshlrev_b32 v{vA}, 2, v2")
        a("s_barrier")
        a(f"v_lshlrev_b32 v{vL}, 4, v1")
        a("s_lshr_b32 s20, s5, 1")
        a("s_and_b32 s21, s5, 1")
        a("s_lshr_b32 s22, s4, 6")
        a("s_lshl_b32 s22, s22, 1")
        a("s_add_u32 s22, s22, s20")
        a("s_lshl_b32 s22, s22, 15")
        a("s_lshl_b32 s23, s21, 14")
        a("s_add_u32 s22, s22, s23")
        a(f"s_add_u32 s22, s22, {WS_WOT}")
        a("s_lshl_b32 s24, s20, 15")
        a("s_add_u32 s24, s24, s23")
        for ks in range(16):
            a(f"s_add_u32 m0, s24, {ks*1024}")
            a(f"s_add_u32 s25, s22, {ks*1024}")
            a(f"buffer_load_dwordx4 v{vL}, s[8:11], s25 offen lds")
        a("s_lshr_b32 s22, s3, 6")
        a("s_lshl_b32 s22, s22, 1")
        a("s_add_u32 s22, s22, s20")
        a("s_lshl_b32 s22, s22, 15")
        a("s_add_u32 s22, s22, s23")
        a(f"s_add_u32 s22, s22, {WS_O}")
        a("s_add_u32 s24, s24, 65536")
        a("s_mov_b32 s26, 0x400000")
        a.label("K2_POLL")
        a(f"buffer_load_dword v{vB}, v{vA}, s[8:11], s6 offen sc1")
        a("s_waitcnt vmcnt(0)")
        a(f"v_cmp_ne_u32 vcc, 1, v{vB}")
        a("s_nop 4")
        a("s_cmp_eq_u64 vcc, 0")
        a("s_cbranch_scc1 K2_POLLDONE")
        a("s_sleep 2")
        a("s_sub_u32 s26, s26, 1")
        a("s_cmp_lg_u32 s26, 0")
        a("s_cbranch_scc1 K2_POLL")
        a.label("K2_POLLDONE")
        if STAMP: a("s_memtime s[74:75]")
        if STAMP: a("s_memtime s[76:77]")
        for ks in range(16):
            a(f"s_add_u32 m0, s24, {ks*1024}")
            a(f"s_add_u32 s25, s22, {ks*1024}")
            a(f"buffer_load_dwordx4 v{vL}, s[8:11], s25 offen lds")
        a("s_lshl_b32 s6, s20, 15")
        a(f"v_add_u32 v{vA}, s6, v{vL}")
        a("s_lshl_b32 s6, s21, 15")
        a("s_add_u32 s6, s6, 65536")
        a(f"v_add_u32 v{vB}, s6, v{vL}")
        a("s_waitcnt vmcnt(0)")
        a("s_barrier")
        FR = [slots + 8*i for i in range(4)]
        def rd(ks):
            f = FR[ks % 4]
            a(f"ds_read_b128 {v(f,4)}, v{vA} offset:{ks*1024}")
            a(f"ds_read_b128 {v(f+4,4)}, v{vB} offset:{ks*1024}")
        rd(0); rd(1); rd(2)
        for ks in range(32):
            if ks + 3 < 32:
                rd(ks + 3)
                a("s_waitcnt lgkmcnt(6)")
            else:
                a(f"s_waitcnt lgkmcnt({2*(31-ks)})")
            f = FR[ks % 4]
            cc = "0" if ks == 0 else v(facc, 16)
            a(f"v_mfma_f32_32x32x16_bf16 {v(facc,16)}, {v(f,4)}, {v(f+4,4)}, {cc}")
        a("s_nop 15")
        a("s_nop 7")
        for i in range(8):
            a(f"v_cvt_pk_bf16_f32 v{Pf+i}, v{facc+2*i}, v{facc+2*i+1}")
        for i in range(8):
            a(f"v_lshlrev_b32 v{facc+2*i}, 16, v{Pf+i}")
            a(f"v_and_b32 v{facc+2*i+1}, 0xffff0000, v{Pf+i}")
        for i in range(16):
            a(f"v_mul_f32 v{facc+i}, v{facc+i}, v{vG2}")
        for i in range(8):
            a(f"v_cvt_pk_bf16_f32 v{Pf+i}, v{facc+2*i}, v{facc+2*i+1}")
        for i in range(8):
            a(f"v_lshlrev_b32 v{facc+2*i}, 16, v{Pf+i}")
            a(f"v_and_b32 v{facc+2*i+1}, 0xffff0000, v{Pf+i}")
        for i in range(16):
            a(f"v_add_f32 v{facc+i}, v{facc+i}, v{BBr+i}")
        for i in range(8):
            a(f"v_cvt_pk_bf16_f32 v{Pf+i}, v{facc+2*i}, v{facc+2*i+1}")
        a(f"v_lshlrev_b32 v{vS}, 10, v{vS}")
        a(f"v_lshl_add_u32 v{vS}, v3, 4, v{vS}")
        a("s_lshl_b32 s7, s4, 1")
        a(f"v_permlane32_swap_b32 v{Pf+0}, v{Pf+2}")
        a(f"v_permlane32_swap_b32 v{Pf+1}, v{Pf+3}")
        a(f"v_permlane32_swap_b32 v{Pf+4}, v{Pf+6}")
        a(f"v_permlane32_swap_b32 v{Pf+5}, v{Pf+7}")
        a("s_nop 1")
        a(f"buffer_store_dwordx4 {v(Pf,4)}, v{vS}, s[44:47], s7 offen nt")
        a(f"buffer_store_dwordx4 {v(Pf+4,4)}, v{vS}, s[44:47], s7 offen offset:32 nt")
    stamp_end(a)
    a.label("K2_END")
    a("s_endpgm")
    return a.text(), max(nv_att, R2.next)

K3_LDS = 131072
def gen_k3():
    a = Asm()
    R2 = RegAlloc(4)
    vL = R2.alloc(); vRA = R2.alloc(); vRB = R2.alloc(); vG = R2.alloc(); vS = R2.alloc()
    facc = R2.alloc(16, 4)
    Pf = R2.alloc(8, 4)
    BB = R2.alloc(8, 4)
    T = R2.alloc(16, 4)
    FR = [R2.alloc(8, 4) for _ in range(4)]
    a("s_cmp_ge_u32 s2, 256")
    a("s_cbranch_scc1 K3_END")
    if STAMP:
        a("s_memtime s[72:73]")
        a("s_memrealtime s[90:91]")
    a("s_load_dwordx2 s[52:53], s[0:1], 80")
    a("s_load_dwordx2 s[54:55], s[0:1], 64")
    a("v_lshrrev_b32 v1, 6, v0")
    a("s_nop 0")
    a("v_readfirstlane_b32 s5, v1")
    a("v_and_b32 v1, 63, v0")
    a("v_and_b32 v2, 31, v0")
    a("v_bfe_u32 v3, v0, 5, 1")
    a(f"v_lshlrev_b32 v{vL}, 4, v1")
    a("s_and_b32 s3, s2, 7")
    a("s_lshl_b32 s3, s3, 2")
    a("s_lshr_b32 s4, s2, 6")
    a("s_add_u32 s3, s3, s4")
    a("s_lshr_b32 s4, s2, 3")
    a("s_and_b32 s4, s4, 7")
    a("s_lshl_b32 s6, s4, 1")
    a("s_add_u32 s6, s6, s5")
    a("s_lshl_b32 s6, s6, 15")
    a(f"s_add_u32 s6, s6, {WS_WOT}")
    a("s_lshl_b32 s7, s3, 1")
    a("s_add_u32 s7, s7, s5")
    a("s_sub_u32 s7, s7, 2")
    a("s_lshl_b32 s7, s7, 15")
    a(f"s_add_u32 s7, s7, {WS_O}")
    a("s_cmp_lt_u32 s5, 2")
    a("s_cselect_b32 s18, s6, s7")
    a("s_lshl_b32 s19, s5, 15")
    a("s_waitcnt lgkmcnt(0)")
    srd(a, 8, 52, WS_SIZE)
    srd(a, 12, 54, 2097152)
    for ks in range(32):
        a(f"s_add_u32 m0, s19, {ks*1024}")
        a(f"s_add_u32 s20, s18, {ks*1024}")
        a(f"buffer_load_dwordx4 v{vL}, s[8:11], s20 offen lds")
    a("s_lshl_b32 s3, s3, 6")
    a("s_and_b32 s6, s5, 1")
    a("s_lshl_b32 s6, s6, 5")
    a("s_add_u32 s3, s3, s6")
    a("s_lshl_b32 s4, s4, 6")
    a("s_lshr_b32 s6, s5, 1")
    a("s_lshl_b32 s6, s6, 5")
    a("s_add_u32 s4, s4, s6")
    a(f"v_add_u32 v{vS}, s3, v2")
    a(f"v_lshlrev_b32 v{vG}, 2, v{vS}")
    a(f"s_mov_b32 s7, {WS_G}")
    a(f"buffer_load_dword v{vG}, v{vG}, s[8:11], s7 offen")
    a(f"v_lshlrev_b32 v{vS}, 10, v{vS}")
    a(f"v_lshl_add_u32 v{vS}, v3, 4, v{vS}")
    a("s_lshl_b32 s16, s4, 1")
    a(f"s_add_u32 s17, s16, {WS_BB}")
    a(f"buffer_load_dwordx4 {v(BB,4)}, v{vS}, s[8:11], s17 offen")
    a(f"buffer_load_dwordx4 {v(BB+4,4)}, v{vS}, s[8:11], s17 offen offset:32")
    a("s_lshr_b32 s6, s5, 1")
    a("s_lshl_b32 s6, s6, 15")
    a(f"v_add_u32 v{vRA}, s6, v{vL}")
    a("s_and_b32 s6, s5, 1")
    a("s_add_u32 s6, s6, 2")
    a("s_lshl_b32 s6, s6, 15")
    a(f"v_add_u32 v{vRB}, s6, v{vL}")
    if STAMP: a("s_memtime s[74:75]")
    def rd(ks):
        f = FR[ks % 4]
        a(f"ds_read_b128 {v(f,4)}, v{vRA} offset:{ks*1024}")
        a(f"ds_read_b128 {v(f+4,4)}, v{vRB} offset:{ks*1024}")
    for c in range(4):
        a(f"s_waitcnt vmcnt({3 + 32 - 8*(c+1)})")
        a("s_barrier")
        rd(8*c); rd(8*c+1); rd(8*c+2)
        for k in range(8):
            ks = 8*c + k
            if k + 3 < 8:
                rd(ks + 3)
                a("s_waitcnt lgkmcnt(6)")
            else:
                a(f"s_waitcnt lgkmcnt({2*(7-k)})")
            f = FR[ks % 4]
            cc = "0" if ks == 0 else v(facc, 16)
            a(f"v_mfma_f32_32x32x16_bf16 {v(facc,16)}, {v(f,4)}, {v(f+4,4)}, {cc}")
    if STAMP: a("s_memtime s[76:77]")
    a("s_waitcnt vmcnt(0)")
    a("s_nop 15")
    a("s_nop 7")
    for i in range(8):
        a(f"v_cvt_pk_bf16_f32 v{Pf+i}, v{facc+2*i}, v{facc+2*i+1}")
    for i in range(8):
        a(f"v_lshlrev_b32 v{facc+2*i}, 16, v{Pf+i}")
        a(f"v_and_b32 v{facc+2*i+1}, 0xffff0000, v{Pf+i}")
    for i in range(16):
        a(f"v_mul_f32 v{facc+i}, v{facc+i}, v{vG}")
    for i in range(8):
        a(f"v_cvt_pk_bf16_f32 v{Pf+i}, v{facc+2*i}, v{facc+2*i+1}")
    a("s_nop 1")
    a(f"v_permlane32_swap_b32 v{Pf+0}, v{Pf+2}")
    a(f"v_permlane32_swap_b32 v{Pf+1}, v{Pf+3}")
    a(f"v_permlane32_swap_b32 v{Pf+4}, v{Pf+6}")
    a(f"v_permlane32_swap_b32 v{Pf+5}, v{Pf+7}")
    a("s_nop 1")
    for i in range(8):
        a(f"v_lshlrev_b32 v{facc+2*i}, 16, v{Pf+i}")
        a(f"v_and_b32 v{facc+2*i+1}, 0xffff0000, v{Pf+i}")
        a(f"v_lshlrev_b32 v{T+2*i}, 16, v{BB+i}")
        a(f"v_and_b32 v{T+2*i+1}, 0xffff0000, v{BB+i}")
    for i in range(16):
        a(f"v_add_f32 v{facc+i}, v{facc+i}, v{T+i}")
    for i in range(8):
        a(f"v_cvt_pk_bf16_f32 v{Pf+i}, v{facc+2*i}, v{facc+2*i+1}")
    a(f"buffer_store_dwordx4 {v(Pf,4)}, v{vS}, s[12:15], s16 offen")
    a(f"buffer_store_dwordx4 {v(Pf+4,4)}, v{vS}, s[12:15], s16 offen offset:32")
    if STAMP:
        a("s_waitcnt vmcnt(0)")
        a("s_memtime s[78:79]")
        a("s_memrealtime s[92:93]")
        a("s_waitcnt lgkmcnt(0)")
        a("s_sub_u32 s74, s74, s72")
        a("s_sub_u32 s76, s76, s72")
        a("s_sub_u32 s78, s78, s72")
        a("v_mov_b32 v4, s90")
        a("v_mov_b32 v5, s92")
        a("v_mov_b32 v6, s74")
        a("v_mov_b32 v7, s76")
        a("v_mov_b32 v8, s78")
        a("s_lshl_b32 s87, s2, 2")
        a("s_add_u32 s87, s87, s5")
        a("s_lshl_b32 s87, s87, 5")
        a("s_add_u32 s87, s87, 0x1500000")
        a("v_mov_b32 v9, 0")
        a("buffer_store_dwordx4 v[4:7], v9, s[8:11], s87 offen")
        a("buffer_store_dword v8, v9, s[8:11], s87 offen offset:16")
    a.label("K3_END")
    a("s_endpgm")
    return a.text(), R2.next
```
